```python
import torch

def _softmax(x, axis=-1):
    return torch.softmax(x, dim=axis)
def _gelu(x):
    return torch.nn.functional.gelu(x, approximate="tanh")
def _silu(x):
    return torch.nn.functional.silu(x)
def _sigmoid(x):
    return torch.sigmoid(x)
def _layernorm(x, axis=-1, eps=1e-5):
    m = x.mean(dim=axis, keepdim=True)
    v = x.var(dim=axis, keepdim=True, unbiased=False)
    return (x - m) / torch.sqrt(v + eps)
def _scatter_add(tgt, idx, src, axis=0):
    return tgt.clone().index_add_(axis, idx, src)
def _segment_sum(src, seg, n):
    out = torch.zeros((n,) + src.shape[1:], dtype=src.dtype)
    return out.index_add_(0, seg, src)
def _pad(x, pw):
    flat = tuple(v for pair in reversed(pw) for v in pair)
    return torch.nn.functional.pad(x, flat)

kernel_name = 'sequential_preLN__mha_block__mixer_s_mlp__prompt'

def setup_inputs():

    _w = (lambda a: (lambda t: t.to(torch.bfloat16) if t.is_floating_point() else t)(torch.as_tensor(a)))
    def _A_setup():
        B, S, D, H = 1, 2048, 512, 32
        return {
            "x": _w((lambda *s: torch.randn(*s, dtype=torch.bfloat16) * 0.05)(B, S, D)),
            "wqkv": _w((lambda *s: torch.randn(*s, dtype=torch.bfloat16) * 0.05)(D, 3 * D)),
            "wo": _w((lambda *s: torch.randn(*s, dtype=torch.bfloat16) * 0.05)(D, D)),
        }
    _A_in = _A_setup()

    def _B_setup():
        B, S, D, F = 1, 2048, 512, 1376
        return {
            "x":  _w((lambda *s: torch.randn(*s, dtype=torch.bfloat16) * 0.05)(B, S, D)),
            "w1": _w((lambda *s: torch.randn(*s, dtype=torch.bfloat16) * 3.2)(D, D) * (D ** -0.5)),
            "w2": _w((lambda *s: torch.randn(*s, dtype=torch.bfloat16) * 3.2)(D, D) * (D ** -0.5)),
            "w3": _w((lambda *s: torch.randn(*s, dtype=torch.bfloat16) * 3.2)(D, F) * (D ** -0.5)),
            "w4": _w((lambda *s: torch.randn(*s, dtype=torch.bfloat16) * 3.2)(F, D) * (F ** -0.5)),
        }
    _B_in = _B_setup()

    return {
        "A_x": _A_in["x"],
        "A_wqkv": _A_in["wqkv"],
        "A_wo": _A_in["wo"],
        "B_x": _B_in["x"],
        "B_w1": _B_in["w1"],
        "B_w2": _B_in["w2"],
        "B_w3": _B_in["w3"],
        "B_w4": _B_in["w4"],
    }

def reference(A_x, A_wqkv, A_wo, B_x, B_w1, B_w2, B_w3, B_w4):
    def _A_ref(x, wqkv, wo):
        B, S, D = x.shape
        H = 32
        Dh = D // H
        qkv = (lambda x, *d: x.permute(*d))((x @ wqkv).reshape(B, S, 3, H, Dh), 2, 0, 3, 1, 4)
        q, k, v = qkv[0], qkv[1], qkv[2]
        scores = torch.einsum("bhqd,bhkd->bhqk", q, k) * (Dh ** -0.5)
        p = _softmax(scores, axis=-1)
        o = torch.einsum("bhqk,bhkd->bhqd", p, v)
        return (lambda x, *d: x.permute(*d))(o, 0, 2, 1, 3).reshape(B, S, D) @ wo

    def _B_ref(x, w1, w2, w3, w4):
        B, S, D = x.shape
        h = _gelu(_layernorm(x, axis=-1) @ w1)
        c = D // 4
        g0 = _pad(h[:, :, 0*c:1*c], ((0, 0), (1, 0), (0, 0)))[:, :S, :]
        g1 = _pad(h[:, :, 1*c:2*c], ((0, 0), (0, 1), (0, 0)))[:, 1:, :]
        g2 = _pad(h[:, :, 2*c:3*c], ((0, 0), (2, 0), (0, 0)))[:, :S, :]
        g3 = _pad(h[:, :, 3*c:   ], ((0, 0), (0, 2), (0, 0)))[:, 2:, :]
        hs = torch.concatenate([g0, g1, g2, g3], axis=-1) @ w2
        x1 = x + hs
        h2 = _gelu(_layernorm(x1, axis=-1) @ w3) @ w4
        return x1 + h2

    x = A_x
    h = x + _A_ref(_layernorm(x, axis=-1), A_wqkv, A_wo)
    h2 = h + _B_ref(_layernorm(h, axis=-1), B_w1, B_w2, B_w3, B_w4)
    return h2
```

```python
class Kern:
    def __init__(self, name, vgpr=256, sgpr=102, accum=None):
        self.name = name; self.L = []; self.vgpr = vgpr; self.sgpr = sgpr; self.accum = accum
        self.nlab = 0
    def __call__(self, s):
        for ln in s.split("\n"):
            ln = ln.strip()
            if ln: self.L.append("    " + ln)
    def label(self, l): self.L.append(f"{l}:")
    def newlabel(self, p="L"):
        self.nlab += 1
        return f"{p}_{self.name}_{self.nlab}"
    def text(self):
        h = f".globl {self.name}\n.p2align 8\n.type {self.name},@function\n{self.name}:\n"
        return h + "\n".join(self.L) + "\n"
    def desc(self):
        acc = self.accum if self.accum is not None else min(256, (self.vgpr + 3) // 4 * 4)
        return f""".p2align 6
.amdhsa_kernel {self.name}
  .amdhsa_next_free_vgpr {self.vgpr}
  .amdhsa_next_free_sgpr {self.sgpr}
  .amdhsa_accum_offset {acc}
  .amdhsa_group_segment_fixed_size 0
  .amdhsa_kernarg_size 88
  .amdhsa_user_sgpr_count 2
  .amdhsa_user_sgpr_kernarg_segment_ptr 1
  .amdhsa_system_sgpr_workgroup_id_x 1
.end_amdhsa_kernel
"""
def vr(b, n=4): return f"v[{b}:{b+n-1}]"
def ar(b, n=4): return f"a[{b}:{b+n-1}]"
def sr(b, n=4): return f"s[{b}:{b+n-1}]"
import struct
def f2u(x): return struct.unpack("<I", struct.pack("<f", x))[0]
def fhex(x): return "0x%08x" % f2u(x)

HEADER = """; Kernarg layout for this problem (88 bytes, ptrs only, base s[0:1]):
"""
def emit(path, launches, kerns):
    s = HEADER
    for (k, grid, block, lds) in launches:
        s += f"; @launch kernel={k} grid=({grid},1,1) block=({block},1,1) lds={lds}\n"
    s += '.amdgcn_target "amdgcn-amd-amdhsa--gfx950"\n.text\n'
    for k in kerns: s += k.text()
    s += '.section .rodata,"a"\n'
    for k in kerns: s += k.desc()
    open(path, "w").write(s)
```

```python
import math, sys
from asmlib import *

QF=0x000000; KF=0x200000; VF=0x400000; OF=0x600000; HF=0x800000; GF=0xA00000; X1F=0xC00000; XF=0xE00000
UF=0x1000000
WQKVF=0x1600000; WOF=0x1800000; W1F=0x1880000; W2F=0x1900000; W3F=0x1980000; W4F=0x1B00000
CSQKV=0x1D00000; CS1=0x1D02000; CS3=0x1D03000
XS=0x1D10000; HS=0x1D20000; X1S=0x1D60000
WS_SZ=0x2000000
ONES=0x3F803F80
EPS=1e-5
LOG2E=1.4426950408889634

def srd_ws(k, d=4):
    k(f"s_load_dwordx2 s[{d}:{d+1}], s[0:1], 80")
    k(f"s_mov_b32 s{d+2}, {WS_SZ:#x}")
    k(f"s_mov_b32 s{d+3}, 0x00020000")
def srd_arg(k, d, off, size):
    k(f"s_load_dwordx2 s[{d}:{d+1}], s[0:1], {off}")
    k(f"s_mov_b32 s{d+2}, {size:#x}")
    k(f"s_mov_b32 s{d+3}, 0x00020000")

def xhalf_add(k, a, t):
    k(f"v_mov_b32 v{t}, v{a}")
    k("s_nop 1")
    k(f"v_permlane32_swap_b32 v{a}, v{t}")
    k("s_nop 0")
    k(f"v_add_f32 v{a}, v{a}, v{t}")

def gen_prep():
    k = Kern("prep_kernel", vgpr=96, sgpr=64)
    done = "L_prep_done"
    k(f"s_cmp_ge_u32 s2, 251\ns_cbranch_scc1 {done}")
    srd_ws(k, 4)
    k("s_load_dwordx16 s[32:47], s[0:1], 0")
    k("s_mov_b32 s11, 0x00020000")
    k("v_and_b32 v1, 63, v0\nv_lshrrev_b32 v2, 6, v0")
    k("s_waitcnt lgkmcnt(0)")
    k("s_cmp_ge_u32 s2, 187\ns_cbranch_scc1 L_prep_x")
    types = [(0,48,1,512*1536*2,3072,WQKVF,CSQKV),(48,64,2,512*512*2,1024,WOF,0),(64,80,4,512*512*2,1024,W1F,CS1),
             (80,96,5,512*512*2,1024,W2F,0),(96,139,6,512*1376*2,2752,W3F,CS3)]
    for (lo,hi,pi,sz,stride,dst,cs) in types:
        nxt = k.newlabel()
        k(f"s_cmp_ge_u32 s2, {hi}\ns_cbranch_scc1 {nxt}")
        k(f"s_mov_b32 s8, s{32+2*pi}\ns_mov_b32 s9, s{33+2*pi}\ns_mov_b32 s10, {sz:#x}")
        k(f"s_mov_b32 s16, {stride}\ns_sub_u32 s17, s2, {lo}\ns_mov_b32 s18, 0")
        k(f"s_lshl_b32 s19, s17, 15\ns_add_u32 s19, s19, {dst:#x}")
        if cs: k(f"s_lshl_b32 s20, s17, 7\ns_add_u32 s20, s20, {cs:#x}")
        else: k("s_mov_b32 s20, 0")
        k("s_mov_b32 s21, 32\ns_branch L_prep_w")
        k.label(nxt)
    k(f"s_mov_b32 s8, s46\ns_mov_b32 s9, s47\ns_mov_b32 s10, {1376*512*2:#x}")
    k("s_mov_b32 s16, 1024\ns_sub_u32 s22, s2, 139\ns_mul_i32 s17, s22, 43\ns_lshr_b32 s17, s17, 7")
    k("s_mul_i32 s23, s17, 3\ns_sub_u32 s23, s22, s23")
    k("s_lshl_b32 s18, s23, 9")
    k(f"s_mul_i32 s19, s17, {86*1024}\ns_lshl_b32 s24, s23, 15\ns_add_u32 s19, s19, s24\ns_add_u32 s19, s19, {W4F:#x}")
    k("s_mov_b32 s20, 0\ns_lshl_b32 s24, s23, 5\ns_sub_u32 s21, 86, s24")
    k.label("L_prep_w")
    k("v_lshrrev_b32 v3, 2, v1\nv_and_b32 v4, 3, v1")
    k("v_lshlrev_b32 v5, 7, v2\nv_lshl_add_u32 v5, v3, 3, v5\nv_add_u32 v5, s18, v5")
    k("v_mul_lo_u32 v5, v5, s16")
    k("s_lshl_b32 s24, s17, 6")
    k("v_lshl_add_u32 v5, v4, 4, v5\nv_add_u32 v5, s24, v5")
    for j in range(8):
        k(f"buffer_load_dwordx4 {vr(16+4*j)}, v5, s[8:11], 0 offen")
        if j<7: k("v_add_u32 v5, s16, v5")
    k("v_lshrrev_b32 v6, 1, v3\nv_lshl_add_u32 v6, v2, 3, v6")
    k("v_cmp_gt_u32 vcc, s21, v6")
    k("v_lshlrev_b32 v6, 10, v6")
    k("v_and_b32 v7, 1, v3\nv_lshl_add_u32 v6, v7, 9, v6")
    k("v_lshrrev_b32 v7, 1, v4\nv_lshl_add_u32 v6, v7, 8, v6")
    k("v_and_b32 v7, 1, v4\nv_lshl_add_u32 v6, v7, 6, v6")
    k("v_mov_b32 v7, 0x80000000\nv_cndmask_b32 v6, v7, v6, vcc")
    k(f"s_mov_b32 s25, 0x05040100\ns_mov_b32 s26, 0x07060302\ns_mov_b32 s27, {ONES:#x}")
    k("s_waitcnt vmcnt(0)")
    for c in range(8):
        for p in range(4):
            k(f"v_perm_b32 v{48+4*c+p}, v{16+4*(2*p+1)+c//2}, v{16+4*(2*p)+c//2}, s{25+(c&1)}")
    for c in range(8):
        k(f"buffer_store_dwordx4 {vr(48+4*c)}, v6, s[4:7], s19 offen offset:{(c>>2)*128+(c&3)*16}")
    k(f"s_cmp_eq_u32 s20, 0\ns_cbranch_scc1 {done}")
    for c in range(8):
        k(f"v_dot2_f32_bf16 v{80+c}, v{48+4*c}, s27, 0")
    for p in range(1,4):
        for c in range(8):
            k(f"v_dot2_f32_bf16 v{80+c}, v{48+4*c+p}, s27, v{80+c}")
    k("s_nop 3")
    for c in range(8): k(f"v_add_f32_dpp v{80+c}, v{80+c}, v{80+c} row_ror:4 row_mask:0xf bank_mask:0xf")
    k("s_nop 1")
    for c in range(8): k(f"v_add_f32_dpp v{80+c}, v{80+c}, v{80+c} row_ror:8 row_mask:0xf bank_mask:0xf")
    k("v_lshrrev_b32 v7, 4, v0\nv_lshlrev_b32 v7, 7, v7\nv_lshl_add_u32 v7, v4, 5, v7")
    k("ds_write_b128 v7, v[80:83]\nds_write_b128 v7, v[84:87] offset:16")
    k("s_waitcnt lgkmcnt(0)\ns_barrier")
    k("v_and_b32 v7, 31, v0\nv_lshlrev_b32 v7, 2, v7")
    for p in range(16): k(f"ds_read_b32 v{16+p}, v7 offset:{p*128}")
    k("s_waitcnt lgkmcnt(0)")
    for p in range(1,16): k(f"v_add_f32 v16, v16, v{16+p}")
    k("buffer_store_dword v16, v7, s[4:7], s20 offen")
    k(f"s_branch {done}")
    k.label("L_prep_x")
    k(f"s_mov_b32 s8, s32\ns_mov_b32 s9, s33\ns_mov_b32 s10, {2048*512*2:#x}")
    k("s_sub_u32 s17, s2, 187")
    k("v_and_b32 v3, 31, v1\nv_lshrrev_b32 v4, 5, v1")
    k("v_lshlrev_b32 v5, 10, v3\nv_lshl_add_u32 v5, v2, 8, v5\nv_lshl_add_u32 v5, v4, 4, v5")
    k("s_lshl_b32 s19, s17, 15")
    for j in range(8): k(f"buffer_load_dwordx4 {vr(16+4*j)}, v5, s[8:11], s19 offen offset:{j*32}")
    k(f"s_add_u32 s19, s19, {XF:#x}\ns_add_u32 s22, s19, 4096\ns_mov_b32 s27, {ONES:#x}")
    k("v_lshlrev_b32 v6, 4, v1\nv_lshl_add_u32 v6, v2, 13, v6")
    k("v_mov_b32 v80, 0\nv_mov_b32 v81, 0")
    k("s_waitcnt vmcnt(0)")
    for j in range(8): k(f"buffer_store_dwordx4 {vr(16+4*j)}, v6, s[4:7], s{19 if j<4 else 22} offen offset:{(j%4)*1024}")
    for r in range(32):
        k(f"v_dot2_f32_bf16 v80, v{16+r}, s27, v80")
        k(f"v_dot2_f32_bf16 v81, v{16+r}, v{16+r}, v81")
    k("v_lshlrev_b32 v7, 3, v0")
    k("s_nop 3")
    k("ds_write_b64 v7, v[80:81]")
    k("s_waitcnt lgkmcnt(0)\ns_barrier")
    k("v_lshlrev_b32 v7, 3, v3")
    for p in range(8): k(f"ds_read_b64 {vr(16+2*p,2)}, v7 offset:{p*256}")
    k("s_waitcnt lgkmcnt(0)")
    for p in range(1,8): k(f"v_add_f32 v16, v16, v{16+2*p}\nv_add_f32 v17, v17, v{17+2*p}")
    k(f"s_lshl_b32 s19, s17, 8\ns_add_u32 s19, s19, {XS:#x}")
    k("buffer_store_dwordx2 v[16:17], v7, s[4:7], s19 offen")
    k.label(done)
    k("s_endpgm")
    return k

def stats_from_sums(k, s, q, mu, r, t):
    k(f"v_mul_f32 v{mu}, {fhex(1/512)}, v{s}")
    k(f"v_mul_f32 v{q}, {fhex(1/512)}, v{q}")
    k(f"v_fma_f32 v{q}, -v{mu}, v{mu}, v{q}")
    k(f"v_max_f32 v{q}, 0, v{q}")
    k(f"v_add_f32 v{t}, {fhex(EPS)}, v{q}")
    k(f"v_rsq_f32 v{r}, v{t}")
    k("s_nop 0")
def sum_partials(k, b, t):
    for p in range(1,8): k(f"v_add_f32 v{b}, v{b}, v{b+2*p}\nv_add_f32 v{b+1}, v{b+1}, v{b+2*p+1}")
    xhalf_add(k, b, t); xhalf_add(k, b+1, t)
GA = -2*LOG2E*math.sqrt(2/math.pi)*0.044715
GB = -2*LOG2E*math.sqrt(2/math.pi)
def gelu16(k, x, t, sA, vB):
    for r in range(16): k(f"v_mul_f32 v{t+r}, v{x+r}, v{x+r}")
    for r in range(16): k(f"v_fma_f32 v{t+r}, v{t+r}, s{sA}, v{vB}")
    for r in range(16): k(f"v_mul_f32 v{t+r}, v{t+r}, v{x+r}")
    for r in range(16): k(f"v_exp_f32 v{t+r}, v{t+r}")
    for r in range(16): k(f"v_add_f32 v{t+r}, 1.0, v{t+r}")
    for r in range(16): k(f"v_rcp_f32 v{t+r}, v{t+r}")
    for r in range(16): k(f"v_mul_f32 v{x+r}, v{x+r}, v{t+r}")
def pack16(k, x, d):
    for r in range(8): k(f"v_cvt_pk_bf16_f32 v{d+r}, v{x+2*r}, v{x+2*r+1}")
def unpack8(k, s, d):
    for r in range(8):
        k(f"v_lshlrev_b32 v{d+2*r}, 16, v{s+r}")
        k(f"v_and_b32 v{d+2*r+1}, 0xffff0000, v{s+r}")
def part_stats(k, p, a, t, sOnes):
    k(f"v_dot2_f32_bf16 v{a}, v{p}, s{sOnes}, 0")
    k(f"v_dot2_f32_bf16 v{a+1}, v{p}, v{p}, 0")
    for r in range(1,8):
        k(f"v_dot2_f32_bf16 v{a}, v{p+r}, s{sOnes}, v{a}")
        k(f"v_dot2_f32_bf16 v{a+1}, v{p+r}, v{p+r}, v{a+1}")
    k("s_nop 2")
    xhalf_add(k, a, t); xhalf_add(k, a+1, t)

def gen_gemmL(name, KS, WB, XB, epi, R):
    k = Kern(name, vgpr=168, sgpr=64)
    done = f"L_{name}_done"
    k(f"s_cmp_ge_u32 s2, 256\ns_cbranch_scc1 {done}")
    srd_ws(k, 4)
    if epi == 'wo': srd_arg(k, 8, 0, 2048*512*2)
    if epi == 'w4': srd_arg(k, 8, 64, 2048*512*2)
    k("s_and_b32 s16, s2, 7\ns_lshr_b32 s17, s2, 3\ns_lshr_b32 s18, s17, 3\ns_lshl_b32 s16, s16, 2\ns_add_u32 s16, s16, s18\ns_and_b32 s17, s17, 7")
    k("v_lshrrev_b32 v2, 6, v0\nv_and_b32 v1, 63, v0")
    k("v_readfirstlane_b32 s18, v2")
    k("v_lshlrev_b32 v3, 4, v1")
    k("v_and_b32 v4, 31, v1\nv_lshrrev_b32 v5, 5, v1")
    k("s_and_b32 s19, s18, 1\ns_lshr_b32 s20, s18, 1")
    k("s_lshl_b32 s21, s17, 1\ns_add_u32 s21, s21, s19")
    k("s_lshl_b32 s22, s16, 1\ns_add_u32 s23, s22, s19\ns_add_u32 s22, s22, s20")
    k(f"s_mul_i32 s24, s21, {KS*1024}\ns_add_u32 s24, s24, {WB:#x}")
    k(f"s_mul_i32 s25, s23, {KS*1024}\ns_add_u32 s25, s25, {XB:#x}")
    k("s_cmp_eq_u32 s20, 0\ns_cselect_b32 s24, s24, s25")
    k("s_lshl_b32 s26, s18, 12")
    if epi == 'w2':
        for g, sh in enumerate((1,-1,2,-2)):
            k(f"v_add_u32 v10, {-sh & 0xffffffff:#x}, v4" if sh>0 else f"v_add_u32 v10, {-sh}, v4")
            k("v_ashrrev_i32 v11, 5, v10")
            k("v_and_b32 v12, 31, v10")
            k("v_lshl_add_u32 v12, v5, 5, v12\nv_lshlrev_b32 v12, 4, v12")
            k(f"v_mul_i32_i24 v13, {KS*1024}, v11")
            k("v_add_u32 v12, v12, v13")
            k("v_add_u32 v11, s23, v11")
            k("v_cmp_gt_u32 vcc, 64, v11")
            k(f"v_add_u32 v12, {KS*1024}, v12")
            k("v_mov_b32 v13, 0x80000000")
            k(f"v_cndmask_b32 v{6+g}, v13, v12, vcc")
        k(f"v_add_u32 v12, {KS*1024}, v3")
        k("s_cmp_eq_u32 s20, 0\ns_cselect_b64 vcc, -1, 0")
        for g in range(4): k(f"v_cndmask_b32 v{6+g}, v{6+g}, v12, vcc")
        k(f"s_sub_u32 s24, s24, {KS*1024}")
    k("s_waitcnt lgkmcnt(0)")
    k("s_lshl_b32 s27, s22, 15\ns_lshl_b32 s28, s21, 11\ns_add_u32 s27, s27, s28")
    k("v_lshlrev_b32 v14, 10, v4\nv_lshl_add_u32 v14, v5, 4, v14")
    k("s_lshl_b32 s29, s22, 15\ns_lshl_b32 s28, s21, 6\ns_add_u32 s29, s29, s28")
    k("v_lshlrev_b32 v15, 7, v4\nv_lshl_add_u32 v15, v5, 6, v15")
    k("s_lshl_b32 s30, s22, 12")
    E0=112
    npre = 0
    def ldstats(base, d):
        k(f"s_add_u32 s31, s30, {base:#x}")
        for i in range(4): k(f"buffer_load_dwordx4 {vr(d+4*i)}, v15, s[4:7], s31 offen offset:{16*i}")
        return 4
    def ldtile(base, d):
        k(f"s_add_u32 s31, s27, {base:#x}")
        for i in range(2): k(f"buffer_load_dwordx4 {vr(d+4*i)}, v3, s[4:7], s31 offen offset:{1024*i}")
        return 2
    if epi == 'wo':
        for i in range(2): k(f"buffer_load_dwordx4 {vr(E0+4*i)}, v14, s[8:11], s29 offen offset:{32*i}")
    elif epi == 'w1':
        ldstats(HS, E0)
        k(f"v_lshlrev_b32 v10, 5, v5\ns_lshl_b32 s31, s21, 7\ns_add_u32 s31, s31, {CS1:#x}")
        for i in range(4): k(f"buffer_load_dwordx4 {vr(E0+16+4*i)}, v10, s[4:7], s31 offen offset:{(i>>1)*64+(i&1)*16}")
    elif epi == 'w2':
        ldstats(HS, E0); ldtile(HF, E0+16)
    elif epi == 'w4':
        ldtile(X1F, E0); ldtile(HF, E0+8)
    NS = (KS+3)//4
    def nld(s): return min(4, KS-4*s)
    def issue(s):
        k(f"s_add_u32 m0, s26, {(s%R)*16384}")
        k(f"s_add_u32 s31, s24, {s*4096}")
        vo = f"v{6+s//2}" if epi=='w2' else "v3"
        for i in range(nld(s)): k(f"buffer_load_dwordx4 {vo}, s[4:7], s31 offen offset:{1024*i} lds")
    first = min(NS, R-1) if NS > R else NS
    for s in range(first): issue(s)
    issued = first
    k("s_lshl_b32 s32, s19, 12\ns_lshl_b32 s33, s20, 12\ns_add_u32 s33, s33, 8192")
    k("v_add_u32 v16, s32, v3\nv_add_u32 v17, s33, v3")
    k("v_add_u32 v18, 0x10000, v16\nv_add_u32 v19, 0x10000, v17\nv_add_u32 v20, 0x20000, v16\nv_add_u32 v21, 0x20000, v17")
    ACC=32; FR=[48,80]
    for r in range(16): k(f"v_mov_b32 v{ACC+r}, 0")
    def mfmas(s):
        f = FR[s%2]
        for i in range(nld(s)):
            k(f"v_mfma_f32_32x32x16_bf16 {vr(ACC,16)}, {vr(f+8*i)}, {vr(f+8*i+4)}, {vr(ACC,16)}")
    for s in range(NS):
        out = sum(nld(t) for t in range(s+1, issued))
        k(f"s_waitcnt vmcnt({out}) lgkmcnt(0)")
        k("s_barrier")
        if issued < NS: issue(issued); issued += 1
        f = FR[s%2]; off = (s%R)*16384; hi = off >> 16; off &= 0xffff
        for i in range(nld(s)):
            k(f"ds_read_b128 {vr(f+8*i)}, v{16+2*hi} offset:{off+1024*i}")
            k(f"ds_read_b128 {vr(f+8*i+4)}, v{17+2*hi} offset:{off+1024*i}")
        if s > 0: mfmas(s-1)
    k("s_waitcnt lgkmcnt(0)")
    mfmas(NS-1)
    T=48
    k(f"s_mov_b32 s34, {ONES:#x}")
    if epi in ('w1','w2'):
        sum_partials(k, E0, 22)
        stats_from_sums(k, E0, E0+1, 23, 24, 22)
    if epi == 'w1':
        k(f"v_mul_f32 v22, v24, v24\nv_mul_f32 v22, v22, v{E0+1}\nv_add_f32 v22, {fhex(EPS)}, v22\nv_rsq_f32 v22, v22\ns_nop 0\nv_mul_f32 v24, v24, v22")
        k(f"s_mov_b32 s35, {fhex(GA)}\nv_mov_b32 v25, {fhex(GB)}")
    k("s_nop 15")
    def sttile(base, p):
        k(f"s_add_u32 s31, s27, {base:#x}")
        for i in range(2): k(f"buffer_store_dwordx4 {vr(p+4*i)}, v3, s[4:7], s31 offen offset:{1024*i}")
    def ststats(base, p):
        part_stats(k, p, 26, 22, 34)
        k(f"s_lshl_b32 s31, s21, 3\ns_add_u32 s31, s31, s30\ns_add_u32 s31, s31, {base:#x}")
        k("v_lshlrev_b32 v22, 7, v4")
        k("buffer_store_dwordx2 v[26:27], v22, s[4:7], s31 offen")
    if epi == 'wo':
        unpack8(k, E0, T)
        for r in range(16): k(f"v_add_f32 v{ACC+r}, v{ACC+r}, v{T+r}")
        pack16(k, ACC, T+16); sttile(HF, T+16); ststats(HS, T+16)
    elif epi == 'w1':
        for r in range(16): k(f"v_fma_f32 v{ACC+r}, -v23, v{E0+16+r}, v{ACC+r}")
        for r in range(16): k(f"v_mul_f32 v{ACC+r}, v24, v{ACC+r}")
        gelu16(k, ACC, T, 35, 25)
        pack16(k, ACC, T+16); sttile(GF, T+16)
    elif epi == 'w2':
        unpack8(k, E0+16, T)
        for r in range(16): k(f"v_sub_f32 v{T+r}, v{T+r}, v23")
        for r in range(16): k(f"v_fma_f32 v{ACC+r}, v{T+r}, v24, v{ACC+r}")
        pack16(k, ACC, T+16); sttile(X1F, T+16); ststats(X1S, T+16)
    elif epi == 'w4':
        unpack8(k, E0, T); unpack8(k, E0+8, T+16)
        for r in range(16): k(f"v_add_f32 v{ACC+r}, v{ACC+r}, v{T+r}")
        for r in range(16): k(f"v_add_f32 v{ACC+r}, v{ACC+r}, v{T+16+r}")
        pack16(k, ACC, T+32)
        for i in range(2): k(f"buffer_store_dwordx4 {vr(T+32+4*i)}, v14, s[8:11], s29 offen offset:{32*i}")
    k.label(done)
    k("s_endpgm")
    return k

def gen_gemmE(name, epi):
    k = Kern(name, vgpr=256, sgpr=64)
    done = f"L_{name}_done"
    qkv = epi == 'qkv'
    WB = WQKVF if qkv else W3F
    XB = XF if qkv else X1F
    k(f"s_cmp_ge_u32 s2, {256 if qkv else 240}\ns_cbranch_scc1 {done}")
    srd_ws(k, 4)
    k("s_and_b32 s16, s2, 7\ns_lshr_b32 s17, s2, 3\ns_and_b32 s18, s17, 1\ns_lshl_b32 s16, s16, 1\ns_add_u32 s16, s16, s18\ns_lshr_b32 s17, s17, 1")
    k("v_lshrrev_b32 v2, 6, v0\nv_and_b32 v1, 63, v0")
    k("v_readfirstlane_b32 s18, v2")
    k("v_lshlrev_b32 v3, 4, v1")
    k("v_and_b32 v4, 31, v1\nv_lshrrev_b32 v5, 5, v1")
    k("s_lshl_b32 s22, s16, 2\ns_add_u32 s22, s22, s18")
    if qkv: k("s_mov_b32 s19, s17\ns_add_u32 s20, s17, 16\ns_add_u32 s21, s17, 32")
    else: k("s_mul_i32 s19, s17, 3\ns_add_u32 s20, s19, 1\ns_add_u32 s21, s19, 2")
    k("s_lshl_b32 s26, s18, 10")
    for b in range(3):
        k(f"s_lshl_b32 s{36+b}, s{19+b}, 15\ns_add_u32 s{36+b}, s{36+b}, s26\ns_add_u32 s{36+b}, s{36+b}, {WB:#x}")
    k(f"s_lshl_b32 s24, s22, 15\ns_add_u32 s24, s24, {XB:#x}")
    k("s_waitcnt lgkmcnt(0)")
    XR=128; ACC=32; FR=[80,104]
    E0=8
    if qkv:
        k(f"v_lshlrev_b32 v6, 3, v4\ns_lshl_b32 s31, s22, 8\ns_add_u32 s31, s31, {XS:#x}")
        k(f"buffer_load_dwordx2 v[8:9], v6, s[4:7], s31 offen")
    else:
        k("v_lshlrev_b32 v6, 7, v4\nv_lshl_add_u32 v6, v5, 6, v6")
        k(f"s_lshl_b32 s31, s22, 12\ns_add_u32 s31, s31, {X1S:#x}")
        for i in range(4): k(f"buffer_load_dwordx4 {vr(E0+4*i)}, v6, s[4:7], s31 offen offset:{16*i}")
    for s in range(8):
        for b in range(3):
            k(f"s_add_u32 m0, s26, {b*32768+s*4096}")
            k(f"s_add_u32 s31, s{36+b}, {s*4096}")
            k(f"buffer_load_dwordx4 v3, s[4:7], s31 offen lds")
        k(f"s_add_u32 s31, s24, {s*4096}")
        for i in range(4): k(f"buffer_load_dwordx4 {vr(XR+16*s+4*i)}, v3, s[4:7], s31 offen offset:{1024*i}")
    k("v_add_u32 v24, 0x8000, v3\nv_add_u32 v25, 0x10000, v3")
    la = [3,24,25]
    for r in range(48): k(f"v_mov_b32 v{ACC+r}, 0")
    def reads(hs):
        f = FR[hs%2]
        for i in range(2):
            for b in range(3): k(f"ds_read_b128 {vr(f+12*i+4*b)}, v{la[b]} offset:{(hs*2+i)*1024}")
    def mfmas(hs):
        f = FR[hs%2]
        for i in range(2):
            x = XR+4*(2*hs+i)
            for b in range(3):
                w = f+12*i+4*b
                A,B = (x,w) if (qkv and b==2) else (w,x)
                k(f"v_mfma_f32_32x32x16_bf16 {vr(ACC+16*b,16)}, {vr(A)}, {vr(B)}, {vr(ACC+16*b,16)}")
    for hs in range(16):
        if hs%2==0:
            k(f"s_waitcnt vmcnt({7*(7-hs//2)})")
            k("s_barrier")
        reads(hs)
        if hs>0:
            k("s_waitcnt lgkmcnt(6)")
            mfmas(hs-1)
    k("s_waitcnt lgkmcnt(0)")
    mfmas(15)
    CS = CSQKV if qkv else CS3
    C0=128
    k("v_lshlrev_b32 v6, 5, v5")
    k("s_nop 7")
    for b in range(3):
        k(f"s_lshl_b32 s31, s{19+b}, 7\ns_add_u32 s31, s31, {CS:#x}")
        if qkv and b==2:
            k("v_and_b32 v26, 0x13, v4\nv_and_b32 v27, 4, v4\nv_lshl_add_u32 v26, v27, 1, v26\nv_and_b32 v27, 8, v4\nv_lshrrev_b32 v27, 1, v27\nv_add_u32 v26, v26, v27\nv_lshlrev_b32 v26, 2, v26")
            k(f"buffer_load_dword v{C0+32}, v26, s[4:7], s31 offen")
        else:
            for i in range(4): k(f"buffer_load_dwordx4 {vr(C0+16*b+4*i)}, v6, s[4:7], s31 offen offset:{(i>>1)*64+(i&1)*16}")
    if not qkv: sum_partials(k, E0, 26)
    stats_from_sums(k, E0, E0+1, 27, 28, 26)
    T=192
    if qkv:
        k("s_barrier")
        k("v_lshlrev_b32 v29, 2, v4\nv_add_u32 v29, s26, v29")
        k("ds_write_b32 v29, v27\nds_write_b32 v29, v28 offset:128")
        k("v_lshlrev_b32 v29, 4, v5\nv_add_u32 v29, s26, v29")
        k("s_waitcnt lgkmcnt(0)")
        for a in range(4): k(f"ds_read_b128 {vr(T+4*a)}, v29 offset:{32*a}\nds_read_b128 {vr(T+16+4*a)}, v29 offset:{128+32*a}")
        k(f"v_mul_f32 v30, {fhex(0.25*LOG2E)}, v28")
        k("s_waitcnt vmcnt(0) lgkmcnt(0)")
        for b in range(2):
            for r in range(16): k(f"v_fma_f32 v{ACC+16*b+r}, -v27, v{C0+16*b+r}, v{ACC+16*b+r}")
            for r in range(16): k(f"v_mul_f32 v{ACC+16*b+r}, v{30 if b==0 else 28}, v{ACC+16*b+r}")
            pack16(k, ACC+16*b, 80+8*b)
            k(f"s_lshl_b32 s31, s17, 17\ns_lshl_b32 s32, s22, 10\ns_add_u32 s31, s31, s32\ns_add_u32 s31, s31, {(QF if b==0 else KF):#x}\ns_add_u32 s32, s31, 0x10000")
            k(f"buffer_store_dwordx4 {vr(80+8*b)}, v3, s[4:7], s31 offen")
            k(f"buffer_store_dwordx4 {vr(84+8*b)}, v3, s[4:7], s32 offen")
        for r in range(16): k(f"v_fma_f32 v{ACC+32+r}, -v{T+r}, v{C0+32}, v{ACC+32+r}")
        for r in range(16): k(f"v_mul_f32 v{ACC+32+r}, v{T+16+r}, v{ACC+32+r}")
        pack16(k, ACC+32, 96)
        k("v_lshrrev_b32 v26, 4, v4\nv_lshlrev_b32 v26, 16, v26\nv_and_b32 v29, 15, v4\nv_lshl_add_u32 v26, v29, 4, v26\nv_lshl_add_u32 v26, v5, 8, v26")
        k(f"s_lshl_b32 s31, s17, 17\ns_lshl_b32 s32, s22, 10\ns_add_u32 s31, s31, s32\ns_add_u32 s31, s31, {VF:#x}")
        k(f"buffer_store_dwordx4 {vr(96)}, v26, s[4:7], s31 offen")
        k(f"buffer_store_dwordx4 {vr(100)}, v26, s[4:7], s31 offen offset:512")
    else:
        k(f"s_mov_b32 s35, {fhex(GA)}\nv_mov_b32 v25, {fhex(GB)}")
        k("s_waitcnt vmcnt(0)")
        for b in range(3):
            if b==1: k(f"s_cmp_ge_u32 s20, 43\ns_cbranch_scc1 {done}")
            for r in range(16): k(f"v_fma_f32 v{ACC+16*b+r}, -v27, v{C0+16*b+r}, v{ACC+16*b+r}")
            for r in range(16): k(f"v_mul_f32 v{ACC+16*b+r}, v28, v{ACC+16*b+r}")
            gelu16(k, ACC+16*b, T, 35, 25)
            pack16(k, ACC+16*b, 80+8*b)
            k(f"s_mul_i32 s31, s22, {86*1024}\ns_lshl_b32 s32, s{19+b}, 11\ns_add_u32 s31, s31, s32\ns_add_u32 s31, s31, {UF:#x}")
            for i in range(2): k(f"buffer_store_dwordx4 {vr(80+8*b+4*i)}, v3, s[4:7], s31 offen offset:{1024*i}")
    k.label(done)
    k("s_endpgm")
    return k

def gen_attn(NST=4, force_slow=False):
    k = Kern("attn_kernel", vgpr=256, sgpr=64)
    done = "L_attn_done"
    k(f"s_cmp_ge_u32 s2, 256\ns_cbranch_scc1 {done}")
    srd_ws(k, 4)
    k("s_and_b32 s16, s2, 7\ns_lshr_b32 s17, s2, 3\ns_lshr_b32 s18, s17, 3\ns_lshl_b32 s16, s16, 2\ns_add_u32 s16, s16, s18\ns_and_b32 s17, s17, 7")
    k("v_lshrrev_b32 v2, 6, v0\nv_and_b32 v1, 63, v0")
    k("v_readfirstlane_b32 s18, v2")
    k("v_lshlrev_b32 v3, 4, v1")
    k("v_and_b32 v4, 31, v1\nv_lshrrev_b32 v5, 5, v1")
    k("s_lshl_b32 s19, s17, 2\ns_add_u32 s19, s19, s18")
    k("s_lshl_b32 s20, s19, 16")
    k(f"v_add_u32 v6, {KF:#x}, v3")
    k(f"v_and_b32 v7, 15, v4\nv_lshlrev_b32 v7, 4, v7\nv_lshl_add_u32 v7, v5, 8, v7\nv_add_u32 v7, {VF:#x}, v7")
    k("s_mov_b32 s22, 0x0000ffff\ns_mov_b32 s23, 0x0000ffff")
    QA=8; QB=12; C=16; S=[32,48]; P=[64,72]; O=[80,96]; KR=112; VR=KR+4*NST
    k("s_lshl_b32 s21, s16, 11\ns_add_u32 s21, s21, s20")
    for r in range(8*NST): k(f"v_mov_b32 v{VR+r}, {ONES:#x}")
    k("s_waitcnt lgkmcnt(0)")
    k(f"buffer_load_dwordx4 {vr(QA)}, v3, s[4:7], s21 offen")
    k(f"buffer_load_dwordx4 {vr(QB)}, v3, s[4:7], s21 offen offset:1024")
    def ldtile(st, soff, off):
        k(f"buffer_load_dwordx4 {vr(KR+4*st)}, v6, s[4:7], {soff} offen offset:{off}")
        k("s_mov_b64 exec, s[22:23]")
        k(f"buffer_load_dwordx4 {vr(VR+8*st)}, v7, s[4:7], {soff} offen offset:{off}")
        k(f"buffer_load_dwordx4 {vr(VR+8*st+4)}, v7, s[4:7], {soff} offen offset:{off+512}")
        k("s_mov_b64 exec, -1")
    assert NST == 4
    for st in range(NST): ldtile(st, "s20", st*1024)
    for r in range(32): k(f"v_mov_b32 v{O[0]+r}, 0")
    k(f"s_waitcnt vmcnt({3*NST-1})")
    k(f"v_mfma_f32_32x32x16_bf16 {vr(S[0],16)}, {vr(KR)}, {vr(QA)}, 0")
    k(f"v_mfma_f32_32x32x16_bf16 {vr(S[1],16)}, {vr(KR)}, {vr(QB)}, 0")
    k("s_nop 15")
    k(f"v_max_f32 v{C}, v{S[0]}, v{S[0]+1}")
    for r in range(2,32,2): k(f"v_max3_f32 v{C}, v{C}, v{S[0]+r}, v{S[0]+r+1}")
    k(f"v_mov_b32 v{C+1}, v{C}\ns_nop 1\nv_permlane32_swap_b32 v{C}, v{C+1}\ns_nop 0\nv_max_f32 v{C}, v{C}, v{C+1}")
    k(f"v_sub_f32 v{C}, 0, v{C}")
    for r in range(1,16): k(f"v_mov_b32 v{C+r}, v{C}")
    k("s_add_u32 s24, s20, 4096")
    k("s_mov_b32 s25, 16")
    k(f"s_waitcnt vmcnt({3*NST-3})")
    k(f"v_mfma_f32_32x32x16_bf16 {vr(S[0],16)}, {vr(KR)}, {vr(QA)}, {vr(C,16)}")
    for r in range(4,8): k(f"v_mov_b32 v{P[1]+r}, 0")
    k("s_nop 7")
    k.L.append(".p2align 6")
    k.label("L_attn_loop")
    def half(X, st, pre, mid):
        s = S[X]; p = P[X]
        for ln in pre: k(ln)
        for j in range(8):
            k(f"v_exp_f32 v{s+2*j}, v{s+2*j}")
            k(f"v_exp_f32 v{s+2*j+1}, v{s+2*j+1}")
            if j>=1: k(f"v_cvt_pk_bf16_f32 v{p+j-1}, v{s+2*j-2}, v{s+2*j-1}")
            if j==1:
                for ln in mid: k(ln)
            if j==5: k(f"v_mfma_f32_32x32x16_bf16 {vr(O[X],16)}, {vr(VR+8*st)}, {vr(p)}, {vr(O[X],16)}")
        k("s_nop 0")
        k(f"v_cvt_pk_bf16_f32 v{p+7}, v{s+14}, v{s+15}")
    for st in range(NST):
        pst = (st-1) % NST
        pre = [f"v_mfma_f32_32x32x16_bf16 {vr(S[1],16)}, {vr(KR+4*st)}, {vr(QB)}, {vr(C,16)}"]
        mid = [f"v_mfma_f32_32x32x16_bf16 {vr(O[1],16)}, {vr(VR+8*pst+4)}, {vr(P[1]+4)}, {vr(O[1],16)}"]
        half(0, st, pre, mid)
        if st == 0:
            k("s_sub_u32 s26, s24, 4096")
            off, so = 3072, "s26"
        else:
            off, so = (st-1)*1024, "s24"
        ldtile(pst, so, off)
        nst = (st+1) % NST
        k(f"s_waitcnt vmcnt({3*(NST-2)})")
        pre = [f"v_mfma_f32_32x32x16_bf16 {vr(S[0],16)}, {vr(KR+4*nst)}, {vr(QA)}, {vr(C,16)}"]
        mid = [f"v_mfma_f32_32x32x16_bf16 {vr(O[0],16)}, {vr(VR+8*st+4)}, {vr(P[0]+4)}, {vr(O[0],16)}"]
        half(1, st, pre, mid)
    k("s_add_u32 s24, s24, 4096\ns_sub_u32 s25, s25, 1\ns_cmp_lg_u32 s25, 0\ns_cbranch_scc1 L_attn_loop")
    k("s_nop 1")
    k(f"v_mfma_f32_32x32x16_bf16 {vr(O[1],16)}, {vr(VR+8*(NST-1)+4)}, {vr(P[1]+4)}, {vr(O[1],16)}")
    k("s_nop 15")
    k(f"v_mov_b32 v{S[0]}, 0")
    for X in range(2):
        for r in range(8): k(f"v_fma_f32 v{S[0]}, v{O[X]+r}, 0, v{S[0]}")
    k(f"v_min_f32 v{S[0]+1}, v{O[0]+8}, v{O[1]+8}\nv_max_f32 v{S[0]+2}, v{O[0]+8}, v{O[1]+8}")
    k(f"v_fma_f32 v{S[0]}, v{O[0]+8}, 0, v{S[0]}\nv_fma_f32 v{S[0]}, v{O[1]+8}, 0, v{S[0]}")
    k(f"v_cmp_u_f32 vcc, v{S[0]}, v{S[0]}")
    k(f"s_mov_b32 s28, {fhex(2.0**-30)}\ns_mov_b32 s29, {fhex(2.0**30)}")
    k(f"v_cmp_gt_f32 s[30:31], s28, v{S[0]+1}")
    k(f"v_cmp_lt_f32 s[32:33], s29, v{S[0]+2}")
    k("s_or_b64 vcc, vcc, s[30:31]\ns_or_b64 vcc, vcc, s[32:33]")
    if force_slow: k("s_branch L_attn_slow")
    k("s_cbranch_vccnz L_attn_slow")
    k.label("L_attn_fin")
    k(f"s_lshl_b32 s26, s16, 16\ns_lshl_b32 s27, s19, 10\ns_add_u32 s26, s26, s27\ns_add_u32 s26, s26, {OF:#x}\ns_add_u32 s27, s26, 0x8000")
    for X in range(2):
        k(f"v_rcp_f32 v{S[0]}, v{O[X]+8}\ns_nop 0")
        for r in range(8): k(f"v_mul_f32 v{O[X]+r}, v{O[X]+r}, v{S[0]}")
        for r in range(4): k(f"v_cvt_pk_bf16_f32 v{P[X]+r}, v{O[X]+2*r}, v{O[X]+2*r+1}")
        k(f"buffer_store_dwordx4 {vr(P[X])}, v3, s[4:7], s{26+X} offen")
    k.label(done)
    k("s_endpgm")
    k.label("L_attn_slow")
    k("s_waitcnt vmcnt(0)")
    M=[C, C+1]; TM=C+2; TT=C+3; AL=C+4
    for X in range(2): k(f"v_mov_b32 v{M[X]}, {fhex(-3.0e38)}")
    for r in range(32): k(f"v_mov_b32 v{O[0]+r}, 0")
    k("s_mov_b32 s24, s20\ns_mov_b32 s25, 64")
    k.label("L_attn_sloop")
    ldtile(0, "s24", 0)
    k("s_waitcnt vmcnt(0)")
    for X in range(2):
        s = S[X]; p = P[X]
        k(f"v_mfma_f32_32x32x16_bf16 {vr(s,16)}, {vr(KR)}, {vr([QA,QB][X])}, 0")
        k("s_nop 15")
        k(f"v_max_f32 v{TM}, v{s}, v{s+1}")
        for r in range(2,16,2): k(f"v_max3_f32 v{TM}, v{TM}, v{s+r}, v{s+r+1}")
        k(f"v_mov_b32 v{TT}, v{TM}\ns_nop 1\nv_permlane32_swap_b32 v{TM}, v{TT}\ns_nop 0\nv_max3_f32 v{TM}, v{TM}, v{TT}, v{M[X]}")
        k(f"v_sub_f32 v{AL}, v{M[X]}, v{TM}\nv_exp_f32 v{AL}, v{AL}\nv_mov_b32 v{M[X]}, v{TM}")
        for r in range(16): k(f"v_mul_f32 v{O[X]+r}, v{O[X]+r}, v{AL}")
        for r in range(16): k(f"v_sub_f32 v{s+r}, v{s+r}, v{TM}")
        for r in range(16): k(f"v_exp_f32 v{s+r}, v{s+r}")
        k("s_nop 0")
        for r in range(8): k(f"v_cvt_pk_bf16_f32 v{p+r}, v{s+2*r}, v{s+2*r+1}")
        k("s_nop 1")
        k(f"v_mfma_f32_32x32x16_bf16 {vr(O[X],16)}, {vr(VR)}, {vr(p)}, {vr(O[X],16)}")
        k(f"v_mfma_f32_32x32x16_bf16 {vr(O[X],16)}, {vr(VR+4)}, {vr(p+4)}, {vr(O[X],16)}")
    k("s_nop 15")
    k("s_add_u32 s24, s24, 1024\ns_sub_u32 s25, s25, 1\ns_cmp_lg_u32 s25, 0\ns_cbranch_scc1 L_attn_sloop")
    k("s_branch L_attn_fin")
    return k

if __name__ == "__main__":
    out = sys.argv[1]
    force_slow = len(sys.argv) > 2 and sys.argv[2] == 'slow'
    ks = [gen_prep(), gen_gemmE("qkv_kernel", 'qkv'), gen_attn(force_slow=force_slow),
          gen_gemmL("wo_kernel", 32, WOF, OF, 'wo', 8), gen_gemmL("w1_kernel", 32, W1F, HF, 'w1', 8),
          gen_gemmL("w2_kernel", 32, W2F, GF, 'w2', 8), gen_gemmE("w3_kernel", 'w3'),
          gen_gemmL("w4_kernel", 86, W4F, UF, 'w4', 9)]
    launches = [("prep_kernel",251,256,4096),("qkv_kernel",256,256,98304),("attn_kernel",256,256,0),
                ("wo_kernel",256,256,131072),("w1_kernel",256,256,131072),("w2_kernel",256,256,131072),
                ("w3_kernel",240,256,98304),("w4_kernel",256,256,147456)]
    emit(out, launches, ks)
```

```python
import re, struct
from asmlib import vr, ar, sr, f2u, fhex, HEADER

TRANS = ("v_exp_", "v_log_", "v_rcp_", "v_rsq_", "v_sqrt_", "v_sin_", "v_cos_")
def regs_of(tok):
    tok = tok.strip().lstrip('-').strip('|')
    m = re.fullmatch(r"([vas])\[(\d+):(\d+)\]", tok)
    if m: return [(m.group(1), i) for i in range(int(m.group(2)), int(m.group(3))+1)]
    m = re.fullmatch(r"([vas])(\d+)", tok)
    if m: return [(m.group(1), int(m.group(2)))]
    if tok in ("vcc",): return [("s","vcc")]
    if tok in ("m0",): return [("s","m0")]
    if tok in ("exec",): return [("s","exec")]
    return []
class I:
    def __init__(s, text):
        s.text = text
        t = text.split(";")[0].strip()
        p = t.split(None, 1)
        s.op = p[0]
        rest = p[1] if len(p) > 1 else ""
        toks = [x.strip() for x in rest.split(",")]
        ops = []
        for x in toks:
            w = x.split()
            if w: ops.append(w[0])
        s.mods = rest
        op = s.op
        s.kind = None; s.w = []; s.r = []
        R = [regs_of(x) for x in ops]
        flat = lambda L: [y for x in L for y in x]
        if op.startswith("v_mfma"):
            s.kind = "mfma"; s.D, s.A, s.B, s.C = R[0], R[1], R[2], R[3]
            s.w = s.D; s.r = s.A + s.B + s.C
            s.passes = 8 if "32x32x16" in op else 4
        elif op.startswith("v_"):
            s.kind = "valu"
            if "permlane" in op and "swap" in op: s.w = R[0]+R[1]; s.r = R[0]+R[1]
            else:
                s.w = list(R[0]); s.r = flat(R[1:])
                if op.startswith(("v_add_co","v_sub_co","v_addc_co")): s.w += R[1]; s.r = flat(R[2:])
                if op.startswith(("v_fmac","v_dot2c","v_pk_fmac")) : s.r += R[0]
                if op.startswith("v_cndmask") and len(ops) == 3: s.r.append(("s","vcc"))
            s.trans = op.startswith(TRANS); s.dot = op.startswith("v_dot")
            s.dpp = "_dpp" in op or "row_" in rest or "quad_perm" in rest
        elif op.startswith(("buffer_load","global_load")):
            s.kind = "vmem"
            if re.search(r"\blds\b", rest): s.lds = True; s.r = flat(R) + [("s","m0")]
            else: s.lds = False; s.w = R[0]; s.r = flat(R[1:])
        elif op.startswith(("buffer_store","global_store","buffer_atomic","global_atomic")):
            s.kind = "vmem"; s.lds = False; s.r = flat(R); s.store = True
            s.data = R[0] if op.startswith("buffer") else R[1]
            s.wide = "x3" in op or "x4" in op
        elif op.startswith("ds_read"):
            s.kind = "ds"; s.w = R[0]; s.r = flat(R[1:])
        elif op.startswith("ds_"):
            s.kind = "ds"; s.r = flat(R)
        elif op.startswith("s_"):
            s.kind = "salu"
            if op.startswith(("s_cmp","s_cbranch","s_branch","s_waitcnt","s_nop","s_barrier","s_endpgm","s_sleep","s_setprio","s_bitcmp")): s.r = flat(R)
            else:
                s.w = list(R[0]) if R else []; s.r = flat(R[1:])
        else:
            raise ValueError("unknown instr " + text)
        s.ws = 1
        if op == "s_nop": s.ws = int(ops[0]) + 1
def need(p, c):
    n = 0
    pw = set(p.w); cr = set(c.r); cw = set(c.w)
    if p.kind == "valu":
        vw = {x for x in pw if x[0] in "va"}; sw = {x for x in pw if x[0] == "s"}
        if c.kind == "mfma" and vw & cr: n = max(n, 3 if p.dot else 2)
        if c.kind == "valu":
            if p.trans and not c.trans and vw & cr: n = max(n, 1)
            if ("permlane" in c.op or c.dpp) and vw & cr: n = max(n, 2)
            if c.op.startswith(("v_readfirstlane","v_readlane")) and vw & cr: n = max(n, 1)
            if sw & cr: n = max(n, 2)
        if p.dot and (vw & (cr | cw)):
            if c.kind == "valu" and c.op == p.op:
                ops = [x for x in c.r]
                t = c.text.split(None,1)[1].split(",")
                ab = set(regs_of(t[1].split()[0]) + regs_of(t[2].split()[0]))
                if vw & ab: n = max(n, 3)
            else: n = max(n, 3)
        if c.kind == "vmem" and sw & cr: n = max(n, 5)
        if ("s","exec") in sw and c.kind == "mfma": n = max(n, 4)
    if p.kind == "mfma":
        D = set(p.D); big = 12 if p.passes == 8 else 8
        if c.kind == "mfma":
            if D & set(c.A + c.B): n = max(n, big)
            if D & set(c.C):
                if not (c.C == p.D and c.passes == p.passes): n = max(n, big - 2)
            elif D & set(c.D): n = max(n, big - 2)
        elif c.kind in ("valu","vmem","ds"):
            if D & (cr | cw): n = max(n, big)
        if c.kind == "valu" and set(p.C) & cw: n = max(n, 7 if p.passes == 8 else 3)
    if p.kind == "salu" and ("s","m0") in pw and c.kind in ("vmem",) and getattr(c,"lds",False): n = max(n, 1)
    if p.kind == "vmem" and getattr(p,"store",False) and p.wide and set(p.data) & cw: n = max(n, 2)
    return n

class Kern:
    def __init__(self, name, vgpr=256, sgpr=102, accum=None):
        self.name = name; self.L = []; self.vgpr = vgpr; self.sgpr = sgpr; self.accum = accum
        self.nlab = 0; self.vmq = []; self.tail = []
    def __call__(self, s, tag=None):
        for ln in s.split("\n"):
            ln = ln.strip()
            if ln:
                self.L.append("    " + ln)
                if ln.startswith(("buffer_","global_")): self.vmq.append(tag)
    def label(self, l): self.L.append(f"{l}:")
    def newlabel(self, p="L"):
        self.nlab += 1
        return f"{p}_{self.name}_{self.nlab}"
    def vmn(self, tag):
        idx = max(i for i, t in enumerate(self.vmq) if t == tag)
        return len(self.vmq) - 1 - idx
    def waitvm(self, tag, extra=""):
        n = min(63, self.vmn(tag))
        self(f"s_waitcnt vmcnt({n}) {extra}".strip())
    def fix(self, verbose=True):
        out = []; hist = []; ins = 0
        for ln in self.L:
            t = ln.strip()
            if t.endswith(":") or t.startswith("."):
                out.append(ln); continue
            c = I(t)
            d = 0; req = 0
            for p in reversed(hist):
                nd = need(p, c)
                if nd - d > req: req = nd - d; why = p.text
                d += p.ws
                if d >= 20: break
            if req > 0:
                if verbose: print(f"[{self.name}] +{req} ws before '{t}' (after '{why}')")
                ins += 1
                while req > 0:
                    m = min(req, 16)
                    nop = f"s_nop {m-1}"
                    out.append("    " + nop); hist.append(I(nop)); req -= m
            out.append(ln); hist.append(c)
            if len(hist) > 40: hist = hist[-30:]
        self.L = out
        return ins
    def text(self):
        h = f".globl {self.name}\n.p2align 8\n.type {self.name},@function\n{self.name}:\n"
        return h + "\n".join(self.L) + "\n"
    def desc(self):
        acc = self.accum if self.accum is not None else min(256, (self.vgpr + 3) // 4 * 4)
        return f""".p2align 6
.amdhsa_kernel {self.name}
  .amdhsa_next_free_vgpr {self.vgpr}
  .amdhsa_next_free_sgpr {self.sgpr}
  .amdhsa_accum_offset {acc}
  .amdhsa_group_segment_fixed_size 0
  .amdhsa_kernarg_size 88
  .amdhsa_user_sgpr_count 2
  .amdhsa_user_sgpr_kernarg_segment_ptr 1
  .amdhsa_system_sgpr_workgroup_id_x 1
.end_amdhsa_kernel
"""
def emit(path, launches, kerns):
    s = HEADER
    for (k, grid, block, lds) in launches:
        s += f"; @launch kernel={k} grid=({grid},1,1) block=({block},1,1) lds={lds}\n"
    s += '.amdgcn_target "amdgcn-amd-amdhsa--gfx950"\n.text\n'
    for k in kerns: s += k.text()
    s += '.section .rodata,"a"\n'
    for k in kerns: s += k.desc()
    open(path, "w").write(s)
```

```python
import math, sys
from asmlib2 import *

QF=0x000000; KV=0x200000; OF=0x600000; GF=0x800000; HF=0xA00000; X1F=0xC00000; UF=0xE00000
WOF=0x1400000; W1F=0x1480000; W2F=0x1500000; W3F=0x1580000; W4F=0x1700000
STB=0x1880000
DBGOFF=0x1E00000
WS_SZ=0x2000000
ONES=0x3F803F80
EPS=1e-5
LOG2E=1.4426950408889634
GA = -2*LOG2E*math.sqrt(2/math.pi)*0.044715
GB = -2*LOG2E*math.sqrt(2/math.pi)
OPT = dict(stamp=False, slow=False, I0=3, pref=True)

def stamp(k, i):
    if OPT['stamp']: k(f"s_memrealtime s[{k.sb+2*i}:{k.sb+1+2*i}]")
def stamp_out(k, kidx, nst, vt, sw):
    if not OPT['stamp']: return
    k("s_waitcnt vmcnt(0)")
    stamp(k, nst)
    k("s_waitcnt lgkmcnt(0)")
    k(f"s_lshl_b32 s61, s2, 2\ns_add_u32 s60, s{sw}, s61\ns_lshl_b32 s60, s60, 6\ns_add_u32 s60, s60, {DBGOFF+kidx*0x10000:#x}")
    for i in range(16): k(f"v_mov_b32 v{vt+i}, s{k.sb+2*min(i,nst)}")
    k(f"v_mov_b32 v{vt+16}, 0")
    for i in range(4): k(f"buffer_store_dwordx4 v[{vt+4*i}:{vt+4*i+3}], v{vt+16}, s[4:7], s60 offen offset:{16*i}")

def xhalf_add(k, a, t):
    k(f"v_mov_b32 v{t}, v{a}")
    k(f"v_permlane32_swap_b32 v{a}, v{t}")
    k(f"v_add_f32 v{a}, v{a}, v{t}")
def x16_add(k, a, t):
    k(f"v_mov_b32 v{t}, v{a}")
    k(f"v_permlane16_swap_b32 v{a}, v{t}")
    k(f"v_add_f32 v{a}, v{a}, v{t}")
def stats_from_sums(k, s, q, mu, r, t):
    k(f"v_mul_f32 v{mu}, {fhex(1/512)}, v{s}")
    k(f"v_mul_f32 v{q}, {fhex(1/512)}, v{q}")
    k(f"v_fma_f32 v{q}, -v{mu}, v{mu}, v{q}")
    k(f"v_max_f32 v{q}, 0, v{q}")
    k(f"v_add_f32 v{t}, {fhex(EPS)}, v{q}")
    k(f"v_rsq_f32 v{r}, v{t}")
def code_prefetch(k, lab0, lab1, part_sgpr, vt):
    sk = k.newlabel()
    k(f"s_lshl_b32 s64, s{part_sgpr}, 13")
    k(f"s_cmp_ge_u32 s64, {lab1}-{lab0}\ns_cbranch_scc1 {sk}")
    pc = k.newlabel()
    k("s_getpc_b64 s[62:63]")
    k.label(pc)
    k(f"s_add_u32 s62, s62, {lab0}-{pc}\ns_addc_u32 s63, s63, 0")
    k(f"v_lshlrev_b32 v{vt}, 7, v1\nv_add_u32 v{vt}, s64, v{vt}\nv_min_u32 v{vt}, {lab1}-{lab0}-4, v{vt}\nv_mov_b32 v{vt+1}, s63")
    k(f"v_add_co_u32 v{vt}, vcc, s62, v{vt}\nv_addc_co_u32 v{vt+1}, vcc, 0, v{vt+1}, vcc")
    n0 = len(k.vmq)
    k(f"global_load_dword v{vt+2}, v[{vt}:{vt+1}], off")
    del k.vmq[n0:]
    k.label(sk)

SLOT=28928; XOFF=12288; XW=4160; STG=5*SLOT; MUA=STG+16384
def gen_k1():
    k = Kern("qkv_kernel", vgpr=200, sgpr=102); k.sb = 70
    done = "L_k1_done"
    k(f"s_cmp_ge_u32 s2, 256\ns_cbranch_scc1 {done}")
    stamp(k,0)
    k("s_load_dwordx16 s[32:47], s[0:1], 0")
    k("s_load_dwordx2 s[4:5], s[0:1], 80")
    k(f"s_mov_b32 s6, {WS_SZ:#x}\ns_mov_b32 s7, 0x00020000")
    k(f"s_mov_b32 s10, {2048*512*2:#x}\ns_mov_b32 s11, 0x00020000\ns_mov_b32 s14, {512*1536*2:#x}\ns_mov_b32 s15, 0x00020000")
    k("v_lshrrev_b32 v2, 6, v0\nv_and_b32 v1, 63, v0")
    k("s_and_b32 s16, s2, 7\ns_lshr_b32 s19, s2, 3\ns_and_b32 s18, s19, 1\ns_lshl_b32 s16, s16, 1\ns_add_u32 s16, s16, s18\ns_lshr_b32 s17, s19, 1")
    k("v_readfirstlane_b32 s18, v2")
    k("v_lshrrev_b32 v9, 3, v1\nv_and_b32 v10, 7, v1\nv_and_b32 v11, 2, v9\nv_lshlrev_b32 v11, 1, v11\nv_xor_b32 v10, v10, v11")
    k("v_lshlrev_b32 v4, 10, v9\nv_lshl_add_u32 v4, v10, 4, v4")
    for i in range(1,4): k(f"v_add_u32 v{4+i}, {8192*i:#x}, v4")
    k("v_lshrrev_b32 v9, 2, v1\nv_and_b32 v10, 3, v1\nv_mul_u32_u24 v8, 3072, v9\nv_lshl_add_u32 v8, v10, 4, v8")
    k("s_lshl_b32 s22, s16, 2\ns_add_u32 s22, s22, s18")
    k("s_lshl_b32 s24, s22, 15")
    k(f"s_mul_i32 s25, s18, {16*3072}\ns_lshl_b32 s26, s17, 6\ns_add_u32 s25, s25, s26")
    k(f"s_mul_i32 s26, s18, 3072\ns_mul_i32 s27, s18, {XW}\ns_add_u32 s27, s27, {XOFF}")
    if OPT['pref']:
        k("s_lshl_b32 s28, s19, 2\ns_add_u32 s28, s28, s18")
        code_prefetch(k, "L_code_begin", "L_code_end", 28, 196)
    k("s_waitcnt lgkmcnt(0)")
    stamp(k,1)
    k("s_mov_b32 s8, s32\ns_mov_b32 s9, s33\ns_mov_b32 s12, s34\ns_mov_b32 s13, s35")
    def issue(c):
        sl = c % 5
        k(f"s_add_u32 m0, s26, {sl*SLOT}\ns_add_u32 s28, s25, {c*64*3072}")
        for g in range(3): k(f"buffer_load_dwordx4 v8, s[12:15], s28 offen offset:{1024*g} lds", tag=f"c{c}")
        k(f"s_add_u32 s28, s24, {c*128}")
        for i in range(4):
            k(f"s_add_u32 m0, s27, {sl*SLOT+i*1040}")
            k(f"buffer_load_dwordx4 v{4+i}, s[8:11], s28 offen lds", tag=f"c{c}")
    I0 = OPT['I0']
    for c in range(I0): issue(c)
    issued = I0
    k("s_lshl_b32 s29, s2, 2\ns_add_u32 s29, s29, s18")
    SJ = {}
    def decode(r):
        S = 48+4*r
        so, dst, fd, st = 84+4*r, 85+4*r, 86+4*r, 87+4*r
        SJ[r] = (S, so, dst, fd, st)
        k(f"s_mov_b32 s{S+3}, 0x00020000")
        end = k.newlabel()
        def pairmode(v, jstride, base):
            k(f"s_lshr_b32 s30, s{v}, 4\ns_and_b32 s31, s{v}, 15")
            k(f"s_lshl_b32 s{so}, s30, 15\ns_lshl_b32 s{fd}, s31, 6\ns_add_u32 s{so}, s{so}, s{fd}")
            k(f"s_lshr_b32 s{dst}, s31, 1\ns_mul_i32 s{dst}, s{dst}, {jstride}\ns_lshl_b32 s30, s30, 12\ns_add_u32 s{dst}, s{dst}, s30")
            k(f"s_and_b32 s31, s31, 1\ns_lshl_b32 s31, s31, 11\ns_add_u32 s{dst}, s{dst}, s31\ns_add_u32 s{dst}, s{dst}, {base}")
            k(f"s_mov_b32 s{fd}, 1024\ns_mov_b32 s{st}, 1024")
        def w4(off):
            k(f"s_mov_b32 s{S}, s46\ns_mov_b32 s{S+1}, s47\ns_mov_b32 s{S+2}, {1376*512*2:#x}")
            k(f"s_add_u32 s65, s29, {off & 0xffffffff:#x}")
            pairmode(65, 43*4096, f"{W4F:#x}")
        def w3(off):
            k(f"s_mov_b32 s{S}, s44\ns_mov_b32 s{S+1}, s45\ns_mov_b32 s{S+2}, {1376*512*2:#x}")
            k(f"s_add_u32 s65, s29, {off & 0xffffffff:#x}")
            k(f"s_mul_i32 s30, s65, 1525\ns_lshr_b32 s30, s30, 16\ns_mul_i32 s31, s30, 43\ns_sub_u32 s31, s65, s31")
            k(f"s_mul_i32 s{so}, s30, {32*2752}\ns_lshl_b32 s{fd}, s31, 6\ns_add_u32 s{so}, s{so}, s{fd}")
            k(f"s_lshl_b32 s{dst}, s31, 15\ns_lshl_b32 s30, s30, 10\ns_add_u32 s{dst}, s{dst}, s30\ns_add_u32 s{dst}, s{dst}, {W3F:#x}")
            k(f"s_mov_b32 s{fd}, 16384\ns_mov_b32 s{st}, 2752")
        if r == 0:
            l4 = k.newlabel()
            k(f"s_cmp_ge_u32 s29, 768\ns_cbranch_scc1 {l4}")
            k(f"s_lshr_b32 s66, s29, 8")
            k(f"s_cmp_eq_u32 s66, 1\ns_cselect_b32 s{S}, s40, s36\ns_cselect_b32 s{S+1}, s41, s37")
            k(f"s_cmp_eq_u32 s66, 2\ns_cselect_b32 s{S}, s42, s{S}\ns_cselect_b32 s{S+1}, s43, s{S+1}")
            k(f"s_mov_b32 s{S+2}, {512*512*2:#x}")
            k(f"s_and_b32 s65, s29, 255\ns_lshl_b32 s66, s66, 19\ns_add_u32 s66, s66, {WOF:#x}")
            pairmode(65, 65536, "s66")
            k(f"s_branch {end}")
            k.label(l4); w4(-768)
        elif r == 1:
            l3 = k.newlabel()
            k(f"s_cmp_ge_u32 s29, 432\ns_cbranch_scc1 {l3}")
            w4(256); k(f"s_branch {end}")
            k.label(l3); w3(-432)
        else:
            w3(592)
        k.label(end)
    def sj_issue(r, m0expr):
        S, so, dst, fd, st = SJ[r]
        k(f"v_mul_u32_u24 v12, s{st}, v9\nv_lshl_add_u32 v12, v10, 4, v12")
        k(m0expr(0))
        k(f"buffer_load_dwordx4 v12, s[{S}:{S+3}], s{so} offen lds", tag=f"sj{r}")
        k(f"s_lshl_b32 s30, s{st}, 4\ns_add_u32 s30, s30, s{so}")
        k(m0expr(1024))
        k(f"buffer_load_dwordx4 v12, s[{S}:{S+3}], s30 offen lds", tag=f"sj{r}")
    def sj_proc(r, sbase, T):
        S, so, dst, fd, st = SJ[r]
        k(f"v_add_u32 v{T+8}, s{sbase}, v13")
        for b in range(2):
            for a in range(2): k(f"ds_read_b64_tr_b16 {vr(T+4*b+2*a,2)}, v{T+8} offset:{256*a+8*b}")
        k(f"s_add_u32 s30, s{dst}, s{fd}")
        k("s_waitcnt lgkmcnt(0)")
        k(f"buffer_store_dwordx4 {vr(T)}, v3, s[4:7], s{dst} offen", tag="st")
        k(f"buffer_store_dwordx4 {vr(T+4)}, v3, s[4:7], s30 offen", tag="st")
    for r in range(3): decode(r)
    k(f"s_lshl_b32 s67, s18, 12\ns_add_u32 s67, s67, {STG}\ns_add_u32 s68, s67, 2048\ns_add_u32 s69, s27, {3*SLOT}")
    k("v_lshrrev_b32 v13, 4, v1\nv_lshlrev_b32 v13, 3, v13\nv_and_b32 v14, 3, v9\nv_add_u32 v13, v13, v14\nv_lshlrev_b32 v13, 6, v13\nv_lshl_add_u32 v13, v10, 4, v13")
    k("v_lshlrev_b32 v3, 4, v1")
    XA0=16; XA1=19; WA=22
    k("v_and_b32 v14, 31, v1\nv_lshrrev_b32 v15, 5, v1")
    k(f"v_lshrrev_b32 v25, 3, v14\nv_mul_u32_u24 v25, 1040, v25\nv_and_b32 v26, 7, v14\nv_lshl_add_u32 v25, v26, 7, v25\nv_lshl_add_u32 v25, v15, 4, v25\nv_add_u32 v25, s27, v25")
    k(f"v_and_b32 v26, 2, v14\nv_lshlrev_b32 v26, 5, v26\nv_add_u32 v{XA0}, v25, v26\nv_xor_b32 v26, 64, v26\nv_add_u32 v{XA1}, v25, v26")
    k("v_and_b32 v25, 3, v9\nv_lshl_add_u32 v25, v15, 3, v25\nv_lshlrev_b32 v25, 6, v25\nv_and_b32 v26, 16, v1\nv_lshl_add_u32 v25, v26, 1, v25")
    k(f"v_and_b32 v26, 1, v1\nv_lshl_add_u32 v25, v26, 4, v25\nv_and_b32 v26, 2, v1\nv_lshl_add_u32 v{WA}, v26, 2, v25")
    for b in (XA0, XA1, WA):
        k(f"v_add_u32 v{b+1}, {2*SLOT:#x}, v{b}\nv_add_u32 v{b+2}, {4*SLOT:#x}, v{b}")
    ACC=32; CSA=80; ONE=112; XB=[116,120]; WB=[124,136]; SUM=148; SQ=149; CV=150; T=152
    for r in range(80): k(f"v_mov_b32 v{ACC+r}, 0")
    for r in range(4): k(f"v_mov_b32 v{ONE+r}, {ONES:#x}")
    k(f"v_mov_b32 v{SUM}, 0\nv_mov_b32 v{SQ}, 0\nv_mov_b32 v{CV}, 0")
    def clears():
        k(f"s_lshl_b32 s30, s29, 12\ns_add_u32 s30, s30, {OF:#x}")
        k("s_lshr_b32 s31, s29, 2\ns_lshl_b32 s31, s31, 4\ns_sub_u32 s31, s31, 2048")
        k("s_lshr_b32 s65, s18, 1\ns_add_u32 s65, s65, 1\ns_sub_u32 s66, 0, s65\ns_bitcmp1_b32 s18, 0\ns_cselect_b32 s65, s65, s66\ns_add_u32 s31, s31, s65")
        k("s_cmp_lt_u32 s29, 512\ns_cselect_b32 s31, 64, s31")
        k(f"v_and_b32 v{T}, 15, v1\nv_add_u32 v{T}, s31, v{T}\nv_cmp_gt_u32 vcc, 0x800, v{T}")
        k(f"v_cndmask_b32 v{T}, 0, -1, vcc")
        for r in range(1,4): k(f"v_mov_b32 v{T+r}, v{T}")
        for i in range(4): k(f"buffer_store_dwordx4 {vr(T)}, v3, s[4:7], s30 offen offset:{1024*i} sc1", tag="clr")
    assert GF == OF + 0x200000
    def reads(n):
        c, ks = n//4, n%4; sl = c%5; st = sl//2; imm = (sl-2*st)*SLOT
        xa = (XA0 if ks<2 else XA1)+st
        k(f"ds_read_b128 {vr(XB[n%2])}, v{xa} offset:{imm+32*(ks&1)}")
        for g in range(3):
            for a in range(2): k(f"ds_read_b64_tr_b16 {vr(WB[n%2]+4*g+2*a,2)}, v{WA+st} offset:{imm+ks*3072+g*1024+a*256}")
    def comp(n):
        x = XB[n%2]; w = WB[n%2]
        M = [f"v_mfma_f32_32x32x16_bf16 {vr(ACC,16)}, {vr(w)}, {vr(x)}, {vr(ACC,16)}",
             f"v_mfma_f32_32x32x16_bf16 {vr(ACC+16,16)}, {vr(w+4)}, {vr(x)}, {vr(ACC+16,16)}",
             f"v_mfma_f32_32x32x16_bf16 {vr(ACC+32,16)}, {vr(x)}, {vr(w+8)}, {vr(ACC+32,16)}",
             f"v_mfma_f32_32x32x16_bf16 {vr(CSA,16)}, {vr(w)}, {vr(ONE)}, {vr(CSA,16)}",
             f"v_mfma_f32_32x32x16_bf16 {vr(CSA+16,16)}, {vr(w+4)}, {vr(ONE)}, {vr(CSA+16,16)}"]
        D = []
        for r in range(4):
            D += [f"v_dot2_f32_bf16 v{SUM}, v{x+r}, v{ONE}, v{SUM}", f"v_dot2_f32_bf16 v{SQ}, v{x+r}, v{x+r}, v{SQ}",
                  f"v_dot2_f32_bf16 v{CV}, v{w+8+r}, v{ONE}, v{CV}"]
        for i in range(5):
            k(M[i])
            for d in D[3*i:3*i+3]: k(d)
    extra = {0: [lambda: sj_issue(0, lambda o: f"s_add_u32 m0, s67, {o}"), lambda: sj_issue(1, lambda o: f"s_add_u32 m0, s68, {o}")],
             1: [clears]}
    stamp(k,2)
    for n in range(32):
        c = n//4
        if n%4 == 0:
            k.waitvm(f"c{c}", "lgkmcnt(0)")
            k("s_barrier")
            if c == 0: stamp(k,3)
            reads(n)
            cnt = 2 if (c == 0 and I0 <= 3) else 1
            while cnt and issued < 8 and issued-5 < c:
                issue(issued); issued += 1; cnt -= 1
            for f in extra.get(c, []): f()
            if c == 4:
                sk = k.newlabel()
                k(f"s_cmp_ge_u32 s29, 96\ns_cbranch_scc1 {sk}")
                n0 = len(k.vmq)
                sj_issue(2, lambda o: f"s_add_u32 m0, s69, {o}")
                del k.vmq[n0:]
                k.label(sk)
            if n > 0: comp(n-1)
            if c == 5:
                k.waitvm("sj1")
                sj_proc(0, 67, T); sj_proc(1, 68, T+10)
        else:
            reads(n)
            k("s_waitcnt lgkmcnt(7)")
            comp(n-1)
    assert issued == 8
    k("s_waitcnt lgkmcnt(0)")
    comp(31)
    stamp(k,4)
    MU=27; RS=28
    xhalf_add(k, SUM, 25); xhalf_add(k, SQ, 25); xhalf_add(k, CV, 25)
    stats_from_sums(k, SUM, SQ, MU, RS, 25)
    k(f"s_lshl_b32 s30, s18, 8\ns_add_u32 s30, s30, {MUA}")
    k("v_lshlrev_b32 v29, 2, v14\nv_add_u32 v29, s30, v29")
    k(f"ds_write_b32 v29, v{MU}\nds_write_b32 v29, v{RS} offset:128")
    k("v_lshlrev_b32 v29, 4, v15\nv_add_u32 v29, s30, v29")
    k(f"v_mul_f32 v30, {fhex(0.25*LOG2E)}, v{RS}")
    TM=160
    k("s_waitcnt lgkmcnt(0)")
    for a in range(4): k(f"ds_read_b128 {vr(TM+4*a)}, v29 offset:{32*a}\nds_read_b128 {vr(TM+16+4*a)}, v29 offset:{128+32*a}")
    k(f"s_lshl_b32 s31, s17, 17\ns_lshl_b32 s30, s22, 10\ns_add_u32 s31, s31, s30\ns_add_u32 s65, s31, 0x10000")
    k(f"s_lshl_b32 s66, s31, 1\ns_add_u32 s66, s66, {KV:#x}\ns_add_u32 s67, s66, 0x20000")
    P=116
    for b in range(2):
        for r in range(16): k(f"v_fma_f32 v{ACC+16*b+r}, -v{MU}, v{CSA+16*b+r}, v{ACC+16*b+r}")
        for r in range(16): k(f"v_mul_f32 v{ACC+16*b+r}, v{30 if b==0 else RS}, v{ACC+16*b+r}")
        for r in range(8): k(f"v_cvt_pk_bf16_f32 v{P+8*b+r}, v{ACC+16*b+2*r}, v{ACC+16*b+2*r+1}")
        k(f"buffer_store_dwordx4 {vr(P+8*b)}, v3, s[4:7], s{31 if b==0 else 66} offen")
        k(f"buffer_store_dwordx4 {vr(P+8*b+4)}, v3, s[4:7], s{65 if b==0 else 67} offen")
    k("v_lshrrev_b32 v26, 4, v14\nv_lshlrev_b32 v26, 17, v26\nv_and_b32 v29, 15, v14\nv_lshl_add_u32 v26, v29, 4, v26\nv_lshl_add_u32 v26, v15, 8, v26")
    k("s_waitcnt lgkmcnt(0)")
    for r in range(16): k(f"v_fma_f32 v{ACC+32+r}, -v{TM+r}, v{CV}, v{ACC+32+r}")
    for r in range(16): k(f"v_mul_f32 v{ACC+32+r}, v{TM+16+r}, v{ACC+32+r}")
    for r in range(8): k(f"v_cvt_pk_bf16_f32 v{P+16+r}, v{ACC+32+2*r}, v{ACC+32+2*r+1}")
    k(f"buffer_store_dwordx4 {vr(P+16)}, v26, s[4:7], s66 offen offset:1024")
    k(f"buffer_store_dwordx4 {vr(P+20)}, v26, s[4:7], s66 offen offset:1536")
    stamp(k,5)
    fin = k.newlabel()
    k(f"s_cmp_ge_u32 s29, 96\ns_cbranch_scc1 {fin}")
    k("s_waitcnt vmcnt(6)")
    sj_proc(2, 69, T)
    k.label(fin)
    stamp_out(k, 0, 6, 160, 18)
    k.label(done)
    k("s_endpgm")
    return k
```

```python
from gen2 import *

WA=0; WB=0x10000; RING=0x20000; RP=2064; NR=13; MISC=0x26900; CSL=MISC; STL=MISC+256
UT=43*1024
BOUND=20000
def M16(d, a, b, c): return f"v_mfma_f32_16x16x32_bf16 {d}, {a}, {b}, {c}"
def M32(d, a, b, c): return f"v_mfma_f32_32x32x16_bf16 {d}, {a}, {b}, {c}"
def w3reg(t, s):
    n = 16*t+s
    return vr(144+4*n) if n < 28 else ar(176+4*(n-28))
def w4reg(ks, nb):
    b = 64+16*ks if ks < 7 else 16*(ks-7)
    return ar(b+4*nb)
def weave(k, A, B, lead=0):
    nA, nB = len(A), len(B); j = 0
    for i, a in enumerate(A):
        if callable(a): a()
        else: k(a)
        tgt = min(nB, int((i+1-lead)*nB/(nA-lead)+0.999)) if i+1 > lead else 0
        while j < tgt:
            b = B[j]; j += 1
            if callable(b): b()
            else: k(b)
    assert j == nB

def gen_k2():
    k = Kern("main_kernel", vgpr=512, sgpr=102, accum=256); k.sb = 68
    k.label("L_code_begin")
    done = "L_k2_done"
    stubs = []
    k(f"s_cmp_ge_u32 s2, 256\ns_cbranch_scc1 {done}")
    stamp(k,0)
    k("s_load_dwordx2 s[4:5], s[0:1], 80\ns_load_dwordx2 s[8:9], s[0:1], 0\ns_load_dwordx2 s[12:13], s[0:1], 64")
    k(f"s_mov_b32 s6, {WS_SZ:#x}\ns_mov_b32 s7, 0x00020000\ns_mov_b32 s10, 0x200000\ns_mov_b32 s11, 0x00020000\ns_mov_b32 s14, 0x200000\ns_mov_b32 s15, 0x00020000")
    k("v_lshrrev_b32 v2, 6, v0\nv_and_b32 v1, 63, v0")
    k("s_and_b32 s16, s2, 7\ns_lshr_b32 s17, s2, 3")
    k("v_readfirstlane_b32 s18, v2")
    k("v_lshlrev_b32 v3, 4, v1")
    k("s_lshl_b32 s23, s17, 16\ns_lshl_b32 s31, s16, 13\ns_add_u32 s23, s23, s31\ns_lshl_b32 s31, s18, 11\ns_add_u32 s23, s23, s31")
    k(f"s_lshl_b32 s24, s17, 17\ns_add_u32 s24, s24, s31\ns_add_u32 s24, s24, {KV:#x}")
    k(f"s_mul_i32 s25, s18, {RP}\ns_add_u32 s25, s25, {RING:#x}")
    QA=16; QB=20; C=24; S=[40,56]; P=[72,80]; O=[88,104]; KR=120; V0=124; V1=128
    KA=7; VA0=8; VA1=9
    k("s_waitcnt lgkmcnt(0)")
    stamp(k,1)
    k(f"s_mov_b32 m0, s25")
    k(f"buffer_load_dwordx4 v3, s[4:7], s24 offen lds", tag="g0")
    k(f"buffer_load_dwordx4 {vr(QA)}, v3, s[4:7], s23 offen", tag="g0")
    k(f"buffer_load_dwordx4 {vr(QB)}, v3, s[4:7], s23 offen offset:1024", tag="g0")
    k(f"buffer_load_dwordx4 v3, s[4:7], s24 offen offset:1024 lds", tag="g0")
    def kvdma(n):
        L = [f"s_add_u32 s24, s24, 8192", f"s_add_u32 s25, s25, {4*RP}"]
        if n >= 3: L += [f"s_cmp_ge_u32 s25, {RING+NR*RP:#x}", f"s_cselect_b32 s31, {NR*RP}, 0", "s_sub_u32 s25, s25, s31"]
        L += ["s_mov_b32 m0, s25",
              (f"buffer_load_dwordx4 v3, s[4:7], s24 offen lds", f"g{n}"),
              (f"buffer_load_dwordx4 v3, s[4:7], s24 offen offset:1024 lds", f"g{n}")]
        return L
    def em(x):
        if callable(x): x()
        elif isinstance(x, tuple): k(x[0], tag=x[1])
        else: k(x)
    for x in kvdma(1)+kvdma(2): em(x)
    k("s_lshr_b32 s19, s17, 3\ns_and_b32 s20, s17, 7")
    k("s_lshl_b32 s43, s16, 4\ns_lshl_b32 s31, s19, 2\ns_add_u32 s43, s43, s31\ns_add_u32 s21, s43, s18")
    k("s_lshl_b32 s22, s20, 2\ns_add_u32 s22, s22, s18")
    k("s_lshl_b32 s27, s18, 14\ns_lshl_b32 s26, s20, 16\ns_add_u32 s26, s26, s27")
    k(f"s_lshl_b32 s28, s22, 15\ns_add_u32 s28, s28, {W3F:#x}")
    k(f"s_add_u32 s29, s22, 64\ns_min_u32 s29, s29, 85\ns_lshl_b32 s29, s29, 14\ns_add_u32 s29, s29, {W3F:#x}")
    k(f"s_mul_i32 s30, s20, 43\ns_mul_i32 s31, s18, 11\ns_add_u32 s30, s30, s31\ns_lshl_b32 s30, s30, 12\ns_add_u32 s30, s30, {W4F:#x}")
    k("s_lshl_b32 s32, s21, 14")
    k("s_lshl_b32 s33, s17, 2\ns_add_u32 s33, s33, s18")
    k(f"s_mov_b32 s34, {fhex(GA)}\ns_mov_b32 s35, {fhex(GA)}\ns_mov_b32 s38, 1.0\ns_mov_b32 s39, 1.0\ns_mov_b32 s40, {ONES:#x}\ns_mov_b32 s41, -2\ns_mov_b32 s42, 0")
    for q in range(1,4): k(f"v_add_u32 v{3+q}, {4096*q:#x}, v3")
    k(f"v_add_u32 v{KA}, {RING:#x}, v3")
    k("v_and_b32 v10, 31, v1\nv_lshrrev_b32 v11, 5, v1\nv_and_b32 v12, 15, v1\nv_lshrrev_b32 v13, 4, v1")
    k(f"v_lshlrev_b32 v14, 4, v12\nv_lshl_add_u32 v14, v11, 8, v14")
    k(f"v_add_u32 v{VA0}, {RING+1024:#x}, v14\nv_add_u32 v{VA1}, {RING+1536:#x}, v14\nv_mov_b32 v15, {RING+2048:#x}")
    k(f"v_cmp_gt_u32 vcc, 16, v10\nv_cndmask_b32 v{VA0}, v15, v{VA0}, vcc\nv_cndmask_b32 v{VA1}, v15, v{VA1}, vcc")
    k("v_lshrrev_b32 v2, 4, v10\nv_lshl_add_u32 v2, v2, 14, v14")
    XV=132
    k(f"v_lshlrev_b32 v{XV}, 10, v12\nv_lshl_add_u32 v{XV}, v13, 4, v{XV}")
    k(f"v_min_u32 v15, {NR-1}, v1\nv_mul_u32_u24 v15, {RP}, v15\nv_add_u32 v15, {RING+2048:#x}, v15")
    for r in range(4): k(f"v_mov_b32 v{V0+r}, s40")
    k(f"ds_write_b128 v15, {vr(V0)}")
    for r in range(4): k(f"v_accvgpr_write_b32 a{168+r}, -1\nv_accvgpr_write_b32 a{172+r}, v{V0}")
    for r in range(32): k(f"v_mov_b32 v{O[0]+r}, 0")
    for r in range(4,8): k(f"v_mov_b32 v{P[1]+r}, 0")
    for r in range(4): k(f"v_mov_b32 v{V1+r}, 0")
    B = []
    def ld4(dst, so, tag, lds=None, vo="v3"):
        L = [so]
        if lds is not None: L.append(lds)
        for i in range(4):
            if lds is not None: L.append((f"buffer_load_dwordx4 {vo}, s[4:7], s31 offen offset:{1024*i} lds", tag))
            else: L.append((f"buffer_load_dwordx4 {dst(i)}, {vo}, s[4:7], s31 offen offset:{1024*i}", tag))
        return L
    for base, lb in ((WOF, WA), (W1F, WB)):
        for q in range(4): B.append(ld4(None, f"s_add_u32 s31, s26, {base+4096*q:#x}", "w", lds=f"s_add_u32 m0, s27, {lb+4096*q:#x}"))
    def clr(off=0): return (f"buffer_store_dwordx4 a[168:171], v3, s[4:7], s31 offen offset:{off} sc1", "clr")
    B.append(["s_lshl_b32 s44, s16, 18", "s_lshl_b32 s31, s33, 11", "s_add_u32 s44, s44, s31", f"s_add_u32 s31, s44, {HF:#x}", clr(0), clr(1024),
              f"s_add_u32 s31, s44, {X1F:#x}", clr(0), clr(1024)])
    L = [f"s_mul_i32 s44, s16, {16*UT}", f"s_add_u32 s44, s44, {UF:#x}", "s_lshl_b32 s31, s33, 10", "s_add_u32 s31, s31, s44", clr()]
    for q in range(1,5): L += ["s_add_u32 s31, s31, 0x20000", clr()]
    B.append(L)
    B.append(["s_min_u32 s31, s33, 47", "s_lshl_b32 s31, s31, 10", "s_add_u32 s31, s31, s44", "s_add_u32 s31, s31, 0xA0000", clr(),
              "s_and_b32 s31, s33, 31", "s_lshl_b32 s31, s31, 10", "s_lshl_b32 s44, s16, 15", f"s_add_u32 s44, s44, {STB:#x}", "s_add_u32 s31, s31, s44", clr(),
              "s_lshl_b32 s31, s20, 7", "s_add_u32 s31, s31, s32",
              (f"buffer_load_dwordx4 a[160:163], v{XV}, s[8:11], s31 offen", "w"), (f"buffer_load_dwordx4 a[164:167], v{XV}, s[8:11], s31 offen offset:64", "w")])
    for q in range(4): B.append(ld4(lambda i, q=q: ar(16*q+4*i), f"s_add_u32 s31, s26, {W2F+4096*q:#x}", "w"))
    for t in range(3):
        for q in range(4): B.append(ld4(lambda i, q=q, t=t: w3reg(t, 4*q+i), f"s_add_u32 s31, s{28 if t<2 else 29}, {(t&1)*16384+4096*q:#x}", "w"))
    for ks in range(6): B.append(ld4(lambda i, ks=ks: w4reg(ks, i), f"s_add_u32 s31, s30, {4096*ks:#x}", "w"))
    if OPT.get('nofill'): B = []
    NG = OPT.get('ng', 14)
    G = [[] for _ in range(17)]
    for n in range(1, 14): G[n] += kvdma(n+2)
    for bi, b in enumerate(B): G[bi*NG//len(B)] += b
    k.waitvm("g0", "lgkmcnt(0)")
    k("s_barrier")
    stamp(k,2)
    k(f"ds_read_b128 {vr(KR)}, v{KA}\nds_read_b128 {vr(V0)}, v{VA0}")
    k("s_waitcnt lgkmcnt(1)")
    k(M32(vr(S[0],16), vr(KR), vr(QA), 0)); k(M32(vr(S[1],16), vr(KR), vr(QB), 0))
    k(f"v_max_f32 v{C}, v{S[0]}, v{S[0]+1}")
    for r in range(2,32,2): k(f"v_max3_f32 v{C}, v{C}, v{S[0]+r}, v{S[0]+r+1}")
    k(f"v_mov_b32 v{C+1}, v{C}\nv_permlane32_swap_b32 v{C}, v{C+1}\nv_max_f32 v{C}, v{C}, v{C+1}")
    k(f"v_sub_f32 v{C}, 0, v{C}")
    for r in range(1,16): k(f"v_mov_b32 v{C+r}, v{C}")
    for r in range(16): k(f"v_add_f32 v{S[0]+r}, v{S[0]+r}, v{C}")
    k(f"v_mov_b32 v{S[1]+14}, 0\nv_mov_b32 v{S[1]+15}, 0")
    stamp(k,3)
    fq = []
    nslots = [0]
    def half(X, t):
        s = S[X]; p = P[X]; Y = 1-X
        fixed = {}
        def add(sl, x): fixed.setdefault(sl, []).append(x)
        pos = lambda tt: (tt % NR)*RP
        if X == 0:
            if (t+1) % 4 == 0 and t+1 < 64:
                n = (t+1)//4
                add(0, lambda: k.waitvm(f"g{n}")); add(0, "s_barrier")
                assert not fq, len(fq)
                fq.extend(G[n]); nslots[0] = 8*11
            if t+1 < 64: add(1, f"ds_read_b128 {vr(KR)}, v{KA} offset:{pos(t+1)}")
            add(4, f"ds_read_b128 {vr(V1)}, v{VA1} offset:{pos(t)}")
            add(10, f"s_waitcnt lgkmcnt({2 if t+1 < 64 else 1})")
            pre = M32(vr(S[1],16), vr(KR), vr(QB), vr(C,16))
        else:
            add(0, "s_waitcnt lgkmcnt(0)")
            if t+1 < 64: add(12, f"ds_read_b128 {vr(V0)}, v{VA0} offset:{pos(t+1)}")
            pre = M32(vr(S[0],16), vr(KR), vr(QA), vr(C,16)) if t+1 < 64 else None
        mid = M32(vr(O[Y],16), vr(V1), vr(P[Y]+4), vr(O[Y],16))
        free = [sl for sl in range(16) if sl not in fixed and sl != 0][:11]
        def slot(sl):
            for x in fixed.get(sl, []): em(x)
            if sl in free and nslots[0] > 0:
                acc[0] += len(fq)/nslots[0] if OPT.get('even',1) else 1
                nslots[0] -= 1
                while acc[0] >= 1 and fq:
                    em(fq.pop(0)); acc[0] -= 1
        for j in range(8):
            k(f"v_exp_f32 v{s+2*j}, v{s+2*j}"); slot(2*j)
            if j == 0:
                k(f"v_cvt_pk_bf16_f32 v{P[Y]+7}, v{S[Y]+14}, v{S[Y]+15}")
                if pre: k(pre)
            k(f"v_exp_f32 v{s+2*j+1}, v{s+2*j+1}"); slot(2*j+1)
            if j >= 1: k(f"v_cvt_pk_bf16_f32 v{p+j-1}, v{s+2*j-2}, v{s+2*j-1}")
            if j == 1: k(mid)
            if j == 5: k(M32(vr(O[X],16), vr(V0), vr(p), vr(O[X],16)))
    acc = [0.0]
    fq.extend(G[0]); nslots[0] = 6*11
    for t in range(64):
        half(0, t); half(1, t)
        if t == 31: stamp(k,4)
    assert not fq
    k(f"v_cvt_pk_bf16_f32 v{P[1]+7}, v{S[1]+14}, v{S[1]+15}")
    k(M32(vr(O[1],16), vr(V1), vr(P[1]+4), vr(O[1],16)))
    stamp(k,5)
    T0 = S[0]
    k(f"s_lshl_b32 s44, s16, 18\ns_lshl_b32 s31, s18, 16\ns_add_u32 s44, s44, s31\ns_lshl_b32 s31, s17, 9\ns_add_u32 s44, s44, s31\ns_add_u32 s44, s44, {OF:#x}\ns_add_u32 s45, s44, 0x8000")
    k(f"s_mov_b32 s46, {fhex(2.0**-30)}\ns_mov_b32 s47, {fhex(2.0**30)}")
    k(f"v_mul_f32 v{T0}, 0, v{O[0]+8}")
    for r in range(8): k(f"v_fma_f32 v{T0}, v{O[0]+r}, 0, v{T0}")
    for r in range(9): k(f"v_fma_f32 v{T0}, v{O[1]+r}, 0, v{T0}")
    k(f"v_min_f32 v{T0+1}, v{O[0]+8}, v{O[1]+8}\nv_max_f32 v{T0+2}, v{O[0]+8}, v{O[1]+8}")
    k(f"v_cmp_u_f32 vcc, v{T0}, v{T0}")
    k(f"v_cmp_gt_f32 s[48:49], s46, v{T0+1}")
    k(f"v_cmp_lt_f32 s[50:51], s47, v{T0+2}")
    k("s_nop 1\ns_or_b64 vcc, vcc, s[48:49]\ns_or_b64 vcc, vcc, s[50:51]")
    if OPT['slow']: k("s_branch L_attn_slow")
    k("s_cbranch_vccnz L_attn_slow")
    k.label("L_attn_fin")
    for X in range(2):
        k(f"v_rcp_f32 v{T0+X}, v{O[X]+8}")
    for X in range(2):
        for r in range(8): k(f"v_mul_f32 v{O[X]+r}, v{O[X]+r}, v{T0+X}")
        for r in range(4): k(f"v_cvt_pk_bf16_f32 v{P[X]+r}, v{O[X]+2*r}, v{O[X]+2*r+1}")
        k(f"v_min_u32 v{P[X]}, s41, v{P[X]}")
        k(f"buffer_store_dwordx4 {vr(P[X])}, v2, s[4:7], s{44+X} offen sc1", tag="st")
    stamp(k,6)
    ACT=16; STR=96; H=80; A2=100; CS=116; TMP=132
    WV=[vr(96+16*b+4*i) for b in range(3) for i in range(4)]
    WAq=[ar(16+16*b+4*i) for b in range(3) for i in range(4)]
    LW=7; LW2=8
    k(f"v_add_u32 v{LW2}, {WB:#x}, v3")
    k(f"s_lshl_b32 s31, s18, 10\nv_add_u32 v9, s31, v{LW2}")
    for s in range(16): k(f"ds_read_b128 {vr(ACT+4*s)}, v9 offset:{4096*s}")
    H0=80
    for r in range(8): k(f"v_accvgpr_read_b32 v{96+r}, a{160+r}")
    for r in range(8): k(f"v_lshlrev_b32 v{H0+2*r}, 16, v{96+r}\nv_and_b32 v{H0+2*r+1}, 0xffff0000, v{96+r}")
    for s in range(16):
        if s % 4 == 0: k(f"s_waitcnt lgkmcnt({12-s})")
        k(M16(vr(96), vr(ACT+4*s), "a[172:175]", 0 if s == 0 else vr(96)))
    k(f"s_lshl_b32 s31, s18, 6\ns_add_u32 s31, s31, {CSL:#x}\nv_lshlrev_b32 v9, 4, v13\nv_add_u32 v15, {CSL:#x}, v9\nv_add_u32 v9, s31, v9")
    k(f"ds_write_b128 v9, {vr(96)}")
    def sent(tag, regs, reissue, drain=False):
        st = k.newlabel("R"); ct = k.newlabel("C"); wl = k.newlabel("W")
        if not drain: k.label(wl)
        k.waitvm(tag)
        if drain: k.label(wl)
        t = 0
        if len(regs) == 1: k(f"v_cmp_eq_u32 vcc, -1, v{regs[0]}")
        else:
            r = list(regs)
            if len(r) == 2: k(f"v_max_u32 v{t}, v{r[0]}, v{r[1]}"); r = []
            else: k(f"v_max3_u32 v{t}, v{r[0]}, v{r[1]}, v{r[2]}"); r = r[3:]
            while r:
                if len(r) == 1: k(f"v_max_u32 v{t}, v{t}, v{r[0]}"); r = []
                else: k(f"v_max3_u32 v{t}, v{t}, v{r[0]}, v{r[1]}"); r = r[2:]
            k(f"v_cmp_eq_u32 vcc, -1, v{t}")
        k(f"s_cbranch_vccnz {st}")
        k.label(ct)
        L = [f"{st}:", "s_add_u32 s42, s42, 1", f"s_cmp_gt_u32 s42, {BOUND}", f"s_cbranch_scc1 {ct}"] + list(reissue)
        if drain: L.append("s_waitcnt vmcnt(0)")
        L.append(f"s_branch {wl}")
        stubs.append(L)
    def actloads(so, sst, name):
        L = [f"buffer_load_dwordx4 {vr(ACT+4*s)}, v{3+s//4}, s[4:7], s{so} offen offset:{1024*(s%4)} sc1" for s in range(16)]
        if sst: L.append(f"buffer_load_dwordx4 {vr(STR)}, v3, s[4:7], s{sst} offen sc1")
        for i, x in enumerate(L): k(x, tag=f"{name}{i//2}")
        return L
    def mstage(name, so, sst, lw, WBUF, AC, zero, shadow=()):
        def rd(s):
            for nb in range(4): k(f"ds_read_b128 {WBUF[4*(s%3)+nb]}, v{lw} offset:{4096*s+1024*nb}")
        rd(0); rd(1)
        L = actloads(so, sst, name)
        sh = list(shadow)
        for s in range(16):
            if s % 2 == 0: sent(f"{name}{s//2}", [ACT+4*s, ACT+4*s+4], L[s:])
            if s == 14 and sst: sent(f"{name}8", [STR, STR+1, STR+2, STR+3], L[16:])
            if s+2 < 16: rd(s+2)
            k(f"s_waitcnt lgkmcnt({8 if s < 14 else 4*(15-s)})")
            for nb in range(4):
                k(M16(vr(AC+4*nb), WBUF[4*(s%3)+nb], vr(ACT+4*s), 0 if (zero and s == 0) else vr(AC+4*nb)))
                if s >= 14:
                    n = (len(sh)+ (8-(4*(s-14)+nb))-1)//(8-(4*(s-14)+nb))
                    for _ in range(n): em(sh.pop(0))
        assert not sh
    def packstore(AC, PK, vo, so):
        for p in range(2):
            for r in range(4): k(f"v_cvt_pk_bf16_f32 v{PK+4*p+r}, v{AC+8*p+2*r}, v{AC+8*p+2*r+1}")
            k(f"v_min_u32 v{PK+4*p}, s41, v{PK+4*p}")
            k(f"buffer_store_dwordx4 {vr(PK+4*p)}, v{vo}, s[4:7], s{so} offen offset:{1024*p} sc1", tag="st")
    SV=9
    def pstats(PK, so, a):
        k(f"v_dot2_f32_bf16 v{a}, v{PK}, s40, 0\nv_dot2_f32_bf16 v{a+1}, v{PK}, v{PK}, 0")
        for r in range(1,8): k(f"v_dot2_f32_bf16 v{a}, v{PK+r}, s40, v{a}\nv_dot2_f32_bf16 v{a+1}, v{PK+r}, v{PK+r}, v{a+1}")
        k(f"v_permlane16_swap_b32 v{a}, v{a+1}\nv_add_f32 v{a}, v{a}, v{a+1}")
        xhalf_add(k, a, a+1)
        k(f"v_min_u32 v{a}, s41, v{a}")
        k(f"buffer_store_dword v{a}, v{SV}, s[4:7], s{so} offen sc1", tag="st")
    def cs3(t):
        for s in range(16): k(M16(ar(4*t), w3reg(t, s), "a[172:175]", 0 if s == 0 else ar(4*t)))
    def statlist(MU, RS, t):
        a = STR
        L = [f"v_add_f32 v{a}, v{a}, v{a+2}", f"v_add_f32 v{a+1}, v{a+1}, v{a+3}"]
        for op in ("v_permlane16_swap_b32", "v_permlane32_swap_b32"):
            L += [f"v_mov_b32 v{a+2}, v{a}", f"v_mov_b32 v{a+3}, v{a+1}", f"{op} v{a}, v{a+2}", f"{op} v{a+1}, v{a+3}",
                  f"v_add_f32 v{a}, v{a}, v{a+2}", f"v_add_f32 v{a+1}, v{a+1}, v{a+3}"]
        L += [f"v_mul_f32 v{MU}, {fhex(1/512)}, v{a}", f"v_mul_f32 v{a+1}, {fhex(1/512)}, v{a+1}", f"v_fma_f32 v{a+1}, -v{MU}, v{MU}, v{a+1}",
              f"v_max_f32 v{a+1}, 0, v{a+1}", f"v_add_f32 v{t}, {fhex(EPS)}, v{a+1}", f"v_rsq_f32 v{RS}, v{t}"]
        return L
    k(f"s_add_u32 s44, s32, {OF:#x}")
    k(f"s_lshl_b32 s31, s20, 11\ns_add_u32 s45, s32, s31\ns_add_u32 s46, s45, {X1F:#x}\ns_add_u32 s45, s45, {HF:#x}")
    k(f"s_add_u32 s47, s31, {GF:#x}")
    k(f"s_lshl_b32 s48, s16, 15\ns_and_b32 s31, s21, 15\ns_lshl_b32 s31, s31, 10\ns_add_u32 s48, s48, s31\ns_add_u32 s48, s48, {STB:#x}\ns_add_u32 s49, s48, 0x4000")
    k(f"s_add_u32 s50, s32, {HF:#x}\ns_add_u32 s51, s32, {GF:#x}\ns_add_u32 s52, s32, {X1F:#x}")
    stamp(k,7)
    mstage("o", 44, None, 3, WV, H0, False)
    PK=ACT
    k("s_barrier")
    packstore(H0, PK, 3, 45)
    stamp(k,8)
    k("s_lshr_b32 s31, s20, 1\ns_lshl_b32 s31, s31, 8\ns_and_b32 s53, s20, 1\ns_lshl_b32 s53, s53, 3\ns_add_u32 s31, s31, s53")
    k(f"v_lshlrev_b32 v{SV}, 4, v12\nv_lshl_add_u32 v{SV}, v13, 2, v{SV}\nv_add_u32 v{SV}, s31, v{SV}\nv_lshl_add_u32 v{SV}, v11, 31, v{SV}")
    pstats(PK, 48, TMP)
    k(f"v_add_u32 v{LW}, s27, v3")
    for i in range(16): k(f"ds_write_b128 v{LW}, {ar(4*i)} offset:{1024*i}")
    for nb in range(4): k(f"ds_read_b128 {vr(CS+4*nb)}, v15 offset:{64*nb}")
    k("s_lshr_b32 s31, s20, 2\ns_add_u32 s31, s31, 1\ns_sub_u32 s53, 0, s31\ns_bitcmp1_b32 s20, 1\ns_cselect_b32 s31, s53, s31\ns_lshl_b32 s53, s21, 4\ns_add_u32 s31, s31, s53")
    k(f"v_add_u32 v{TMP}, s31, v12\nv_lshrrev_b32 v2, 4, v{TMP}\nv_lshlrev_b32 v2, 14, v2\nv_and_b32 v{TMP+1}, 15, v{TMP}\nv_lshl_add_u32 v2, v{TMP+1}, 4, v2\nv_lshl_add_u32 v2, v13, 8, v2")
    k(f"v_cmp_gt_u32 vcc, 0x800, v{TMP}\nv_bfrev_b32 v{TMP+1}, 1\nv_cndmask_b32 v2, v{TMP+1}, v2, vcc")
    k("s_waitcnt lgkmcnt(0)")
    cs3(0)
    MU=TMP; R1=TMP+1; RR=TMP+2; KK=TMP+4; GBV=TMP+6; TT=TMP+8
    sh = statlist(MU, R1, TT) + [f"v_mul_f32 v{TT}, v{R1}, v{R1}", f"v_fma_f32 v{TT}, v{TT}, v{STR+1}, v{TT+1}", f"v_rsq_f32 v{TT}, v{TT}",
          f"v_mul_f32 v{RR}, v{R1}, v{TT}", f"v_mul_f32 v{RR+1}, v{R1}, v{TT}", f"v_mul_f32 v{KK}, -v{MU}, v{RR}"]
    sh += [f"v_mul_f32 v{CS+r}, v{KK}, v{CS+r}" for r in range(16)]
    k(f"v_mov_b32 v{TT+1}, {fhex(EPS)}\nv_mov_b32 v{GBV}, {fhex(GB)}\nv_mov_b32 v{GBV+1}, {fhex(GB)}")
    stamp(k,9)
    mstage("h", 50, 48, LW2, WAq, A2, True, sh)
    k("s_barrier")
    G0=ACT+16
    pr = lambda b: vr(b,2)
    for p in range(2):
        R = range(8*p, 8*p+8, 2)
        for r in R: k(f"v_pk_fma_f32 {pr(A2+r)}, {pr(A2+r)}, {pr(RR)}, {pr(CS+r)}")
        for r in R: k(f"v_pk_mul_f32 {pr(G0+r)}, {pr(A2+r)}, {pr(A2+r)}")
        for r in R: k(f"v_pk_fma_f32 {pr(G0+r)}, {pr(G0+r)}, s[34:35], {pr(GBV)}")
        for r in R: k(f"v_pk_mul_f32 {pr(G0+r)}, {pr(G0+r)}, {pr(A2+r)}")
        for r in range(8*p, 8*p+8): k(f"v_exp_f32 v{G0+r}, v{G0+r}")
        for r in R: k(f"v_pk_add_f32 {pr(G0+r)}, {pr(G0+r)}, s[38:39]")
        for r in range(8*p, 8*p+8): k(f"v_rcp_f32 v{G0+r}, v{G0+r}")
        for r in R: k(f"v_pk_mul_f32 {pr(A2+r)}, {pr(A2+r)}, {pr(G0+r)}")
        for r in range(4): k(f"v_cvt_pk_bf16_f32 v{PK+4*p+r}, v{A2+8*p+2*r}, v{A2+8*p+2*r+1}")
        k(f"v_min_u32 v{PK+4*p}, s41, v{PK+4*p}")
        k(f"buffer_store_dwordx4 {vr(PK+4*p)}, v2, s[4:7], s47 offen offset:{1024*p} sc1", tag="st")
    stamp(k,10)
    k(f"v_mul_f32 v{KK}, -v{MU}, v{R1}")
    for r in range(16): k(f"v_fma_f32 v{A2+r}, v{H+r}, v{R1}, v{KK}")
    cs3(1)
    mstage("g", 51, None, 3, WAq, A2, False)
    packstore(A2, PK, 3, 46)
    stamp(k,11)
    pstats(PK, 49, TMP)
    for r in range(16): k(f"v_add_f32 v{H+r}, v{H+r}, v{A2+r}")
    k(f"v_lshl_add_u32 v14, v13, 2, v12\nv_and_b32 v14, 15, v14\nv_lshlrev_b32 v14, 4, v14\nv_lshl_add_u32 v14, v13, 8, v14")
    k(f"s_lshl_b32 s31, s18, 12\nv_add_u32 v14, s31, v14\nv_add_u32 v{TMP}, {RING:#x}, v14")
    for nb in range(4): k(f"ds_write_b128 v{TMP}, {vr(H+4*nb)} offset:{1024*nb}")
    cs3(2)
    AC=[84,96]; C3=108; GT=120; RS=TMP; K3=TMP+1; MU=TMP+2; TT=TMP+3; UP=TMP+4
    k(f"v_add_u32 v{LW}, s27, v{LW2}")
    for q in range(1,4): k(f"s_cmp_le_u32 s18, {q-1}\ns_cselect_b32 s{53+q}, {q}, {q-1}")
    k(f"s_lshl_b32 s31, s22, 10\ns_add_u32 s31, s31, {UF:#x}\ns_mul_i32 s57, s21, {UT}\ns_add_u32 s57, s57, s31")
    for q in range(1,4): k(f"s_add_u32 s{57+q}, s43, s{53+q}\ns_mul_i32 s{57+q}, s{57+q}, {UT}\ns_add_u32 s{57+q}, s{57+q}, s31")
    k("s_lshr_b32 s31, s22, 1\ns_add_u32 s31, s31, 32\ns_sub_u32 s31, s31, s22\ns_lshl_b32 s31, s31, 10\ns_and_b32 s53, s22, 1\ns_lshl_b32 s53, s53, 3\ns_add_u32 s31, s31, s53")
    k("s_cmp_lt_u32 s22, 22\ns_cselect_b32 s31, s31, 0x80000000\nv_add_u32 v10, s31, v3")
    L = actloads(52, 49, "x")
    for r in range(12): k(f"v_accvgpr_read_b32 v{C3+r}, a{r}")
    k(f"s_lshl_b32 s31, s18, 7\ns_add_u32 s31, s31, {STL:#x}\nv_lshlrev_b32 v15, 3, v12\nv_add_u32 v2, s31, v15\nv_add_u32 v15, {STL:#x}, v15")
    sh = statlist(MU, RS, TT) + [f"v_mul_f32 v{K3}, -v{MU}, v{RS}", f"ds_write_b64 v2, {vr(RS,2)}"]
    for s in range(16):
        if s % 2 == 0:
            sent(f"x{s//2}", [ACT+4*s, ACT+4*s+4], L[s:])
            k(f"ds_write_b128 v{LW}, {vr(ACT+4*s)} offset:{1024*s}\nds_write_b128 v{LW}, {vr(ACT+4*s+4)} offset:{1024*s+1024}")
        if s == 14: sent("x8", [STR, STR+1, STR+2, STR+3], L[16:])
        for t in range(3):
            k(M16(vr(AC[0]+4*t), w3reg(t,s), vr(ACT+4*s), 0 if s == 0 else vr(AC[0]+4*t)))
            if s >= 14:
                rem = 6-(3*(s-14)+t); n = (len(sh)+rem-1)//rem
                for _ in range(n): em(sh.pop(0))
    k("s_waitcnt lgkmcnt(0)\ns_barrier")
    stamp(k,12)
    GBS=TMP+10
    k(f"v_mov_b32 v{GBS}, {fhex(GB)}")
    def gelu_list(a, rs, kk, q):
        L = []
        for c in range(2):
            R = range(0,8) if c == 0 else range(8,12)
            L += [f"v_mul_f32 v{GT+r}, v{kk}, v{C3+r}" for r in R]
            L += [f"v_fma_f32 v{a+r}, v{a+r}, v{rs}, v{GT+r}" for r in R]
            L += [f"v_mul_f32 v{GT+r}, v{a+r}, v{a+r}" for r in R]
            L += [f"v_fma_f32 v{GT+r}, v{GT+r}, s34, v{GBS}" for r in R]
            L += [f"v_mul_f32 v{GT+r}, v{GT+r}, v{a+r}" for r in R]
            L += [f"v_exp_f32 v{GT+r}, v{GT+r}" for r in R]
            L += [f"v_add_f32 v{GT+r}, 1.0, v{GT+r}" for r in R]
            L += [f"v_rcp_f32 v{GT+r}, v{GT+r}" for r in R]
            L += [f"v_mul_f32 v{a+r}, v{a+r}, v{GT+r}" for r in R]
            L += [f"v_cvt_pk_bf16_f32 v{UP+r//2}, v{a+r}, v{a+r+1}" for r in R if r % 2 == 0]
            if c == 0:
                L += [f"v_min_u32 v{UP}, s41, v{UP}", f"v_min_u32 v{UP+2}, s41, v{UP+2}",
                      lambda: k(f"buffer_store_dwordx4 {vr(UP)}, v3, s[4:7], s{57+q} offen sc1", tag="st")]
            else:
                L += [f"v_min_u32 v{UP+4}, s41, v{UP+4}", lambda: k(f"buffer_store_dwordx2 {vr(UP+4,2)}, v10, s[4:7], s{57+q} offen sc1", tag="st")]
        return L
    k("s_cmp_eq_u32 s18, 3\ns_cselect_b32 s31, 0x80000000, 0\nv_add_u32 v11, s31, v3\ns_cselect_b32 s31, 1024, 0\nv_subrev_u32 v12, s31, v5")
    late = []
    for ks in range(6, 11): late += ld4(lambda i, ks=ks: w4reg(ks, i), f"s_add_u32 s31, s30, {4096*ks:#x}", "w4", vo="v11" if ks == 10 else "v3")
    late = [(lambda x=x: em(x)) for x in late]
    BB=ACT
    SP=[None,32,34,36]
    for q in range(1,4):
        k(f"s_lshl_b32 s31, s{53+q}, 7\nv_add_u32 v{TT}, s31, v15\nds_read_b64 {vr(SP[q],2)}, v{TT}")
    TB=[None,7,8,9]
    for q in (1,3,2): k(f"s_lshl_b32 s31, s{53+q}, 14\nv_add_u32 v{TB[q]}, s31, v{LW2}")
    def rdB(n):
        q = n//16+1; s = n % 16
        return f"ds_read_b128 {vr(BB+4*(n%4))}, v{TB[q]} offset:{1024*s}"
    k(f"s_mul_i32 s61, s43, {UT}\ns_mul_i32 s31, s18, {11*1024}\ns_add_u32 s61, s61, s31\ns_add_u32 s61, s61, {UF:#x}")
    for t in range(1,4): k(f"s_add_u32 s{61+t}, s61, {t*UT}")
    UB=[40,144,188,40]
    def uld(t): return [f"buffer_load_dwordx4 {vr(UB[t]+4*ks)}, v{12 if ks == 10 else 3+ks//4}, s[4:7], s{61+t} offen offset:{1024*(ks%4)} sc1" for ks in range(11)]
    pend = []
    def uissue(t):
        for ks, x in enumerate(uld(t)):
            k(x, tag=f"u{t}_{ks//2}"); pend.append((t, ks, x))
    for n in range(3): k(rdB(n))
    for q in range(1,4):
        A = []
        for s in range(16):
            n = 16*(q-1)+s
            if n+3 < 48: A.append(rdB(n+3))
            A.append(f"s_waitcnt lgkmcnt({min(3, 47-n)})")
            for t in range(3): A.append(M16(vr(AC[q%2]+4*t), w3reg(t,s), vr(BB+4*(n%4)), 0 if s == 0 else vr(AC[q%2]+4*t)))
            if q == 3 and s == OPT.get('u0at', 8): A.append(lambda: uissue(0))
        rs, kk = (RS, K3) if q == 1 else (SP[q-1], SP[q-1]+1)
        Bl = gelu_list(AC[(q-1)%2], rs, kk, q-1)
        if q == 1:
            m = [];
            for i, x in enumerate(Bl):
                m.append(x)
                if i % 4 == 3 and late: m.append(late.pop(0))
            Bl = m + late
        weave(k, A, Bl, lead=3)
    stamp(k,13)
    uissue(1)
    A4=[232,16]
    RD=84
    def red_addr():
        k(f"v_lshrrev_b32 v7, 2, v1\nv_and_b32 v8, 3, v1\nv_lshl_add_u32 v9, v8, 2, v7\nv_and_b32 v9, 15, v9\nv_lshlrev_b32 v9, 4, v9\nv_lshl_add_u32 v9, v8, 8, v9")
        k(f"v_lshlrev_b32 v7, 10, v7\nv_lshl_add_u32 v7, v8, 4, v7")
        k(f"s_and_b32 s53, s18, 1\ns_lshr_b32 s54, s18, 1\ns_lshl_b32 s31, s53, 11\nv_add_u32 v9, s31, v9")
        k(f"s_lshl_b32 s31, s54, 14\nv_add_u32 v8, s31, v9\ns_lshl_b32 s31, s54, 12\ns_add_u32 s31, s31, {RING:#x}\nv_add_u32 v9, s31, v9")
        k(f"s_add_u32 s55, s43, s54\ns_lshl_b32 s55, s55, 14\ns_lshl_b32 s31, s20, 7\ns_add_u32 s55, s55, s31\ns_lshl_b32 s31, s53, 6\ns_add_u32 s55, s55, s31\ns_add_u32 s56, s55, 0x8000")
    def red_list(u):
        L = []
        for src in range(4):
            for b in range(2): L.append(f"ds_read_b128 {vr(RD+8*src+4*b)}, v8 offset:{32768*u+4096*src+1024*b}")
        for b in range(2): L.append(f"ds_read_b128 {vr(RD+32+4*b)}, v9 offset:{8192*u+1024*b}")
        L.append("s_waitcnt lgkmcnt(6)")
        L += [f"v_add_f32 v{RD+r}, v{RD+r}, v{RD+8+r}" for r in range(8)]
        L.append("s_waitcnt lgkmcnt(2)")
        L += [f"v_add_f32 v{RD+16+r}, v{RD+16+r}, v{RD+24+r}" for r in range(8)]
        L.append("s_waitcnt lgkmcnt(0)")
        L += [f"v_add_f32 v{RD+r}, v{RD+r}, v{RD+32+r}" for r in range(8)]
        L += [f"v_add_f32 v{RD+r}, v{RD+r}, v{RD+16+r}" for r in range(8)]
        L += [f"v_cvt_pk_bf16_f32 v{RD+8+r}, v{RD+2*r}, v{RD+2*r+1}" for r in range(4)]
        L.append(lambda: k(f"buffer_store_dwordx4 {vr(RD+8)}, v7, s[12:15], s{55+u} offen", tag="out"))
        return L
    for t in range(4):
        a = A4[t%2]
        A = []
        def chk(ks, t=t):
            regs = []
            for kk_ in range(ks, min(ks+2, 11)): regs += [UB[t]+4*kk_, UB[t]+4*kk_+2]
            while pend and (pend[0][0], pend[0][1]) < (t, ks): pend.pop(0)
            sent(f"u{t}_{ks//2}", regs, [x[2] for x in pend], drain=True)
        for ks in range(11):
            if ks % 2 == 0: A.append(lambda ks=ks: chk(ks))
            if t == 0 and ks == 6: A.append(lambda: k.waitvm("w4"))
            for nb in range(4): A.append(M16(vr(a+4*nb), w4reg(ks,nb), vr(UB[t]+4*ks), 0 if ks == 0 else vr(a+4*nb)))
            if ks == 2 and t >= 1:
                pa = A4[(t-1)%2]
                for nb in range(4): A.append(f"ds_write_b128 v14, {vr(pa+4*nb)} offset:{16384*(t-1)+1024*nb}")
            if t == 0 and ks == OPT.get('u2at', 10): A.append(lambda: uissue(2))
            if t == 1 and ks == OPT.get('u3at', 4): A.append(lambda: uissue(3))
            if t == 2 and ks == 8: A.append("s_waitcnt lgkmcnt(0)"); A.append("s_barrier")
        if t == 0: Bl = gelu_list(AC[1], SP[3], SP[3]+1, 3)
        elif t == 1: Bl = [red_addr]
        elif t == 3: Bl = red_list(0)
        else: Bl = []
        if Bl: weave(k, A, Bl, lead=(2 if t == 0 else 18))
        else:
            for x in A: em(x)
    for nb in range(4): k(f"ds_write_b128 v14, {vr(A4[1]+4*nb)} offset:{16384*3+1024*nb}")
    k("s_waitcnt lgkmcnt(0)\ns_barrier")
    stamp(k,14)
    for x in red_list(1): em(x)
    stamp_out(k, 1, 15, 16, 18)
    k.label(done)
    k("s_endpgm")
    for L in stubs:
        for x in L:
            if x.endswith(":"): k.label(x[:-1])
            else: k(x)
    k.label("L_attn_slow")
    k("s_waitcnt vmcnt(0)")
    M=[C, C+1]; TM=C+2; TX=C+3; AL=C+4
    for X in range(2): k(f"v_mov_b32 v{M[X]}, {fhex(-3.0e38)}")
    for r in range(32): k(f"v_mov_b32 v{O[0]+r}, 0")
    for r in range(8): k(f"v_mov_b32 v{V0+r}, s40")
    k(f"s_lshl_b32 s24, s17, 17\ns_add_u32 s24, s24, {KV:#x}\ns_mov_b32 s25, 64\ns_mov_b32 s48, 0x0000ffff\ns_mov_b32 s49, 0x0000ffff")
    k.label("L_attn_sloop")
    k(f"buffer_load_dwordx4 {vr(KR)}, v3, s[4:7], s24 offen")
    k("s_mov_b64 exec, s[48:49]")
    k(f"buffer_load_dwordx4 {vr(V0)}, v14, s[4:7], s24 offen offset:1024")
    k(f"buffer_load_dwordx4 {vr(V1)}, v14, s[4:7], s24 offen offset:1536")
    k("s_mov_b64 exec, -1")
    k("s_waitcnt vmcnt(0)")
    for X in range(2):
        s = S[X]; p = P[X]
        k(M32(vr(s,16), vr(KR), vr([QA,QB][X]), 0))
        k(f"v_max_f32 v{TM}, v{s}, v{s+1}")
        for r in range(2,16,2): k(f"v_max3_f32 v{TM}, v{TM}, v{s+r}, v{s+r+1}")
        k(f"v_mov_b32 v{TX}, v{TM}\nv_permlane32_swap_b32 v{TM}, v{TX}\nv_max3_f32 v{TM}, v{TM}, v{TX}, v{M[X]}")
        k(f"v_sub_f32 v{AL}, v{M[X]}, v{TM}\nv_exp_f32 v{AL}, v{AL}\nv_mov_b32 v{M[X]}, v{TM}")
        for r in range(16): k(f"v_mul_f32 v{O[X]+r}, v{O[X]+r}, v{AL}")
        for r in range(16): k(f"v_sub_f32 v{s+r}, v{s+r}, v{TM}")
        for r in range(16): k(f"v_exp_f32 v{s+r}, v{s+r}")
        for r in range(8): k(f"v_cvt_pk_bf16_f32 v{p+r}, v{s+2*r}, v{s+2*r+1}")
        k(M32(vr(O[X],16), vr(V0), vr(p), vr(O[X],16)))
        k(M32(vr(O[X],16), vr(V1), vr(p+4), vr(O[X],16)))
    k("s_nop 15")
    k("s_add_u32 s24, s24, 2048\ns_sub_u32 s25, s25, 1\ns_cmp_lg_u32 s25, 0\ns_cbranch_scc1 L_attn_sloop")
    k("s_branch L_attn_fin")
    k.label("L_code_end")
    return k

if __name__ == "__main__":
    out = sys.argv[1]
    for a in sys.argv[2:]:
        kk, v = a.split("="); OPT[kk] = int(v)
    k2 = gen_k2(); n2 = k2.fix(verbose=bool(OPT.get('v')))
    k1 = gen_k1(); n1 = k1.fix(verbose=bool(OPT.get('v')))
    print("nops inserted", n1, n2)
    emit(out, [("qkv_kernel",256,256,163840),("main_kernel",256,256,163840)], [k1, k2])
```

```python
import re, struct
from asmlib import vr, ar, sr, f2u, fhex, HEADER

TRANS = ("v_exp_", "v_log_", "v_rcp_", "v_rsq_", "v_sqrt_", "v_sin_", "v_cos_")
def regs_of(tok):
    tok = tok.strip().lstrip('-').strip('|')
    m = re.fullmatch(r"([vas])\[(\d+):(\d+)\]", tok)
    if m: return [(m.group(1), i) for i in range(int(m.group(2)), int(m.group(3))+1)]
    m = re.fullmatch(r"([vas])(\d+)", tok)
    if m: return [(m.group(1), int(m.group(2)))]
    if tok in ("vcc",): return [("s","vcc")]
    if tok in ("m0",): return [("s","m0")]
    if tok in ("exec",): return [("s","exec")]
    return []
class I:
    def __init__(s, text):
        s.text = text
        t = text.split(";")[0].strip()
        p = t.split(None, 1)
        s.op = p[0]
        rest = p[1] if len(p) > 1 else ""
        toks = [x.strip() for x in rest.split(",")]
        ops = []
        for x in toks:
            w = x.split()
            if w: ops.append(w[0])
        s.mods = rest
        op = s.op
        s.kind = None; s.w = []; s.r = []
        R = [regs_of(x) for x in ops]
        flat = lambda L: [y for x in L for y in x]
        if op.startswith("v_mfma"):
            s.kind = "mfma"; s.D, s.A, s.B, s.C = R[0], R[1], R[2], R[3]
            s.w = s.D; s.r = s.A + s.B + s.C
            s.passes = 8 if "32x32x16" in op else 4
        elif op.startswith("v_"):
            s.kind = "valu"
            if "permlane" in op and "swap" in op: s.w = R[0]+R[1]; s.r = R[0]+R[1]
            else:
                s.w = list(R[0]); s.r = flat(R[1:])
                if op.startswith(("v_add_co","v_sub_co","v_addc_co")): s.w += R[1]; s.r = flat(R[2:])
                if op.startswith(("v_fmac","v_dot2c","v_pk_fmac")) : s.r += R[0]
                if op.startswith("v_cndmask") and len(ops) == 3: s.r.append(("s","vcc"))
            s.trans = op.startswith(TRANS); s.dot = op.startswith("v_dot")
            s.dpp = "_dpp" in op or "row_" in rest or "quad_perm" in rest
        elif op.startswith(("buffer_load","global_load")):
            s.kind = "vmem"
            if re.search(r"\blds\b", rest): s.lds = True; s.r = flat(R) + [("s","m0")]
            else: s.lds = False; s.w = R[0]; s.r = flat(R[1:])
        elif op.startswith(("buffer_store","global_store","buffer_atomic","global_atomic")):
            s.kind = "vmem"; s.lds = False; s.r = flat(R); s.store = True
            s.data = R[0] if op.startswith("buffer") else R[1]
            s.wide = "x3" in op or "x4" in op
        elif op.startswith("ds_read"):
            s.kind = "ds"; s.w = R[0]; s.r = flat(R[1:])
        elif op.startswith("ds_"):
            s.kind = "ds"; s.r = flat(R)
        elif op.startswith("s_"):
            s.kind = "salu"
            if op.startswith(("s_cmp","s_cbranch","s_branch","s_waitcnt","s_nop","s_barrier","s_endpgm","s_sleep","s_setprio","s_bitcmp","s_setpc")): s.r = flat(R)
            else:
                s.w = list(R[0]) if R else []; s.r = flat(R[1:])
        else:
            raise ValueError("unknown instr " + text)
        s.ws = 1
        if op == "s_nop": s.ws = int(ops[0]) + 1
def need(p, c):
    n = 0
    pw = set(p.w); cr = set(c.r); cw = set(c.w)
    if p.kind == "valu":
        vw = {x for x in pw if x[0] in "va"}; sw = {x for x in pw if x[0] == "s"}
        if c.kind == "mfma" and vw & cr: n = max(n, 3 if p.dot else 2)
        if c.kind == "valu":
            if p.trans and not c.trans and vw & cr: n = max(n, 1)
            if ("permlane" in c.op or c.dpp) and vw & cr: n = max(n, 2)
            if c.op.startswith(("v_readfirstlane","v_readlane")) and vw & cr: n = max(n, 1)
            if sw & cr: n = max(n, 2)
        if p.dot and (vw & (cr | cw)):
            if c.kind == "valu" and c.op == p.op:
                ops = [x for x in c.r]
                t = c.text.split(None,1)[1].split(",")
                ab = set(regs_of(t[1].split()[0]) + regs_of(t[2].split()[0]))
                if vw & ab: n = max(n, 3)
            else: n = max(n, 3)
        if c.kind == "vmem" and sw & cr: n = max(n, 5)
        if ("s","exec") in sw and c.kind == "mfma": n = max(n, 4)
    if p.kind == "mfma":
        D = set(p.D); big = 12 if p.passes == 8 else 8
        if c.kind == "mfma":
            if D & set(c.A + c.B): n = max(n, big)
            if D & set(c.C):
                if not (c.C == p.D and c.passes == p.passes): n = max(n, big - 2)
            elif D & set(c.D): n = max(n, big - 2)
        elif c.kind in ("valu","vmem","ds"):
            if D & (cr | cw): n = max(n, big)
        if c.kind == "valu" and set(p.C) & cw: n = max(n, 7 if p.passes == 8 else 3)
    if p.kind == "salu" and ("s","m0") in pw and c.kind in ("vmem",) and getattr(c,"lds",False): n = max(n, 1)
    if p.kind == "vmem" and getattr(p,"store",False) and p.wide and set(p.data) & cw: n = max(n, 2)
    return n

class Kern:
    def __init__(self, name, vgpr=256, sgpr=102, accum=None):
        self.name = name; self.L = []; self.vgpr = vgpr; self.sgpr = sgpr; self.accum = accum
        self.nlab = 0; self.vmq = []; self.lgq = []; self.tail = []
    def __call__(self, s, tag=None):
        for ln in s.split("\n"):
            ln = ln.strip()
            if ln:
                self.L.append("    " + ln)
                if ln.startswith(("buffer_","global_")): self.vmq.append(tag)
                if ln.startswith("ds_"): self.lgq.append(tag)
    def label(self, l): self.L.append(f"{l}:")
    def newlabel(self, p="L"):
        self.nlab += 1
        return f"{p}_{self.name}_{self.nlab}"
    def vmn(self, tag):
        idx = max(i for i, t in enumerate(self.vmq) if t == tag)
        return len(self.vmq) - 1 - idx
    def waitvm(self, tag, extra=""):
        n = min(63, self.vmn(tag))
        self(f"s_waitcnt vmcnt({n}) {extra}".strip())
    def lgn(self, tag):
        idx = max(i for i, t in enumerate(self.lgq) if t == tag)
        return min(15, len(self.lgq) - 1 - idx)
    def waitlg(self, tag):
        self(f"s_waitcnt lgkmcnt({self.lgn(tag)})")
    def fix(self, verbose=True):
        out = []; hist = []; ins = 0
        for ln in self.L:
            t = ln.strip()
            if t.endswith(":") or t.startswith((".",";")):
                out.append(ln); continue
            c = I(t)
            d = 0; req = 0
            for p in reversed(hist):
                nd = need(p, c)
                if nd - d > req: req = nd - d; why = p.text
                d += p.ws
                if d >= 20: break
            if req > 0:
                if verbose: print(f"[{self.name}] +{req} ws before '{t}' (after '{why}')")
                ins += 1
                while req > 0:
                    m = min(req, 16)
                    nop = f"s_nop {m-1}"
                    out.append("    " + nop); hist.append(I(nop)); req -= m
            out.append(ln); hist.append(c)
            if len(hist) > 40: hist = hist[-30:]
        self.L = out
        return ins
    def text(self):
        h = f".globl {self.name}\n.p2align 8\n.type {self.name},@function\n{self.name}:\n"
        return h + "\n".join(self.L) + "\n"
    def desc(self):
        acc = self.accum if self.accum is not None else min(256, (self.vgpr + 3) // 4 * 4)
        return f""".p2align 6
.amdhsa_kernel {self.name}
  .amdhsa_next_free_vgpr {self.vgpr}
  .amdhsa_next_free_sgpr {self.sgpr}
  .amdhsa_accum_offset {acc}
  .amdhsa_group_segment_fixed_size 0
  .amdhsa_kernarg_size 88
  .amdhsa_user_sgpr_count 2
  .amdhsa_user_sgpr_kernarg_segment_ptr 1
  .amdhsa_system_sgpr_workgroup_id_x 1
.end_amdhsa_kernel
"""
def emit(path, launches, kerns):
    s = HEADER
    for (k, grid, block, lds) in launches:
        s += f"; @launch kernel={k} grid=({grid},1,1) block=({block},1,1) lds={lds}\n"
    s += '.amdgcn_target "amdgcn-amd-amdhsa--gfx950"\n.text\n'
    for k in kerns: s += k.text()
    s += '.section .rodata,"a"\n'
    for k in kerns: s += k.desc()
    open(path, "w").write(s)

def verify(k):
    vm = []; lg = []; saved = {}; dead = False; nerr = 0
    for ln in k.L:
        t = ln.strip()
        if t.startswith((".",";")): continue
        if t.endswith(":"):
            l = t[:-1]
            if dead:
                if dead == 1 or l in saved: vm, lg = [list(x) for x in saved.get(l, ([], []))]
                dead = 2
            continue
        dead = False
        c = I(t)
        if c.op == "s_waitcnt":
            m = re.search(r"vmcnt\((\d+)\)", t)
            if m:
                n = int(m.group(1)); vm = vm[len(vm)-n:] if n < len(vm) and n else ([] if n == 0 else vm)
            m = re.search(r"lgkmcnt\((\d+)\)", t)
            if m:
                n = int(m.group(1)); lg = lg[len(lg)-n:] if n < len(lg) and n else ([] if n == 0 else lg)
            continue
        touched = set(c.r) | set(c.w)
        for q, nm in ((vm, "vm"), (lg, "lg")):
            for d, txt in q:
                if d & touched:
                    if (nm == "vm" and c.kind == "vmem" and not (d & set(c.r))) or (nm == "lg" and c.kind == "ds" and not (d & set(c.r))): continue
                    nerr += 1
                    if nerr < 20: print(f"[{k.name}] VERIFY: '{t}' touches pending {nm} dest of '{txt}'")
        if c.kind == "vmem": vm.append((set(c.w), t))
        if c.kind == "ds": lg.append((set(c.w), t))
        if c.op.startswith(("s_cbranch", "s_branch", "s_call")):
            l = t.split()[-1]
            if l not in saved: saved[l] = (list(vm), list(lg))
        if c.op in ("s_branch", "s_endpgm", "s_setpc_b64"): dead = 1
    return nerr
```

```python
import math, sys
from asmlib2 import *

QF=0x000000; KV=0x200000; OF=0x600000
SETB=0x800000; SETS=0x180000; GO=0; HO=0x40000; XO=0x80000; SO=0xC0000; UO=0xC8000
WOF=0x1400000; W1F=0x1480000; W2F=0x1500000; W3F=0x1580000; W4F=0x1700000
GM=0x18C0000
XT=0x1900000
DBGOFF=0x1E00000
WS_SZ=0x2000000
ONES=0x3F803F80
EPS=1e-5
LOG2E=1.4426950408889634
GA = -2*LOG2E*math.sqrt(2/math.pi)*0.044715
GB = -2*LOG2E*math.sqrt(2/math.pi)
OPT = dict(stamp=False, slow=False, I0=3, pref=True, rot=2, k1sc=1)

def stamp(k, name):
    if not OPT['stamp']: return
    if not any(name.startswith(p) for p in OPT.get('sts','m').split(',')): return
    i = len(k.stn)
    if i >= k.smax: print("stamp dropped", name); return
    k.stn.append(name)
    k(f"{'s_memtime' if OPT['stamp']==2 else 's_memrealtime'} s[{k.sb+2*i}:{k.sb+1+2*i}]")
def stamp_out(k, kidx, vt, sw):
    if not OPT['stamp']: return
    k("s_waitcnt vmcnt(0)")
    k.smax += 1
    OPT['sts'] = OPT.get('sts','m') + ',end'
    stamp(k, "end")
    nst = len(k.stn)-1
    k("s_waitcnt lgkmcnt(0)")
    k(f"s_lshl_b32 s61, s2, 2\ns_add_u32 s60, s{sw}, s61\ns_lshl_b32 s60, s60, 6\ns_add_u32 s60, s60, {DBGOFF+kidx*0x10000:#x}")
    for i in range(16): k(f"v_mov_b32 v{vt+i}, s{k.sb+2*min(i,nst)}")
    k(f"v_mov_b32 v{vt+16}, 0")
    for i in range(4): k(f"buffer_store_dwordx4 v[{vt+4*i}:{vt+4*i+3}], v{vt+16}, s[4:7], s60 offen offset:{16*i}")
    k.L.insert(0, "; STAMPS " + ",".join(k.stn))

def xhalf_add(k, a, t):
    k(f"v_mov_b32 v{t}, v{a}")
    k(f"v_permlane32_swap_b32 v{a}, v{t}")
    k(f"v_add_f32 v{a}, v{a}, v{t}")
def x16_add(k, a, t):
    k(f"v_mov_b32 v{t}, v{a}")
    k(f"v_permlane16_swap_b32 v{a}, v{t}")
    k(f"v_add_f32 v{a}, v{a}, v{t}")
def stats_from_sums(k, s, q, mu, r, t):
    k(f"v_mul_f32 v{mu}, {fhex(1/512)}, v{s}")
    k(f"v_mul_f32 v{q}, {fhex(1/512)}, v{q}")
    k(f"v_fma_f32 v{q}, -v{mu}, v{mu}, v{q}")
    k(f"v_max_f32 v{q}, 0, v{q}")
    k(f"v_add_f32 v{t}, {fhex(EPS)}, v{q}")
    k(f"v_rsq_f32 v{r}, v{t}")
def code_prefetch(k, lab0, lab1, part_sgpr, vt):
    sk = k.newlabel()
    k(f"s_lshl_b32 s64, s{part_sgpr}, 13")
    k(f"s_cmp_ge_u32 s64, {lab1}-{lab0}\ns_cbranch_scc1 {sk}")
    pc = k.newlabel()
    k("s_getpc_b64 s[62:63]")
    k.label(pc)
    k(f"s_add_u32 s62, s62, {lab0}-{pc}\ns_addc_u32 s63, s63, 0")
    k(f"v_lshlrev_b32 v{vt}, 7, v1\nv_add_u32 v{vt}, s64, v{vt}\nv_min_u32 v{vt}, {lab1}-{lab0}-4, v{vt}\nv_mov_b32 v{vt+1}, s63")
    k(f"v_add_co_u32 v{vt}, vcc, s62, v{vt}\nv_addc_co_u32 v{vt+1}, vcc, 0, v{vt+1}, vcc")
    n0 = len(k.vmq)
    k(f"global_load_dword v{vt+2}, v[{vt}:{vt+1}], off")
    del k.vmq[n0:]
    k.label(sk)

SLOT=28928; XOFF=12288; XW=4160; STG=5*SLOT; MUA=STG+16384
def gen_k1():
    k = Kern("qkv_kernel", vgpr=200, sgpr=102); k.sb = 70; k.stn = []; k.smax = 6
    done = "L_k1_done"
    k(f"s_cmp_ge_u32 s2, 256\ns_cbranch_scc1 {done}")
    stamp(k,"m_start")
    k("s_load_dwordx16 s[32:47], s[0:1], 0")
    k("s_load_dwordx2 s[4:5], s[0:1], 80")
    k(f"s_mov_b32 s6, {WS_SZ:#x}\ns_mov_b32 s7, 0x00020000")
    k(f"s_mov_b32 s10, {2048*512*2:#x}\ns_mov_b32 s11, 0x00020000\ns_mov_b32 s14, {512*1536*2:#x}\ns_mov_b32 s15, 0x00020000")
    k("v_lshrrev_b32 v2, 6, v0\nv_and_b32 v1, 63, v0")
    k("s_and_b32 s16, s2, 7\ns_lshr_b32 s19, s2, 3\ns_and_b32 s18, s19, 1\ns_lshl_b32 s16, s16, 1\ns_add_u32 s16, s16, s18\ns_lshr_b32 s17, s19, 1")
    k("v_readfirstlane_b32 s18, v2")
    k("v_lshrrev_b32 v9, 3, v1\nv_and_b32 v10, 7, v1\nv_and_b32 v11, 2, v9\nv_lshlrev_b32 v11, 1, v11\nv_xor_b32 v10, v10, v11")
    k("v_lshlrev_b32 v4, 10, v9\nv_lshl_add_u32 v4, v10, 4, v4")
    for i in range(1,4): k(f"v_add_u32 v{4+i}, {8192*i:#x}, v4")
    k("v_lshrrev_b32 v9, 2, v1\nv_and_b32 v10, 3, v1\nv_mul_u32_u24 v8, 3072, v9\nv_lshl_add_u32 v8, v10, 4, v8")
    k("s_lshl_b32 s22, s16, 2\ns_add_u32 s22, s22, s18")
    k("s_lshl_b32 s24, s22, 15")
    k(f"s_mul_i32 s25, s18, {16*3072}\ns_lshl_b32 s26, s17, 6\ns_add_u32 s25, s25, s26")
    k(f"s_mul_i32 s26, s18, 3072\ns_mul_i32 s27, s18, {XW}\ns_add_u32 s27, s27, {XOFF}")
    if OPT['pref']:
        k("s_lshl_b32 s28, s19, 2\ns_add_u32 s28, s28, s18")
        code_prefetch(k, "L_code_begin", "L_code_end", 28, 196)
    k("s_waitcnt lgkmcnt(0)")
    stamp(k,"m_karg")
    k("s_mov_b32 s8, s32\ns_mov_b32 s9, s33\ns_mov_b32 s12, s34\ns_mov_b32 s13, s35")
    def issue(c):
        sl = c % 5
        if OPT.get('rot',1):
            if c: k("s_add_u32 s20, s20, 1\ns_and_b32 s20, s20, 7")
            k(f"s_mul_i32 s28, s20, {64*3072}\ns_add_u32 m0, s26, {sl*SLOT}\ns_add_u32 s28, s25, s28")
        else: k(f"s_add_u32 m0, s26, {sl*SLOT}\ns_add_u32 s28, s25, {c*64*3072}")
        for g in range(3): k(f"buffer_load_dwordx4 v8, s[12:15], s28 offen offset:{1024*g} lds", tag=f"c{c}")
        if OPT.get('rot',1): k("s_lshl_b32 s28, s20, 7\ns_add_u32 s28, s24, s28")
        else: k(f"s_add_u32 s28, s24, {c*128}")
        for i in range(4):
            k(f"s_add_u32 m0, s27, {sl*SLOT+i*1040}")
            k(f"buffer_load_dwordx4 v{4+i}, s[8:11], s28 offen lds", tag=f"c{c}")
    k("s_lshr_b32 s20, s17, 1")
    if OPT.get('rot',1) == 2: k("s_add_u32 s20, s20, s2")
    k("s_and_b32 s20, s20, 7")
    I0 = OPT['I0']
    for c in range(I0): issue(c)
    issued = I0
    k("s_lshl_b32 s29, s2, 2\ns_add_u32 s29, s29, s18")
    SJ = {}
    def decode(r):
        S = 48+4*r
        so, dst, fd, st = 84+4*r, 85+4*r, 86+4*r, 87+4*r
        SJ[r] = (S, so, dst, fd, st)
        k(f"s_mov_b32 s{S+3}, 0x00020000")
        end = k.newlabel()
        def pairmode(v, jstride, base):
            k(f"s_lshr_b32 s30, s{v}, 4\ns_and_b32 s31, s{v}, 15")
            k(f"s_lshl_b32 s{so}, s30, 15\ns_lshl_b32 s{fd}, s31, 6\ns_add_u32 s{so}, s{so}, s{fd}")
            k(f"s_lshr_b32 s{dst}, s31, 1\ns_mul_i32 s{dst}, s{dst}, {jstride}\ns_lshl_b32 s30, s30, 12\ns_add_u32 s{dst}, s{dst}, s30")
            k(f"s_and_b32 s31, s31, 1\ns_lshl_b32 s31, s31, 11\ns_add_u32 s{dst}, s{dst}, s31\ns_add_u32 s{dst}, s{dst}, {base}")
            k(f"s_mov_b32 s{fd}, 1024\ns_mov_b32 s{st}, 1024")
        def w4(off):
            k(f"s_mov_b32 s{S}, s46\ns_mov_b32 s{S+1}, s47\ns_mov_b32 s{S+2}, {1376*512*2:#x}")
            k(f"s_add_u32 s65, s29, {off & 0xffffffff:#x}")
            pairmode(65, 43*4096, f"{W4F:#x}")
        def w3(off):
            k(f"s_mov_b32 s{S}, s44\ns_mov_b32 s{S+1}, s45\ns_mov_b32 s{S+2}, {1376*512*2:#x}")
            k(f"s_add_u32 s65, s29, {off & 0xffffffff:#x}")
            k(f"s_mul_i32 s30, s65, 1525\ns_lshr_b32 s30, s30, 16\ns_mul_i32 s31, s30, 43\ns_sub_u32 s31, s65, s31")
            k(f"s_mul_i32 s{so}, s30, {32*2752}\ns_lshl_b32 s{fd}, s31, 6\ns_add_u32 s{so}, s{so}, s{fd}")
            k(f"s_lshl_b32 s{dst}, s31, 15\ns_lshl_b32 s30, s30, 10\ns_add_u32 s{dst}, s{dst}, s30\ns_add_u32 s{dst}, s{dst}, {W3F:#x}")
            k(f"s_mov_b32 s{fd}, 16384\ns_mov_b32 s{st}, 2752")
        if r == 0:
            l4 = k.newlabel()
            k(f"s_cmp_ge_u32 s29, 768\ns_cbranch_scc1 {l4}")
            k(f"s_lshr_b32 s66, s29, 8")
            k(f"s_cmp_eq_u32 s66, 1\ns_cselect_b32 s{S}, s40, s36\ns_cselect_b32 s{S+1}, s41, s37")
            k(f"s_cmp_eq_u32 s66, 2\ns_cselect_b32 s{S}, s42, s{S}\ns_cselect_b32 s{S+1}, s43, s{S+1}")
            k(f"s_mov_b32 s{S+2}, {512*512*2:#x}")
            k(f"s_and_b32 s65, s29, 255\ns_lshl_b32 s66, s66, 19\ns_add_u32 s66, s66, {WOF:#x}")
            pairmode(65, 65536, "s66")
            k(f"s_branch {end}")
            k.label(l4); w4(-768)
        elif r == 1:
            l3 = k.newlabel()
            k(f"s_cmp_ge_u32 s29, 432\ns_cbranch_scc1 {l3}")
            w4(256); k(f"s_branch {end}")
            k.label(l3); w3(-432)
        else:
            w3(592)
        k.label(end)
    def sj_issue(r, m0expr):
        S, so, dst, fd, st = SJ[r]
        k(f"v_mul_u32_u24 v12, s{st}, v9\nv_lshl_add_u32 v12, v10, 4, v12")
        k(m0expr(0))
        k(f"buffer_load_dwordx4 v12, s[{S}:{S+3}], s{so} offen lds", tag=f"sj{r}")
        k(f"s_lshl_b32 s30, s{st}, 4\ns_add_u32 s30, s30, s{so}")
        k(m0expr(1024))
        k(f"buffer_load_dwordx4 v12, s[{S}:{S+3}], s30 offen lds", tag=f"sj{r}")
    def sj_proc(r, sbase, T):
        S, so, dst, fd, st = SJ[r]
        k(f"v_add_u32 v{T+8}, s{sbase}, v13")
        for b in range(2):
            for a in range(2): k(f"ds_read_b64_tr_b16 {vr(T+4*b+2*a,2)}, v{T+8} offset:{256*a+8*b}")
        k(f"s_add_u32 s30, s{dst}, s{fd}")
        k("s_waitcnt lgkmcnt(0)")
        k(f"buffer_store_dwordx4 {vr(T)}, v3, s[4:7], s{dst} offen{' sc1' if OPT.get('k1sc') else ''}", tag="st")
        k(f"buffer_store_dwordx4 {vr(T+4)}, v3, s[4:7], s30 offen{' sc1' if OPT.get('k1sc') else ''}", tag="st")
    for r in range(3): decode(r)
    k(f"s_lshl_b32 s67, s18, 12\ns_add_u32 s67, s67, {STG}\ns_add_u32 s68, s67, 2048\ns_add_u32 s69, s27, {3*SLOT}")
    k("v_lshrrev_b32 v13, 4, v1\nv_lshlrev_b32 v13, 3, v13\nv_and_b32 v14, 3, v9\nv_add_u32 v13, v13, v14\nv_lshlrev_b32 v13, 6, v13\nv_lshl_add_u32 v13, v10, 4, v13")
    k("v_lshlrev_b32 v3, 4, v1")
    XA0=16; XA1=19; WA=22
    k("v_and_b32 v14, 31, v1\nv_lshrrev_b32 v15, 5, v1")
    k(f"v_lshrrev_b32 v25, 3, v14\nv_mul_u32_u24 v25, 1040, v25\nv_and_b32 v26, 7, v14\nv_lshl_add_u32 v25, v26, 7, v25\nv_lshl_add_u32 v25, v15, 4, v25\nv_add_u32 v25, s27, v25")
    k(f"v_and_b32 v26, 2, v14\nv_lshlrev_b32 v26, 5, v26\nv_add_u32 v{XA0}, v25, v26\nv_xor_b32 v26, 64, v26\nv_add_u32 v{XA1}, v25, v26")
    k("v_and_b32 v25, 3, v9\nv_lshl_add_u32 v25, v15, 3, v25\nv_lshlrev_b32 v25, 6, v25\nv_and_b32 v26, 16, v1\nv_lshl_add_u32 v25, v26, 1, v25")
    k(f"v_and_b32 v26, 1, v1\nv_lshl_add_u32 v25, v26, 4, v25\nv_and_b32 v26, 2, v1\nv_lshl_add_u32 v{WA}, v26, 2, v25")
    for b in (XA0, XA1, WA):
        k(f"v_add_u32 v{b+1}, {2*SLOT:#x}, v{b}\nv_add_u32 v{b+2}, {4*SLOT:#x}, v{b}")
    ACC=32; CSA=80; ONE=112; XB=[116,120]; WB=[124,136]; SUM=148; SQ=149; CV=150; T=152
    for r in range(80): k(f"v_mov_b32 v{ACC+r}, 0")
    for r in range(4): k(f"v_mov_b32 v{ONE+r}, {ONES:#x}")
    k(f"v_mov_b32 v{SUM}, 0\nv_mov_b32 v{SQ}, 0\nv_mov_b32 v{CV}, 0")
    def clears():
        k(f"s_lshl_b32 s30, s29, 11\ns_add_u32 s30, s30, {OF:#x}")
        for r in range(4): k(f"v_mov_b32 v{T+r}, -1")
        sk = k.newlabel()
        k(f"s_cmp_gt_u32 s29, 256\ns_cbranch_scc1 {sk}")
        k(f"s_lshl_b32 s31, s29, 10\ns_add_u32 s31, s31, {GM:#x}")
        n0 = len(k.vmq)
        k(f"buffer_store_dwordx4 {vr(T)}, v3, s[4:7], s31 offen sc1")
        del k.vmq[n0:]
        k.label(sk)
        for i in range(2): k(f"buffer_store_dwordx4 {vr(T)}, v3, s[4:7], s30 offen offset:{1024*i} sc1", tag="clr")
    assert XT == GM + 0x40000
    def reads(n):
        c, ks = n//4, n%4; sl = c%5; st = sl//2; imm = (sl-2*st)*SLOT
        xa = (XA0 if ks<2 else XA1)+st
        k(f"ds_read_b128 {vr(XB[n%2])}, v{xa} offset:{imm+32*(ks&1)}")
        for g in range(3):
            for a in range(2): k(f"ds_read_b64_tr_b16 {vr(WB[n%2]+4*g+2*a,2)}, v{WA+st} offset:{imm+ks*3072+g*1024+a*256}")
    def comp(n):
        x = XB[n%2]; w = WB[n%2]
        M = [f"v_mfma_f32_32x32x16_bf16 {vr(ACC,16)}, {vr(w)}, {vr(x)}, {vr(ACC,16)}",
             f"v_mfma_f32_32x32x16_bf16 {vr(ACC+16,16)}, {vr(w+4)}, {vr(x)}, {vr(ACC+16,16)}",
             f"v_mfma_f32_32x32x16_bf16 {vr(ACC+32,16)}, {vr(x)}, {vr(w+8)}, {vr(ACC+32,16)}",
             f"v_mfma_f32_32x32x16_bf16 {vr(CSA,16)}, {vr(w)}, {vr(ONE)}, {vr(CSA,16)}",
             f"v_mfma_f32_32x32x16_bf16 {vr(CSA+16,16)}, {vr(w+4)}, {vr(ONE)}, {vr(CSA+16,16)}"]
        D = []
        for r in range(4):
            D += [f"v_dot2_f32_bf16 v{SUM}, v{x+r}, v{ONE}, v{SUM}", f"v_dot2_f32_bf16 v{SQ}, v{x+r}, v{x+r}, v{SQ}",
                  f"v_dot2_f32_bf16 v{CV}, v{w+8+r}, v{ONE}, v{CV}"]
        for i in range(5):
            k(M[i])
            for d in D[3*i:3*i+3]: k(d)
    extra = {0: [lambda: sj_issue(0, lambda o: f"s_add_u32 m0, s67, {o}"), lambda: sj_issue(1, lambda o: f"s_add_u32 m0, s68, {o}")],
             1: [clears]}
    stamp(k,"m_pre")
    for n in range(32):
        c = n//4
        if n%4 == 0:
            k.waitvm(f"c{c}", "lgkmcnt(0)")
            k("s_barrier")
            if c == 0: stamp(k,"m_c0")
            stamp(k, f"{'a' if c<4 else 'b'}_c{c}")
            reads(n)
            cnt = 2 if (c == 0 and I0 <= 3) else 1
            while cnt and issued < 8 and issued-5 < c:
                issue(issued); issued += 1; cnt -= 1
            for f in extra.get(c, []): f()
            if c == 4:
                sk = k.newlabel()
                k(f"s_cmp_ge_u32 s29, 96\ns_cbranch_scc1 {sk}")
                n0 = len(k.vmq)
                sj_issue(2, lambda o: f"s_add_u32 m0, s69, {o}")
                del k.vmq[n0:]
                k.label(sk)
            if n > 0: comp(n-1)
            if c == 5:
                k.waitvm("sj1")
                sj_proc(0, 67, T); sj_proc(1, 68, T+10)
        else:
            reads(n)
            k("s_waitcnt lgkmcnt(7)")
            comp(n-1)
    assert issued == 8
    k("s_waitcnt lgkmcnt(0)")
    comp(31)
    stamp(k,"m_loop")
    MU=27; RS=28
    xhalf_add(k, SUM, 25); xhalf_add(k, SQ, 25); xhalf_add(k, CV, 25)
    stats_from_sums(k, SUM, SQ, MU, RS, 25)
    k(f"s_lshl_b32 s30, s18, 8\ns_add_u32 s30, s30, {MUA}")
    k("v_lshlrev_b32 v29, 2, v14\nv_add_u32 v29, s30, v29")
    k(f"ds_write_b32 v29, v{MU}\nds_write_b32 v29, v{RS} offset:128")
    k("v_lshlrev_b32 v29, 4, v15\nv_add_u32 v29, s30, v29")
    k(f"v_mul_f32 v30, {fhex(0.25*LOG2E)}, v{RS}")
    TM=160
    k("s_waitcnt lgkmcnt(0)")
    for a in range(4): k(f"ds_read_b128 {vr(TM+4*a)}, v29 offset:{32*a}\nds_read_b128 {vr(TM+16+4*a)}, v29 offset:{128+32*a}")
    k(f"s_lshl_b32 s31, s17, 17\ns_lshl_b32 s30, s22, 10\ns_add_u32 s31, s31, s30\ns_add_u32 s65, s31, 0x10000")
    k(f"s_lshl_b32 s66, s31, 1\ns_add_u32 s66, s66, {KV:#x}\ns_add_u32 s67, s66, 0x20000")
    P=116
    for b in range(2):
        for r in range(16): k(f"v_fma_f32 v{ACC+16*b+r}, -v{MU}, v{CSA+16*b+r}, v{ACC+16*b+r}")
        for r in range(16): k(f"v_mul_f32 v{ACC+16*b+r}, v{30 if b==0 else RS}, v{ACC+16*b+r}")
        for r in range(8): k(f"v_cvt_pk_bf16_f32 v{P+8*b+r}, v{ACC+16*b+2*r}, v{ACC+16*b+2*r+1}")
        k(f"buffer_store_dwordx4 {vr(P+8*b)}, v3, s[4:7], s{31 if b==0 else 66} offen{' sc1' if OPT.get('k1sc') else ''}")
        k(f"buffer_store_dwordx4 {vr(P+8*b+4)}, v3, s[4:7], s{65 if b==0 else 67} offen{' sc1' if OPT.get('k1sc') else ''}")
    k("v_lshrrev_b32 v26, 4, v14\nv_lshlrev_b32 v26, 17, v26\nv_and_b32 v29, 15, v14\nv_lshl_add_u32 v26, v29, 4, v26\nv_lshl_add_u32 v26, v15, 8, v26")
    k("s_waitcnt lgkmcnt(0)")
    for r in range(16): k(f"v_fma_f32 v{ACC+32+r}, -v{TM+r}, v{CV}, v{ACC+32+r}")
    for r in range(16): k(f"v_mul_f32 v{ACC+32+r}, v{TM+16+r}, v{ACC+32+r}")
    for r in range(8): k(f"v_cvt_pk_bf16_f32 v{P+16+r}, v{ACC+32+2*r}, v{ACC+32+2*r+1}")
    k(f"buffer_store_dwordx4 {vr(P+16)}, v26, s[4:7], s66 offen offset:1024{' sc1' if OPT.get('k1sc') else ''}")
    k(f"buffer_store_dwordx4 {vr(P+20)}, v26, s[4:7], s66 offen offset:1536{' sc1' if OPT.get('k1sc') else ''}")
    stamp(k,"m_epi")
    fin = k.newlabel()
    k(f"s_cmp_ge_u32 s29, 96\ns_cbranch_scc1 {fin}")
    k("s_waitcnt vmcnt(6)")
    sj_proc(2, 69, T)
    k.label(fin)
    stamp_out(k, 0, 160, 18)
    k.label(done)
    k("s_endpgm")
    return k
```

```python
from gen3 import *

WA=0; WB=0x10000; RING=0x20000; RP=2064; NR=13; MISC=0x26900; CSL=MISC; STL=MISC+256
UT=43*1024
BOUND=20000
OOB=0x80000000
def M16(d, a, b, c): return f"v_mfma_f32_16x16x32_bf16 {d}, {a}, {b}, {c}"
def M32(d, a, b, c): return f"v_mfma_f32_32x32x16_bf16 {d}, {a}, {b}, {c}"
def w3reg(t, s):
    n = 16*t+s
    return vr(144+4*n) if n < 28 else ar(176+4*(n-28))
def w4reg(ks, nb):
    b = 64+16*ks if ks < 7 else 16*(ks-7)
    return ar(b+4*nb)
pr = lambda b: vr(b,2)

class SA:
    def __init__(s, lo, hi): s.n = lo; s.hi = hi; s.m = {}
    def __call__(s, name, align=1, cnt=1):
        if name in s.m: return s.m[name]
        while s.n % align: s.n += 1
        r = s.n; s.n += cnt
        assert s.n <= s.hi, "out of sgprs"
        s.m[name] = f"s{r}"; return s.m[name]

def gen_k2():
    k = Kern("main_kernel", vgpr=512, sgpr=102, accum=256); k.sb = 78; k.stn = []; k.smax = 11
    k.label("L_code_begin")
    done = "L_k2_done"
    S_ = SA(19, 78)
    X, HD, W, T = "s16", "s17", "s18", S_("T")
    S_("RET", 2, 2); T2 = S_("T2")
    def em(x):
        if callable(x): x()
        elif isinstance(x, tuple): k(x[0], tag=x[1])
        else: k(x)
    k(f"s_cmp_ge_u32 s2, 256\ns_cbranch_scc1 {done}")
    stamp(k,"m_start")
    k("s_load_dwordx2 s[4:5], s[0:1], 80\ns_load_dwordx2 s[8:9], s[0:1], 0\ns_load_dwordx2 s[12:13], s[0:1], 64")
    k(f"s_mov_b32 s6, {WS_SZ:#x}\ns_mov_b32 s7, 0x00020000\ns_mov_b32 s10, 0x200000\ns_mov_b32 s11, 0x00020000\ns_mov_b32 s14, 0x200000\ns_mov_b32 s15, 0x00020000")
    k("v_lshrrev_b32 v2, 6, v0\nv_and_b32 v1, 63, v0")
    k("s_and_b32 s16, s2, 7\ns_lshr_b32 s17, s2, 3")
    k("v_readfirstlane_b32 s18, v2")
    k("v_lshlrev_b32 v3, 4, v1")
    for q in range(1,4): k(f"v_add_u32 v{3+q}, {4096*q:#x}, v3")
    sKV, sRW = S_("KV"), S_("RW")
    k(f"s_lshl_b32 {T2}, {HD}, 16\ns_lshl_b32 {T}, {X}, 13\ns_add_u32 {T2}, {T2}, {T}\ns_lshl_b32 {T}, {W}, 11\ns_add_u32 {T2}, {T2}, {T}")
    k(f"s_lshl_b32 {sKV}, {HD}, 17\ns_add_u32 {sKV}, {sKV}, {T}\ns_add_u32 {sKV}, {sKV}, {KV:#x}")
    k(f"s_mul_i32 {sRW}, {W}, {RP}\ns_add_u32 {sRW}, {sRW}, {RING:#x}")
    QA=16; QB=20; C=24; S=[40,56]; P=[72,80]; O=[88,104]; KR=120; V0=124; V1=128
    KA=7; VA0=8; VA1=9; XV=132; XTV=133
    k(f"s_mov_b32 m0, {sRW}")
    k("s_waitcnt lgkmcnt(0)")
    stamp(k,"k_karg")
    k(f"buffer_load_dwordx4 v3, s[4:7], {sKV} offen lds", tag="g0")
    k(f"buffer_load_dwordx4 {vr(QA)}, v3, s[4:7], {T2} offen", tag="g0")
    k(f"buffer_load_dwordx4 {vr(QB)}, v3, s[4:7], {T2} offen offset:1024", tag="g0")
    k(f"buffer_load_dwordx4 v3, s[4:7], {sKV} offen offset:1024 lds", tag="g0")
    def kvm0(n):
        a = 4*n % NR
        return f"s_add_u32 m0, {sRW}, {a*RP}" if a+3 < NR else f"s_mov_b32 m0, {S_('WR%d'%a)}"
    kvso = f"s_add_u32 {sKV}, {sKV}, 16384"
    def kvld(n): return [(f"buffer_load_dwordx4 v{5 if n & 1 else 3}, s[4:7], {sKV} offen offset:{o} lds", f"g{n}") for o in (0, 1024)]
    for x in [kvm0(1)] + kvld(1) + [kvm0(2), kvso] + kvld(2): em(x)
    MG = "s3"; J, MTB, MT, JW, W14, T14 = [S_(n) for n in "J MTB MT JW W14 T14".split()]
    k(f"s_lshr_b32 {MG}, {HD}, 3\ns_and_b32 {J}, {HD}, 7")
    k(f"s_lshl_b32 {MTB}, {X}, 4\ns_lshl_b32 {T}, {MG}, 2\ns_add_u32 {MTB}, {MTB}, {T}\ns_add_u32 {MT}, {MTB}, {W}")
    k(f"s_lshl_b32 {JW}, {J}, 2\ns_add_u32 {JW}, {JW}, {W}\ns_lshl_b32 {W14}, {W}, 14\ns_lshl_b32 {T14}, {MT}, 14")
    sONE, sM2, sCNT, sXC = S_("ONE"), S_("M2"), S_("CNT"), S_("XC")
    RET = S_("RET", 2, 2); RETP = f"s[{RET[1:]}:{int(RET[1:])+1}]"
    k(f"s_mov_b32 {sONE}, {ONES:#x}\ns_mov_b32 {sM2}, -2\ns_mov_b32 {sCNT}, 0")
    k(f"s_getreg_b32 {sXC}, hwreg(HW_REG_XCC_ID, 0, 4)")
    for r in range(4): k(f"v_accvgpr_write_b32 a{168+r}, -1")
    k("v_and_b32 v10, 31, v1\nv_lshrrev_b32 v11, 5, v1\nv_and_b32 v12, 15, v1\nv_lshrrev_b32 v13, 4, v1")
    sXT = S_("XT")
    k(f"s_lshl_b32 {sXT}, {X}, 7\ns_add_u32 {sXT}, {sXT}, {XT:#x}\ns_lshl_b32 {T}, {HD}, 2")
    k(f"v_mov_b32 v14, {T}\nv_mov_b32 v15, {sXC}")
    k(f"buffer_store_dword v15, v14, s[4:7], {sXT} offen sc1", tag="clr")
    sCL, sSet, sXT_, sW2a, sW2b = S_("CL"), S_("Set"), S_("XTl"), S_("W2a"), S_("W2b")
    k(f"s_mul_i32 {sSet}, {X}, {SETS:#x}\ns_add_u32 {sSet}, {sSet}, {SETB:#x}")
    k(f"s_lshl_b32 {T}, {HD}, 2\ns_add_u32 {T}, {T}, {W}\ns_mul_i32 {T}, {T}, 12288\ns_add_u32 {sCL}, {sSet}, {T}")
    CL = [f"buffer_store_dwordx4 a[168:171], v{3+i//4}, s[4:7], {sCL} offen offset:{1024*(i%4)}" for i in range(12)]
    atr = []
    def clpair(i):
        def f():
            a = k.newlabel("Z"); c = k.newlabel("C")
            k(f"s_cbranch_scc1 {a}")
            for x in CL[i:i+2]: k(x, tag="clr")
            k.label(c)
            atr.append([f"{a}:"] + [x + " sc1" for x in CL[i:i+2]] + [f"s_branch {c}"])
        return f
    k(f"v_lshlrev_b32 v{XV}, 10, v12\nv_lshl_add_u32 v{XV}, v13, 4, v{XV}")
    k(f"s_lshl_b32 {sXT_}, {J}, 7\ns_add_u32 {sXT_}, {sXT_}, {T14}")
    EL = [(f"buffer_load_dwordx4 a[160:163], v{XV}, s[8:11], {sXT_} offen", "w"), (f"buffer_load_dwordx4 a[164:167], v{XV}, s[8:11], {sXT_} offen offset:64", "w")]
    sSh, sSx = S_("Sh"), S_("Sx")
    k(f"s_and_b32 {T}, {MT}, 15\ns_lshl_b32 {T}, {T}, 10\ns_add_u32 {sSh}, {sSet}, {T}\ns_add_u32 {sSh}, {sSh}, {SO:#x}\ns_add_u32 {sSx}, {sSh}, 0x4000")
    sWO, sW1, sSA, sSB = S_("WO"), S_("W1"), RET, S_("SB")
    k(f"s_lshl_b32 {T2}, {J}, 16\ns_add_u32 {sWO}, {T2}, {W14}\ns_add_u32 {sW1}, {sWO}, {W1F:#x}\ns_add_u32 {sWO}, {sWO}, {WOF:#x}")
    k(f"s_mul_i32 {sSA}, {W}, 6144\ns_mul_i32 {sSB}, {W}, 10240\ns_add_u32 {sSB}, {sSB}, 24576\ns_add_u32 {T2}, {T2}, {W2F:#x}")
    def ldr(dst, so, i, vo=None): return (f"buffer_load_dwordx4 {dst}, {vo or 'v%d' % (3+i//4)}, s[4:7], {so} offen offset:{1024*(i%4)}", "w")
    k(f"s_add_u32 {sW2a}, {T2}, {sSA}\ns_add_u32 {sW2b}, {T2}, {sSB}")
    EL += [ldr(ar(4*i), sW2a, i) for i in range(6)] + [ldr(ar(24+4*i), sW2b, i) for i in range(10)]
    ne = OPT.get('early', 6)
    for x in EL[:ne]: em(x)
    EL = EL[ne:]
    for a in (10, 11, 12):
        r = S_(f"WR{a}")
        k(f"s_cmp_ge_u32 {W}, {NR-a}\ns_cselect_b32 {T}, {NR*RP}, 0\ns_sub_u32 {r}, {sRW}, {T}\ns_add_u32 {r}, {r}, {a*RP}")
    s3 = [S_("3a"), S_("3b"), S_("3c")]; s4 = [S_("4a"), S_("4b"), S_("4c")]
    k(f"s_lshl_b32 {s3[0]}, {JW}, 15\ns_add_u32 {s3[0]}, {s3[0]}, {W3F:#x}\ns_add_u32 {s3[1]}, {s3[0]}, 16384")
    k(f"s_add_u32 {s3[2]}, {JW}, 64\ns_min_u32 {s3[2]}, {s3[2]}, 85\ns_lshl_b32 {s3[2]}, {s3[2]}, 14\ns_add_u32 {s3[2]}, {s3[2]}, {W3F:#x}")
    k(f"s_mul_i32 {s4[0]}, {J}, 43\ns_mul_i32 {T}, {W}, 11\ns_add_u32 {s4[0]}, {s4[0]}, {T}\ns_lshl_b32 {s4[0]}, {s4[0]}, 12\ns_add_u32 {s4[0]}, {s4[0]}, {W4F:#x}")
    k(f"s_add_u32 {s4[1]}, {s4[0]}, 16384\ns_add_u32 {s4[2]}, {s4[0]}, 32768")
    sOs = [S_("Os0"), S_("Os1")]
    k(f"s_lshl_b32 {sOs[0]}, {X}, 18\ns_lshl_b32 {T}, {W}, 16\ns_add_u32 {sOs[0]}, {sOs[0]}, {T}\ns_lshl_b32 {T}, {HD}, 9\ns_add_u32 {sOs[0]}, {sOs[0]}, {T}\ns_add_u32 {sOs[0]}, {sOs[0]}, {OF:#x}\ns_add_u32 {sOs[1]}, {sOs[0]}, 0x8000")
    sOl, sHl, sHs, sGl, sGs, sXl, sXs, sDP, sDN, sMB, sSV = [S_(n) for n in "Ol Hl Hs Gl Gs Xl Xs DP DN MB SV".split()]
    k(f"s_add_u32 {sOl}, {T14}, {OF:#x}\ns_and_b32 {T14}, {T14}, 0x3ffff\ns_add_u32 {T14}, {T14}, {sSet}")
    k(f"s_add_u32 {sHl}, {T14}, {HO:#x}\ns_add_u32 {sXl}, {T14}, {XO:#x}\ns_sub_u32 {sGl}, {T14}, {32+16384-GO:#x}")
    k(f"s_lshl_b32 {T}, {J}, 11\ns_add_u32 {sHs}, {sHl}, {T}\ns_add_u32 {sXs}, {sXl}, {T}\ns_sub_u32 {sGs}, {sHs}, {HO-GO:#x}")
    sOt = MTB2 = S_("Ot")
    k(f"s_add_u32 {sOt}, {sOl}, {T}\nv_lshlrev_b32 v{XV+2}, 5, v1")
    k(f"s_lshl_b32 {T2}, {X}, 15\ns_add_u32 {sMB}, {T2}, {T}\ns_add_u32 {sMB}, {sMB}, {GM:#x}")
    k(f"s_sub_u32 {T2}, {T2}, {T14}\ns_add_u32 {T2}, {T2}, {GM-GO+16384:#x}")
    k(f"s_add_u32 {sDP}, {T2}, {(256-16384) & 0xffffffff:#x}\ns_add_u32 {sDN}, {T2}, {32768-256}")
    k(f"s_cmp_eq_u32 {X}, 0\ns_cselect_b32 {sDP}, {OOB:#x}, {sDP}\ns_cmp_eq_u32 {X}, 7\ns_cselect_b32 {sDN}, {OOB:#x}, {sDN}")
    k(f"s_and_b32 {T}, {MT}, 15\ns_cmp_eq_u32 {T}, 0\ns_cselect_b32 {sDP}, {sDP}, 256\ns_cmp_eq_u32 {T}, 15\ns_cselect_b32 {sDN}, {sDN}, {32768-256}")
    k(f"s_cselect_b32 {T2}, 16384, 0\ns_add_u32 {sMB}, {sMB}, {T2}")
    k(f"s_bitcmp1_b32 {J}, 1\ns_cselect_b32 {T2}, 0, 15\ns_cmp_eq_u32 {T}, {T2}\ns_cselect_b32 {sMB}, {sMB}, 0")
    k(f"s_lshr_b32 {sSV}, {J}, 1\ns_lshl_b32 {sSV}, {sSV}, 8\ns_and_b32 {T}, {J}, 1\ns_lshl_b32 {T}, {T}, 3\ns_add_u32 {sSV}, {sSV}, {T}")
    sTid = [W] + [S_(f"Tid{q}") for q in range(1,4)]
    sUs = [S_(f"Us{q}") for q in range(4)]; sUl = [sSet, T14] + [S_(f"Ul{q}") for q in range(2,4)]; sHF, sOut = MG, [JW, MT]
    for q in range(1,4): k(f"s_cmp_le_u32 {W}, {q-1}\ns_cselect_b32 {sTid[q]}, {q}, {q-1}")
    k(f"s_mul_i32 {T2}, {MG}, {4*UT}\ns_add_u32 {sSet}, {sSet}, {T2}\ns_add_u32 {sSet}, {sSet}, {UO:#x}")
    k(f"s_lshl_b32 {T}, {JW}, 10\ns_add_u32 {T}, {T}, {sSet}")
    for q in range(4): k(f"s_mul_i32 {sUs[q]}, {sTid[q]}, {UT}\ns_add_u32 {sUs[q]}, {sUs[q]}, {T}")
    k(f"s_lshr_b32 {T}, {JW}, 1\ns_add_u32 {T}, {T}, 32\ns_sub_u32 {T}, {T}, {JW}\ns_lshl_b32 {T}, {T}, 10\ns_and_b32 {T2}, {JW}, 1\ns_lshl_b32 {T2}, {T2}, 3\ns_add_u32 {T}, {T}, {T2}")
    k(f"s_cmp_lt_u32 {JW}, 22\ns_cselect_b32 {sHF}, {T}, {OOB:#x}")
    k(f"s_mul_i32 {T}, {W}, {11*1024}\ns_add_u32 {sUl[0]}, {sSet}, {T}")
    for t in range(1,4): k(f"s_add_u32 {sUl[t]}, {sUl[0]}, {t*UT}")
    k(f"s_lshr_b32 {T}, {W}, 1\ns_add_u32 {T}, {T}, {MTB}\ns_lshl_b32 {sOut[0]}, {T}, 14\ns_lshl_b32 {T}, {J}, 7\ns_add_u32 {sOut[0]}, {sOut[0]}, {T}")
    k(f"s_and_b32 {T}, {W}, 1\ns_lshl_b32 {T}, {T}, 6\ns_add_u32 {sOut[0]}, {sOut[0]}, {T}\ns_add_u32 {sOut[1]}, {sOut[0]}, 0x8000")
    k(f"v_add_u32 v{KA}, {RING:#x}, v3")
    k(f"v_lshlrev_b32 v14, 4, v12\nv_lshl_add_u32 v14, v11, 8, v14")
    k(f"v_add_u32 v{VA0}, {RING+1024:#x}, v14\nv_add_u32 v{VA1}, {RING+1536:#x}, v14\nv_mov_b32 v15, {RING+2048:#x}")
    k(f"v_cmp_gt_u32 vcc, 16, v10\nv_cndmask_b32 v{VA0}, v15, v{VA0}, vcc\nv_cndmask_b32 v{VA1}, v15, v{VA1}, vcc")
    k("v_lshrrev_b32 v2, 4, v10\nv_lshl_add_u32 v2, v2, 14, v14")
    k(f"v_lshlrev_b32 v{XTV}, 2, v10")
    k(f"v_min_u32 v15, {NR-1}, v1\nv_mul_u32_u24 v15, {RP}, v15\nv_add_u32 v15, {RING+2048:#x}, v15")
    for r in range(4): k(f"v_mov_b32 v{V0+r}, {sONE}")
    k(f"ds_write_b128 v15, {vr(V0)}")
    for r in range(4): k(f"v_accvgpr_write_b32 a{172+r}, v{V0}")
    for r in range(32): k(f"v_mov_b32 v{O[0]+r}, 0")
    for r in range(4,8): k(f"v_mov_b32 v{P[1]+r}, 0")
    for r in range(4): k(f"v_mov_b32 v{V1+r}, 0")
    k(f"s_lshl_b32 {T}, {W}, 10\ns_add_u32 {T}, {T}, {WB:#x}\nv_add_u32 v10, {T}, v3")
    k(f"s_lshl_b32 {T}, {W}, 6\ns_add_u32 {T}, {T}, {CSL:#x}\nv_lshlrev_b32 v11, 4, v13\nv_add_u32 v11, {T}, v11")
    k(f"v_add_u32 v15, {sSA}, v{KA}")
    if OPT.get('cpf'):
        pc = k.newlabel()
        k(f"s_getpc_b64 {RETP}"); k.label(pc)
        k(f"s_add_u32 {RET}, {RET}, L_attn_fin-{pc}\ns_addc_u32 s{int(RET[1:])+1}, s{int(RET[1:])+1}, 0\ns_lshl_b32 {T}, {W}, 13")
        k(f"v_lshlrev_b32 v136, 7, v1\nv_add_u32 v136, {T}, v136\nv_min_u32 v136, L_code_end-L_attn_fin-4, v136\nv_mov_b32 v137, s{int(RET[1:])+1}")
        k(f"v_add_co_u32 v136, vcc, {RET}, v136\nv_addc_co_u32 v137, vcc, 0, v137, vcc")
    DM = []
    for so, lb in ((sWO, WA), (sW1, WB)):
        for q in range(4): DM.append((f"s_add_u32 m0, {W14}, {lb+4096*q:#x}", [(f"buffer_load_dwordx4 v{3+q}, s[4:7], {so} offen offset:{1024*i} lds", "w") for i in range(4)]))
    RL = [ldr(w3reg(t, s), s3[t], s) for t in range(3) for s in range(16)] + [ldr(w4reg(i//4, i%4), s4[i//16], i%16) for i in range(24)]
    if OPT.get('nofill'): DM = []
    spot = {}
    def put(t, sp, x): spot.setdefault((t, sp), []).append(x)
    for n in range(1, 14):
        put(4*n-2, 'Bpv_s', kvm0(n+2))
        if not (n+2) & 1: put(4*n-2, 'Bmid_s', kvso)
        for x in kvld(n+2): put(4*n-1, 'Apv', x)
    free = []
    for t in range(64):
        g = (t+1)//4
        if t % 4 in (0, 1) and g < len(DM):
            for x in DM[g][1][2*(t%4):2*(t%4)+2]: put(t, 'Apv', x)
            if t % 4 == 0:
                if t: put(t-1, 'Bmid_s', DM[g][0])
                else: k(DM[g][0])
        elif t % 4 == 3 and t < 55: free.append((t, 'Bpre'))
        else: free.append((t, 'Apv'))
    LT = OPT.get('lastfill', 56)
    free = [f for f in free if f[0] < LT]
    RL = EL + RL
    if OPT.get('nofill'): RL = []; CL = []
    FL = [RL[i:i+2] for i in range(0, len(RL), 2)]
    C0 = OPT.get('clr0', 36); ctl = [t for t in range(C0, 64) if t % 4 in (0, 1)][:len(CL)//2]
    assert not ctl or ctl[-1] < 51
    for i, t in enumerate(ctl):
        put(t-1, 'Bpv_s', "s_cmp_lg_u64 s[0:1], 0"); put(t, 'Bmid', clpair(2*i))
    put(C0-13, 'Bmid', (f"buffer_load_dword v{XTV}, v{XTV}, s[4:7], {sXT} offen sc1", "xt"))
    put(C0-2, 'Bpre', lambda: (k.waitvm("xt"), k(f"v_cmp_ne_u32 s[0:1], {sXC}, v{XTV}" if not OPT.get('slowtail') else "s_mov_b64 s[0:1], -1")))
    if OPT.get('cpf'): put(OPT['cpf'], 'Bmid', ("global_load_dword v0, v[136:137], off", "cpf"))
    put(51, 'Bmid', (f"buffer_load_dword v0, v{XV+2}, s[4:7], {sOt} offen sc1", "ot"))
    need = len(FL) - len(free)
    cand = [t for t in range(LT) if t % 4 != 3 and t not in ctl]
    for i in range(max(0, need)): free.append((cand[i*len(cand)//need], 'Bmid'))
    free.sort()
    for f, xs in zip(free, FL):
        for x in xs: put(*f, x)
    k.waitvm("g0", "lgkmcnt(0)")
    k("s_barrier")
    stamp(k,"m_g0")
    k(f"ds_read_b128 {vr(KR)}, v{KA}\nds_read_b128 {vr(V0)}, v{VA0}")
    k("s_waitcnt lgkmcnt(1)")
    k(M32(vr(S[0],16), vr(KR), vr(QA), 0)); k(M32(vr(S[1],16), vr(KR), vr(QB), 0))
    k(f"v_max_f32 v{C}, v{S[0]}, v{S[0]+1}")
    for r in range(2,32,2): k(f"v_max3_f32 v{C}, v{C}, v{S[0]+r}, v{S[0]+r+1}")
    k(f"v_mov_b32 v{C+1}, v{C}\nv_permlane32_swap_b32 v{C}, v{C+1}\nv_max_f32 v{C}, v{C}, v{C+1}")
    k(f"v_sub_f32 v{C}, 0, v{C}")
    for r in range(1,16): k(f"v_mov_b32 v{C+r}, v{C}")
    for r in range(0,16,2): k(f"v_pk_add_f32 {pr(S[0]+r)}, {pr(S[0]+r)}, {pr(C)}")
    k(f"v_mov_b32 v{S[1]+14}, 0\nv_mov_b32 v{S[1]+15}, 0")
    stamp(k,"k_att0")
    MIDJ = OPT.get('midj', 1); PVJ = OPT.get('pvj', 5)
    def half(X_, t):
        s = S[X_]; p = P[X_]; Y = 1-X_; last = t == 63
        pos = lambda tt: (tt % NR)*RP
        g = lambda sp: spot.get((t, sp), [])
        if X_ == 0:
            a = []
            if (t+1) % 4 == 0 and not last: a = [lambda: k.waitvm(f"g{(t+1)//4}"), "s_barrier"]
            if not last: a.append(f"ds_read_b128 {vr(KR)}, v{KA} offset:{pos(t+1)}")
            pre = [M32(vr(S[1],16), vr(KR), vr(QB), vr(C,16))] + a
            mid = [f"s_waitcnt lgkmcnt({0 if last else 1})", f"ds_read_b128 {vr(V1)}, v{VA1} offset:{pos(t)}"]
            pv = ([] if last else ["s_waitcnt lgkmcnt(1)"]) + g('Apv')
        else:
            pre = ([] if last else [M32(vr(S[0],16), vr(KR), vr(QA), vr(C,16))]) + ["s_waitcnt lgkmcnt(0)"] + g('Bpre')
            mid = g('Bmid_s') + g('Bmid')
            pv = g('Bpv_s') + ([] if last else [f"ds_read_b128 {vr(V0)}, v{VA0} offset:{pos(t+1)}"])
        for j in range(8):
            k(f"v_exp_f32 v{s+2*j}, v{s+2*j}")
            if j == 0:
                k(f"v_cvt_pk_bf16_f32 v{P[Y]+7}, v{S[Y]+14}, v{S[Y]+15}")
                for x in pre: em(x)
            k(f"v_exp_f32 v{s+2*j+1}, v{s+2*j+1}")
            if j >= 1: k(f"v_cvt_pk_bf16_f32 v{p+j-1}, v{s+2*j-2}, v{s+2*j-1}")
            if j == MIDJ:
                k(M32(vr(O[Y],16), vr(V1), vr(P[Y]+4), vr(O[Y],16)))
                for x in mid: em(x)
            if j == PVJ:
                k(M32(vr(O[X_],16), vr(V0), vr(p), vr(O[X_],16)))
                for x in pv: em(x)
    for t in range(64):
        half(0, t); half(1, t)
        if t == 31: stamp(k,"m_att32")
    k(f"v_cvt_pk_bf16_f32 v{P[1]+7}, v{S[1]+14}, v{S[1]+15}")
    T0 = S[0]
    k(f"v_rcp_f32 v{T0+4}, v{O[0]+8}")
    k(M32(vr(O[1],16), vr(V1), vr(P[1]+4), vr(O[1],16)))
    stamp(k,"m_att64")
    def norm(X_):
        for r in range(0,8,2): k(f"v_pk_mul_f32 {pr(O[X_]+r)}, {pr(O[X_]+r)}, {pr(T0+4+2*X_)} op_sel_hi:[1,0]")
        for r in range(4): k(f"v_cvt_pk_bf16_f32 v{P[X_]+r}, v{O[X_]+2*r}, v{O[X_]+2*r+1}")
        k(f"v_min_u32 v{P[X_]}, {sM2}, v{P[X_]}")
    k(f"v_pk_mul_f32 {pr(T0)}, {pr(O[0]+8)}, 0 op_sel_hi:[1,0]")
    for r in range(0,8,2): k(f"v_pk_fma_f32 {pr(T0)}, {pr(O[0]+r)}, 0, {pr(T0)} op_sel_hi:[1,0,1]")
    norm(0)
    k(f"s_mov_b32 {T}, {fhex(2.0**-30)}\ns_mov_b32 {T2}, {fhex(2.0**30)}")
    k(f"v_rcp_f32 v{T0+6}, v{O[1]+8}")
    for r in range(0,10,2): k(f"v_pk_fma_f32 {pr(T0)}, {pr(O[1]+r)}, 0, {pr(T0)} op_sel_hi:[1,0,1]")
    k(f"v_min_f32 v{T0+2}, v{O[0]+8}, v{O[1]+8}\nv_max_f32 v{T0+3}, v{O[0]+8}, v{O[1]+8}")
    k(f"v_cmp_u_f32 vcc, v{T0}, v{T0+1}")
    k(f"v_cmp_gt_f32 {RETP}, {T}, v{T0+2}")
    k(f"s_or_b64 vcc, vcc, {RETP}")
    k(f"v_cmp_lt_f32 {RETP}, {T2}, v{T0+3}")
    k(f"s_or_b64 vcc, vcc, {RETP}")
    if OPT['slow']: k("s_branch L_attn_slow")
    if not OPT.get('noslow'): k("s_cbranch_vccnz L_attn_slow")
    k.label("L_attn_fin")
    k("s_cmp_lg_u64 s[0:1], 0")
    k("s_cbranch_scc1 L_tail_sc")

    def tail(fast):
        sc = "" if fast else " sc1"
        stubs = []; tramp = []
        st = (lambda n: stamp(k, n)) if fast != bool(OPT.get('slowtail')) else (lambda n: None)
        ACT=16; H=80; STR=96; A2=100; TMP=132; PK=ACT+32
        WV = [120,124,128,132,136,140,96,100,116,104,108,112]
        R10 = [ar(4*i) for i in range(6)] + [vr(116+4*i) for i in range(4)]
        def buf(e): return vr(WV[e % 12]) if e < 80 else R10[(e-80) % 10]
        def rd(e):
            if e < 16: a = f"v10 offset:{4096*e}"
            elif e < 80: a = f"v3 offset:{1024*(e-16)}"
            elif e < 144: a = f"v8 offset:{1024*(e-80)}"
            elif e < 168: a = f"v{KA} offset:{1024*(e-144)}"
            else: a = f"v3 offset:{1024*(e-144)}"
            return (f"ds_read_b128 {buf(e)}, {a}", f"r{e}")
        def refill(e):
            n = e+12 if e < 78 else (e+10 if e >= 80 else None)
            return [rd(n)] if n is not None and n < 208 else []
        def stub(name, L):
            lab = k.newlabel("S"+name)
            o = [f"{lab}:"]
            for x, regs in L:
                sk = k.newlabel("K")
                o += maxl(regs) + [f"s_cbranch_vccz {sk}", x, f"{sk}:"]
            o += ["s_waitcnt vmcnt(0)", f"s_setpc_b64 {RETP}"]
            stubs.append(o); return dict(lab=lab, L=L, iss=set())
        def maxl(regs):
            r = list(regs); o = []
            if len(r) == 1: return [f"v_cmp_eq_u32 vcc, -1, v{r[0]}"]
            if len(r) % 2 == 0: o.append(f"v_max_u32 v0, v{r[0]}, v{r[1]}"); r = r[2:]
            else: o.append(f"v_max3_u32 v0, v{r[0]}, v{r[1]}, v{r[2]}"); r = r[3:]
            while r: o.append(f"v_max3_u32 v0, v0, v{r[0]}, v{r[1]}"); r = r[2:]
            return o + ["v_cmp_eq_u32 vcc, -1, v0"]
        def br(D, own):
            def f():
                a = k.newlabel("R"); c = k.newlabel("C")
                k(f"s_cbranch_vccnz {a}"); k.label(c)
                assert all(i in D['iss'] for i in own), (own, D['iss'])
                D['iss'] -= set(own)
                o = [f"{a}:"] + [D['L'][i][0] for i in own]
                o += [f"s_add_u32 {sCNT}, {sCNT}, 1", f"s_cmp_gt_u32 {sCNT}, {BOUND}", "s_waitcnt vmcnt(0)", f"s_cbranch_scc1 {c}"]
                o += maxl([r for i in own for r in D['L'][i][1]]) + [f"s_cbranch_vccnz {a}"]
                if D['iss']:
                    o += maxl([r for i in sorted(D['iss']) for r in D['L'][i][1]]) + [f"s_cbranch_vccz {c}", f"s_call_b64 {RETP}, {D['lab']}"]
                tramp.append(o + [f"s_branch {c}"])
            return f
        def iss(D, i, tag):
            def f():
                k(D['L'][i][0], tag=tag); D['iss'].add(i)
            return f
        def stream(M, G):
            for i, m in enumerate(M):
                k(m)
                for x in G.get(i, []): em(x)
        def spread(G, items, gaps):
            n = len(items); g = len(gaps)
            for i, x in enumerate(items): G.setdefault(gaps[i*g//n], []).append(x)
        LA = OPT.get('la', 8)
        def actl(name, vo, so, sst, sreg=STR):
            L = [(f"buffer_load_dwordx4 {vr(ACT+4*s)}, v{vo[s//4]}, s[4:7], {so} offen offset:{1024*(s%4)} sc1", [ACT+4*s]) for s in range(16)]
            if sst: L.append((f"buffer_load_dwordx4 {vr(sreg)}, v3, s[4:7], {sst} offen sc1", [sreg+i for i in range(4)]))
            D = stub(name, L)
            I = [iss(D, s, f"{name}{s//2}") for s in range(16)]
            if sst: I.insert(6, iss(D, 16, "sts"))
            n = LA + (1 if sst else 0)
            D['rest'] = I[n:]
            return I[:n], D
        def first_check(name, D):
            k.waitvm(f"{name}0")
            for x in maxl([ACT, ACT+4]): k(x)
            br(D, [0, 1])()
        def mstage(name, D, e0, AC, zero, has_st, early, late, fin=()):
            M = [M16(vr(AC+4*(i%4)), buf(e0+i), vr(ACT+4*(i//4)), 0 if (zero and i < 4) else vr(AC+4*(i%4))) for i in range(64)]
            G = {i: [] for i in range(64)}
            used = set()
            for i in range(64):
                if i % 2 == 1 and i < 63: G[i].append(lambda i=i: k.waitlg(f"r{e0+i+2}"))
                p = i//8
                if p < 7 and i % 8 == 4: G[i].append(lambda p=p: k.waitvm(f"{name}{p+1}"))
                if p < 7 and i % 8 == 6: G[i].append(br(D, ([16] if has_st and p == 3 else []) + [2*p+2, 2*p+3]))
                G[i] += refill(e0+i)
            for j, x in enumerate(D['rest']):
                gi = 8*(j//2) + (0, 7)[j % 2]; G[gi].append(x); used.add(gi)
            for p in range(7):
                regs = [ACT+8*p+8, ACT+8*p+12]
                if has_st and p == 3: regs = [STR, STR+1, STR+2, STR+3] + regs
                L = maxl(regs)
                for j, x in enumerate(L):
                    gi = 8*p+5-(len(L)-1-j); G[gi].append(x); used.add(gi)
            for j, x in enumerate(fin): G[56+j].append(x); used.add(56+j)
            spread(G, list(early), [i for i in range(0, 32) if i not in used])
            spread(G, list(late), [i for i in range(31, 64) if i not in used])
            st(f"{name}_w")
            first_check(name, D)
            k.waitlg(f"r{e0+1}")
            st(f"{name}_m")
            stream(M, G)
            st(f"{name}_e")
        def packstore(AC, so):
            for p in range(2):
                for r in range(4): k(f"v_cvt_pk_bf16_f32 v{PK+4*p+r}, v{AC+8*p+2*r}, v{AC+8*p+2*r+1}")
                k(f"v_min_u32 v{PK+4*p}, {sM2}, v{PK+4*p}")
                k(f"buffer_store_dwordx4 {vr(PK+4*p)}, v3, s[4:7], {so} offen offset:{1024*p}{sc}", tag="st")
        SV=9
        def pstats(so, a):
            k(f"v_dot2_f32_bf16 v{a}, v{PK}, {sONE}, 0\nv_dot2_f32_bf16 v{a+1}, v{PK}, v{PK}, 0")
            for r in range(1,8): k(f"v_dot2_f32_bf16 v{a}, v{PK+r}, {sONE}, v{a}\nv_dot2_f32_bf16 v{a+1}, v{PK+r}, v{PK+r}, v{a+1}")
            k(f"v_permlane16_swap_b32 v{a}, v{a+1}\nv_add_f32 v{a}, v{a}, v{a+1}")
            xhalf_add(k, a, a+1)
            k(f"v_min_u32 v{a}, {sM2}, v{a}")
            k(f"buffer_store_dword v{a}, v{SV}, s[4:7], {so} offen{sc}", tag="st")
        def cs3(t): return [M16(ar(160+4*t), w3reg(t, s), "a[172:175]", 0 if s == 0 else ar(160+4*t)) for s in range(16)]
        def statlist(a, NMU, RS, t):
            L = [f"v_add_f32 v{a}, v{a}, v{a+2}", f"v_add_f32 v{a+1}, v{a+1}, v{a+3}"]
            for op in ("v_permlane16_swap_b32", "v_permlane32_swap_b32"):
                L += [f"v_mov_b32 v{a+2}, v{a}", f"v_mov_b32 v{a+3}, v{a+1}", f"{op} v{a}, v{a+2}", f"{op} v{a+1}, v{a+3}",
                      f"v_add_f32 v{a}, v{a}, v{a+2}", f"v_add_f32 v{a+1}, v{a+1}, v{a+3}"]
            L += [f"v_mul_f32 v{NMU}, {fhex(-1/512)}, v{a}", f"v_mul_f32 v{a+1}, {fhex(1/512)}, v{a+1}", f"v_fma_f32 v{a+1}, -v{NMU}, v{NMU}, v{a+1}",
                  f"v_max_f32 v{a+1}, 0, v{a+1}", f"v_add_f32 v{t}, {fhex(EPS)}, v{a+1}", f"v_rsq_f32 v{RS}, v{t}"]
            return L
        def gconsts(R, IRS, A, B):
            return [f"v_rcp_f32 v{IRS}, v{R}", f"v_mul_f32 v{A}, v{R}, v{R}", f"v_mul_f32 v{B}, {fhex(GB)}, v{R}", f"v_mul_f32 v{A}, v{A}, v{R}", f"v_mul_f32 v{A}, {fhex(GA)}, v{A}"]
        def window(M, loads, pre, extra):
            G = {}
            n = len(M)
            spread(G, loads, list(range(pre, n)))
            for gi, x in extra: G.setdefault(gi, []).append(x)
            stream(M, G)
        k(f"buffer_store_dwordx4 {vr(P[0])}, v2, s[4:7], {sOs[0]} offen{sc}", tag="st")
        for e in range(6): em(rd(e))
        norm(1)
        k(f"buffer_store_dwordx4 {vr(P[1])}, v2, s[4:7], {sOs[1]} offen{sc}", tag="st")
        st("m_ost")
        I, labO = actl("o", [3,4,5,6], sOl, None)
        for x in I[:2]: em(x)
        for e in range(6, 12): em(rd(e))
        k(f"v_add_u32 v8, {WB:#x}, v3")
        k.waitlg("r1")
        M = [M16("a[168:171]", buf(e), "a[172:175]", 0 if e == 0 else "a[168:171]") for e in range(16)]
        G = {}
        for e in range(16):
            G[e] = ([lambda e=e: k.waitlg(f"r{e+2}")] if e % 2 == 1 and e < 15 else []) + refill(e) + (I[2+e//2:3+e//2] if e % 2 == 0 else [])
        stream(M, G)
        k("s_barrier")
        for i in range(6): k(f"ds_write_b128 v15, {ar(4*i)} offset:{1024*i}")
        for r in range(8): k(f"v_accvgpr_read_b32 v{H+2*r+1}, a{160+r}")
        for r in range(8): k(f"v_lshlrev_b32 v{H+2*r}, 16, v{H+2*r+1}\nv_and_b32 v{H+2*r+1}, 0xffff0000, v{H+2*r+1}")
        k("ds_write_b128 v11, a[168:171]")
        GV = [2, 10, 11, 15]
        E = [f"v_lshrrev_b32 v{SV}, 5, v1", f"v_lshlrev_b32 v{SV}, 31, v{SV}", f"v_lshl_add_u32 v{SV}, v12, 4, v{SV}", f"v_lshl_add_u32 v{SV}, v13, 2, v{SV}", f"v_add_u32 v{SV}, {sSV}, v{SV}",
             "v_mov_b32 v14, 0x4000"]
        for gi, sh in enumerate((-1, 1, -2, 2)):
            v = GV[gi]
            E += [f"v_add_u32 v{v}, {sh}, v12", f"v_bfe_i32 v{v}, v{v}, 4, 1", f"v_bfi_b32 v{v}, v{v}, {sDP if sh < 0 else sDN}, v14", f"v_add3_u32 v{v}, v{3+gi}, v{v}, {16*(sh+2)}"]
        E += ["v_add_u32 v14, 2, v12", "v_and_b32 v14, 12, v14", "v_sub_u32 v14, 0, v14", "v_and_b32 v14, 0x80000000, v14", "v_add_u32 v14, v14, v3"]
        mstage("o", labO, 16, H, False, False, [], E)
        packstore(H, sHs)
        st("m_hst")
        pstats(sSh, TMP)
        I, labH = actl("h", [3,4,5,6], sHl, sSh)
        k(f"v_add_u32 v{TMP}, {sSB}, v3\nv_lshlrev_b32 v{TMP+1}, 4, v13\nv_add_u32 v{TMP+1}, {CSL:#x}, v{TMP+1}")
        ex = [(OPT.get('b1g', 3), "s_barrier")] + [(OPT.get('b1g', 3)+1+i, f"ds_write_b128 v{TMP}, {ar(24+4*i)} offset:{1024*i}") for i in range(10)]
        window(cs3(0), I, OPT.get('hpre', 0), ex)
        NMU=TMP+2; IRS=TMP+3; GA_=TMP+4; GB_=TMP+5; R1=TMP+6; KK=TMP+7; TT=TMP+8; RR=TMP+9; EP=TMP+10
        late = statlist(STR, NMU, R1, TT) + [f"v_mul_f32 v{TT}, v{R1}, v{R1}", f"v_fma_f32 v{TT}, v{TT}, v{STR+1}, v{EP}", f"v_rsq_f32 v{TT}, v{TT}",
              f"v_mul_f32 v{KK}, v{NMU}, v{R1}", f"v_mul_f32 v{RR}, v{R1}, v{TT}"] + gconsts(RR, IRS, GA_, GB_)
        CS=ACT; G0=ACT+16
        mstage("h", labH, 80, A2, True, True, [f"v_mov_b32 v{EP}, {fhex(EPS)}"], late, [(f"ds_read_b128 {vr(CS+4*nb)}, v{TMP+1} offset:{64*nb}", "cs") for nb in range(4)])
        k.waitlg("cs")
        k(f"s_cmp_lg_u32 {sMB}, 0")
        for p in range(2):
            R = range(8*p, 8*p+8, 2)
            for r in R: k(f"v_pk_fma_f32 {pr(A2+r)}, {pr(CS+r)}, {pr(NMU)}, {pr(A2+r)} op_sel_hi:[1,0,1]")
            for r in R: k(f"v_pk_mul_f32 {pr(G0+r)}, {pr(A2+r)}, {pr(A2+r)}")
            for r in R: k(f"v_pk_fma_f32 {pr(G0+r)}, {pr(G0+r)}, {pr(GA_)}, {pr(GA_)} op_sel:[0,0,1] op_sel_hi:[1,0,1]")
            for r in R: k(f"v_pk_mul_f32 {pr(G0+r)}, {pr(G0+r)}, {pr(A2+r)}")
            for r in range(8*p, 8*p+8): k(f"v_exp_f32 v{G0+r}, v{G0+r}")
            for r in R: k(f"v_pk_fma_f32 {pr(G0+r)}, {pr(G0+r)}, {pr(NMU)}, {pr(NMU)} op_sel:[0,1,1] op_sel_hi:[1,1,1]")
            for r in range(8*p, 8*p+8): k(f"v_rcp_f32 v{G0+r}, v{G0+r}")
            for r in R: k(f"v_pk_mul_f32 {pr(A2+r)}, {pr(A2+r)}, {pr(G0+r)}")
            for r in range(4): k(f"v_cvt_pk_bf16_f32 v{PK+4*p+r}, v{A2+8*p+2*r}, v{A2+8*p+2*r+1}")
            k(f"v_min_u32 v{PK+4*p}, {sM2}, v{PK+4*p}")
            a = k.newlabel("M"); c = k.newlabel("C")
            k(f"s_cbranch_scc1 {a}"); k.label(c)
            tramp.append([f"{a}:", f"buffer_store_dwordx4 {vr(PK+4*p)}, v14, s[4:7], {sMB} offen offset:{1024*p} sc1", f"s_branch {c}"])
            k(f"buffer_store_dwordx4 {vr(PK+4*p)}, v3, s[4:7], {sGs} offen offset:{1024*p}{sc}", tag="st")
        st("m_gst")
        for r in range(0,16,2): k(f"v_pk_fma_f32 {pr(A2+r)}, {pr(H+r)}, {pr(R1)}, {pr(R1)} op_sel:[0,0,1] op_sel_hi:[1,0,1]")
        I, labG = actl("g", GV, sGl, None)
        window(cs3(1), I, OPT.get('gpre', 4), [(15, "s_barrier")])
        E = ["v_lshl_add_u32 v14, v13, 2, v12", "v_and_b32 v14, 15, v14", "v_lshlrev_b32 v14, 4, v14", "v_lshl_add_u32 v14, v13, 8, v14",
             f"s_lshl_b32 {T}, {W}, 12", f"v_add_u32 v14, {T}, v14", f"v_add_u32 v{KA}, {W14}, v8"]
        mstage("g", labG, 144, A2, False, False, [], E)
        packstore(A2, sXs)
        st("m_x1st")
        pstats(sSx, TMP)
        for r in range(0,16,2): k(f"v_pk_add_f32 {pr(H+r)}, {pr(H+r)}, {pr(A2+r)}")
        for nb in range(4): k(f"ds_write_b128 v14, {vr(H+4*nb)} offset:{1024*nb}")
        ST3=136
        I, labX = actl("x", [3,4,5,6], sXl, sSx, ST3)
        window(cs3(2), I, OPT.get('xpre', 0), [])
        AC=[84,96]; C3=108; GT=120; SP=[132,32,36,32]; UP=136; TT=140; RS=141
        M = [M16(vr(AC[0]+4*t), w3reg(t,s), vr(ACT+4*s), 0 if s == 0 else vr(AC[0]+4*t)) for s in range(16) for t in range(3)]
        G = {i: [] for i in range(48)}; used = set()
        for p in range(8):
            for h in range(2): G[6*p+h].append(f"ds_write_b128 v{KA}, {vr(ACT+8*p+4*h)} offset:{2048*p+1024*h}")
            if p < 7:
                regs = [ACT+8*p+8, ACT+8*p+12]
                if p == 3: regs = [ST3+i for i in range(4)] + regs
                G[6*p+3].append(lambda p=p: k.waitvm(f"x{p+1}"))
                L = maxl(regs)
                for j, x in enumerate(L):
                    gi = 6*p+4-(len(L)-1-j); G[gi].append(x)
                G[6*p+5].append(br(labX, ([16] if p == 3 else []) + [2*p+2, 2*p+3]))
        for j, x in enumerate(labX['rest']): G[3*j+2].append(x)
        early = [f"v_accvgpr_read_b32 v{C3+r}, a{160+r}" for r in range(12)]
        early += [f"s_lshl_b32 {T}, {W}, 8", "v_lshlrev_b32 v15, 4, v12", f"v_add_u32 v15, {STL:#x}, v15", f"v_add_u32 v2, {T}, v15",
                  f"v_add_u32 v10, {sHF}, v3", f"s_cmp_eq_u32 {W}, 3\ns_cselect_b32 {T}, {OOB:#x}, 0", f"v_add_u32 v11, {T}, v5",
                  f"s_lshr_b32 {T}, {T}, 21", f"v_subrev_u32 v12, {T}, v5"]
        spread(G, early, list(range(2, 24)))
        late = statlist(ST3, SP[0], RS, TT) + gconsts(RS, SP[0]+1, SP[0]+2, SP[0]+3) + [f"ds_write_b128 v2, {vr(SP[0])}"]
        TB=[None,80,81,82]; SB=[None,83,142,143]
        for q in range(1,4): late += [f"s_lshl_b32 {T}, {sTid[q]}, 14", f"v_add_u32 v{TB[q]}, {T}, v8", f"s_lshl_b32 {T}, {sTid[q]}, 8", f"v_add_u32 v{SB[q]}, {T}, v15"]
        spread(G, late, list(range(24, 48)))
        st("x_w")
        first_check("x", labX)
        st("x_m")
        stream(M, G)
        st("x_e")
        k("s_waitcnt lgkmcnt(0)\ns_barrier")
        st("m_B3")
        def gelu_list(a, sp, q):
            L = []
            for c in range(2):
                R = range(0,8) if c == 0 else range(8,12)
                L += [f"v_fma_f32 v{a+r}, v{sp}, v{C3+r}, v{a+r}" for r in R]
                L += [f"v_mul_f32 v{GT+r}, v{a+r}, v{a+r}" for r in R]
                L += [f"v_fma_f32 v{GT+r}, v{GT+r}, v{sp+2}, v{sp+3}" for r in R]
                L += [f"v_mul_f32 v{GT+r}, v{GT+r}, v{a+r}" for r in R]
                L += [f"v_exp_f32 v{GT+r}, v{GT+r}" for r in R]
                L += [f"v_fma_f32 v{GT+r}, v{GT+r}, v{sp+1}, v{sp+1}" for r in R]
                L += [f"v_rcp_f32 v{GT+r}, v{GT+r}" for r in R]
                L += [f"v_mul_f32 v{a+r}, v{a+r}, v{GT+r}" for r in R]
                L += [f"v_cvt_pk_bf16_f32 v{UP+r//2}, v{a+r}, v{a+r+1}" for r in R if r % 2 == 0]
                if c == 0:
                    L += [f"v_min_u32 v{UP}, {sM2}, v{UP}", f"v_min_u32 v{UP+2}, {sM2}, v{UP+2}",
                          (f"buffer_store_dwordx4 {vr(UP)}, v3, s[4:7], {sUs[q]} offen{sc}", "st")]
                else:
                    L += [f"v_min_u32 v{UP+4}, {sM2}, v{UP+4}", (f"buffer_store_dwordx2 {vr(UP+4,2)}, v10, s[4:7], {sUs[q]} offen{sc}", "st")]
            return L
        cost = lambda x: 8 if isinstance(x, tuple) or x.startswith(TRANS) else 4
        def spreadw(G, items, gaps):
            tot = sum(cost(x) for x in items); acc = 0; g = len(gaps)
            for x in items:
                gi = min(g-1, acc*g//tot); acc += cost(x)
                if isinstance(x, tuple) and gi+1 < g: G.setdefault(('m', gaps[gi+1]), []).append(x)
                else: G.setdefault(gaps[gi], []).append(x)
        def stream2(M, F, G):
            for i, m in enumerate(M):
                k(m)
                for x in F.get(i, []) + G.get(('m', i), []) + G.get(i, []): em(x)
        lateW = [(ldr(w4reg(i//4, i%4), s4[i//16], i%16, "v11" if i >= 40 else None)[0], "w4") for i in range(24, 44)]
        BB=ACT
        def rdB(n):
            q = n//16+1; s = n % 16
            return (f"ds_read_b128 {vr(BB+4*(n%4))}, v{TB[q]} offset:{1024*s}", f"b{n}")
        UB=[40,144,188,40]
        UV=[80,80,80,80]
        def uld(t): return [f"buffer_load_dwordx4 {vr(UB[t]+4*ks)}, v{12 if ks == 10 else 3+ks//4}, s[4:7], {sUl[t]} offen offset:{1024*(ks%4)} sc1" for ks in range(11)]
        labU = [stub(f"u{t}", [(x, [UB[t]+4*ks, UB[t]+4*ks+2]) for ks, x in enumerate(uld(t))]) for t in range(4)]
        def uiss(t): return [iss(labU[t], ks, f"u{t}_{ks//2}") for ks in range(11)]
        for n in range(4): em(rdB(n))
        for q in range(1,4):
            M = []; F = {}; G = {}
            for s in range(16):
                n = 16*(q-1)+s
                for t in range(3): M.append(M16(vr(AC[q%2]+4*t), w3reg(t,s), vr(BB+4*(n%4)), 0 if s == 0 else vr(AC[q%2]+4*t)))
                F[3*s+2] = ([lambda n=n: k.waitlg(f"b{n+1}")] if n < 47 else []) + ([rdB(n+4)] if n+4 < 48 else [])
            F.setdefault(30, []).append((f"ds_read_b128 {vr(SP[q])}, v{SB[q]}", f"sp{q}"))
            mem = lateW if q == 1 else ([] if q == 2 else uiss(0)[:10])
            g0 = 0 if q == 1 else OPT.get('u0at', 6)
            for i, x in enumerate(mem): F.setdefault(3*(g0+i//2), []).append(x)
            gl = gelu_list(AC[(q-1)%2], SP[q-1], q-1)
            if q == 1:
                for x in gl[:OPT.get('lead1', 20)]: em(x)
                gl = gl[OPT.get('lead1', 20):]
                k.waitlg("b0")
                spreadw(G, gl, list(range(0, 48)))
            else: spreadw(G, gl, list(range(2, 48)))
            stream2(M, F, G)
            st(f"u_slot{q}")
        st("m_w3e")
        em(uiss(0)[10])
        A4=[232,16]
        RD=84
        RA=[8,124]
        red_addr = ["v_lshrrev_b32 v7, 2, v1", "v_and_b32 v8, 3, v1", "v_lshl_add_u32 v9, v8, 2, v7", "v_and_b32 v9, 15, v9", "v_lshlrev_b32 v9, 4, v9", "v_lshl_add_u32 v9, v8, 8, v9",
                    "v_lshlrev_b32 v7, 10, v7", "v_lshl_add_u32 v7, v8, 4, v7",
                    f"s_and_b32 {T}, {W}, 1", f"s_lshl_b32 {T}, {T}, 11", f"v_add_u32 v9, {T}, v9",
                    f"s_mov_b32 {T2}, 16384", f"s_cmp_lt_u32 {W}, 2\ns_cselect_b32 {T}, {RING:#x}, {T2}", f"v_add_u32 v{RA[0]}, {T}, v9",
                    f"s_lshr_b32 {T2}, {W}, 1", f"s_lshl_b32 {T}, {T2}, 14", f"s_add_u32 {T}, {T}, 0x8000", f"v_add_u32 v{RA[1]}, {T}, v9",
                    f"s_lshl_b32 {T}, {T2}, 12", f"v_add_u32 v9, {T}, v9"]
        def red_list(u):
            L = []
            for src in range(4):
                for b in range(2): L.append((f"ds_read_b128 {vr(RD+8*src+4*b)}, v{RA[u]} offset:{4096*src+1024*b}", f"rd{src}"))
            for b in range(2): L.append((f"ds_read_b128 {vr(RD+32+4*b)}, v9 offset:{8192*u+1024*b}", "rd4"))
            add = (lambda d, s: [f"v_add_f32 v{d+r}, v{d+r}, v{s+r}" for r in range(8)]) if u == 0 else (lambda d, s: [f"v_pk_add_f32 {pr(d+r)}, {pr(d+r)}, {pr(s+r)}" for r in range(0,8,2)])
            L.append(lambda: k.waitlg("rd1")); L += add(RD, RD+8)
            L.append(lambda: k.waitlg("rd3")); L += add(RD+16, RD+24)
            L.append(lambda: k.waitlg("rd4")); L += add(RD, RD+32) + add(RD, RD+16)
            L += [f"v_cvt_pk_bf16_f32 v{RD+8+r}, v{RD+2*r}, v{RD+2*r+1}" for r in range(4)]
            L.append((f"buffer_store_dwordx4 {vr(RD+8)}, v7, s[12:15], {sOut[u]} offen{' sc1' if OPT.get('outsc') else ''}", "out"))
            return L
        def ureg(t, c): return [UB[t]+4*ks+d for ks in range(2*c, min(2*c+2, 11)) for d in (0, 2)]
        k(f"v_add_u32 v2, {RING:#x}, v14")
        k.waitvm("u0_0")
        for x in maxl(ureg(0, 0)): k(x)
        br(labU[0], [0, 1])()
        k.waitlg("sp3")
        for t in range(4):
            a = A4[t%2]
            M = [M16(vr(a+4*nb), w4reg(ks,nb), vr(UB[t]+4*ks), 0 if ks == 0 else vr(a+4*nb)) for ks in range(11) for nb in range(4)]
            F = {}; G = {}; used = set()
            for c in range(1, 7):
                tt, cc, e = (t, c, 8*c) if c < 6 else (t+1, 0, 44)
                if tt > 3: continue
                L = maxl(ureg(tt, cc))
                F.setdefault(e-1-len(L), []).append(lambda tt=tt, cc=cc: k.waitvm(f"u{tt}_{cc}"))
                for j, x in enumerate(L): G.setdefault(e-1-len(L)+j, []).append(x); used.add(e-1-len(L)+j)
                F.setdefault(e-1, []).append(br(labU[tt], list(range(2*cc, min(2*cc+2, 11)))))
            if t >= 1:
                pa = A4[(t-1)%2]
                for nb in range(4): F.setdefault(8+nb, []).append(f"ds_write_b128 v2, {vr(pa+4*nb)} offset:{1024*nb}" if t == 1 else f"ds_write_b128 v14, {vr(pa+4*nb)} offset:{16384*(t-1)+1024*nb}")
            if t < 3:
                u0 = OPT.get(f'u{t+1}at', 0); us = OPT.get('ustep', 4)
                for i, x in enumerate(uiss(t+1)): F.setdefault(min(43, u0+us*i), []).append(x)
            if t == 0:
                F.setdefault(22, []).insert(0, lambda: k.waitvm("w4"))
                spreadw(G, gelu_list(AC[1], SP[3], 3), list(range(2, OPT.get('g3end', 36))))
            if t == 1: spread(G, red_addr, [i for i in range(14, 44) if i not in used])
            if t == 2:
                F.setdefault(32, []).append("s_waitcnt lgkmcnt(0)"); F.setdefault(32, []).append("s_barrier")
            if t == 3: spread(G, red_list(0), [i for i in range(0, 44) if i not in used])
            stream2(M, F, G)
            st(f"u_t{t}")
        for nb in range(4): k(f"ds_write_b128 v14, {vr(A4[1]+4*nb)} offset:{16384*3+1024*nb}")
        k("s_waitcnt lgkmcnt(0)\ns_barrier")
        st("m_w4e")
        for x in red_list(1): em(x)
        if fast != bool(OPT.get('slowtail')):
            if OPT.get('cnt'): k(f"s_mov_b32 s{k.sb}, {sCNT}")
            stamp_out(k, 1, 16, 18)
        if fast: k.label(done)
        k("s_endpgm")
        for L in tramp + stubs:
            for x in L:
                if x.endswith(":"): k.label(x[:-1])
                else: k(x)
    vq, lq = list(k.vmq), list(k.lgq)
    tail(True)
    k.label("L_code_end")
    k.label("L_tail_sc")
    k.vmq, k.lgq = list(vq), list(lq)
    k("s_nop 7")
    tail(False)
    for L in atr:
        for x in L:
            if x.endswith(":"): k.label(x[:-1])
            else: k(x)
    k.label("L_attn_slow")
    k("s_waitcnt vmcnt(0)")
    M=[C, C+1]; TM=C+2; TX=C+3; AL=C+4
    for X_ in range(2): k(f"v_mov_b32 v{M[X_]}, {fhex(-3.0e38)}")
    for r in range(32): k(f"v_mov_b32 v{O[0]+r}, 0")
    for r in range(8): k(f"v_mov_b32 v{V0+r}, {sONE}")
    k(f"s_lshl_b32 {sKV}, {HD}, 17\ns_add_u32 {sKV}, {sKV}, {KV:#x}\ns_mov_b32 {sRW}, 64\ns_mov_b32 {RET}, 0x0000ffff\ns_mov_b32 s{int(RET[1:])+1}, 0x0000ffff")
    k.label("L_attn_sloop")
    k(f"buffer_load_dwordx4 {vr(KR)}, v3, s[4:7], {sKV} offen")
    k(f"s_mov_b64 exec, {RETP}")
    k(f"buffer_load_dwordx4 {vr(V0)}, v14, s[4:7], {sKV} offen offset:1024")
    k(f"buffer_load_dwordx4 {vr(V1)}, v14, s[4:7], {sKV} offen offset:1536")
    k("s_mov_b64 exec, -1")
    k("s_waitcnt vmcnt(0)")
    for X_ in range(2):
        s = S[X_]; p = P[X_]
        k(M32(vr(s,16), vr(KR), vr([QA,QB][X_]), 0))
        k(f"v_max_f32 v{TM}, v{s}, v{s+1}")
        for r in range(2,16,2): k(f"v_max3_f32 v{TM}, v{TM}, v{s+r}, v{s+r+1}")
        k(f"v_mov_b32 v{TX}, v{TM}\nv_permlane32_swap_b32 v{TM}, v{TX}\nv_max3_f32 v{TM}, v{TM}, v{TX}, v{M[X_]}")
        k(f"v_sub_f32 v{AL}, v{M[X_]}, v{TM}\nv_exp_f32 v{AL}, v{AL}\nv_mov_b32 v{M[X_]}, v{TM}")
        for r in range(16): k(f"v_mul_f32 v{O[X_]+r}, v{O[X_]+r}, v{AL}")
        for r in range(16): k(f"v_sub_f32 v{s+r}, v{s+r}, v{TM}")
        for r in range(16): k(f"v_exp_f32 v{s+r}, v{s+r}")
        for r in range(8): k(f"v_cvt_pk_bf16_f32 v{p+r}, v{s+2*r}, v{s+2*r+1}")
        k(M32(vr(O[X_],16), vr(V0), vr(p), vr(O[X_],16)))
        k(M32(vr(O[X_],16), vr(V1), vr(p+4), vr(O[X_],16)))
    k("s_nop 15")
    k(f"s_add_u32 {sKV}, {sKV}, 2048\ns_sub_u32 {sRW}, {sRW}, 1\ns_cmp_lg_u32 {sRW}, 0\ns_cbranch_scc1 L_attn_sloop")
    k(f"v_rcp_f32 v{T0+4}, v{O[0]+8}\nv_rcp_f32 v{T0+6}, v{O[1]+8}")
    norm(0)
    k("s_nop 3")
    k("s_branch L_attn_fin")
    print("sgprs used up to", S_.n)
    return k

if __name__ == "__main__":
    out = sys.argv[1]
    for a in sys.argv[2:]:
        kk, v = a.split("="); OPT[kk] = int(v) if v.lstrip("-").isdigit() else v
    k2 = gen_k2(); n2 = k2.fix(verbose=bool(OPT.get('v')))
    k1 = gen_k1(); n1 = k1.fix(verbose=bool(OPT.get('v')))
    print("nops inserted", n1, n2, "verify errors", verify(k1), verify(k2))
    emit(out, [("qkv_kernel",256,512,163840),("main_kernel",256,256,163840)], [k1, k2])
```

```python
import math, sys
from asmlib2 import *

QF=0x000000; KV=0x200000; OF=0x600000
SETB=0x800000; SETS=0x180000; GO=0; HO=0x40000; XO=0x80000; SO=0xC0000; UO=0xC8000
WOF=0x1400000; W1F=0x1480000; W2F=0x1500000; W3F=0x1580000; W4F=0x1700000
GM=0x18C0000
XT=0x1900000
DBGOFF=0x1E00000
WS_SZ=0x2000000
ONES=0x3F803F80
EPS=1e-5
LOG2E=1.4426950408889634
GA = -2*LOG2E*math.sqrt(2/math.pi)*0.044715
GB = -2*LOG2E*math.sqrt(2/math.pi)
OPT = dict(stamp=False, slow=False, I0=2, pref=True, rot=3, k1sc=1, gram=1, nv=3, cpf=55)

def stamp(k, name):
    if not OPT['stamp']: return
    if not any(name.startswith(p) for p in OPT.get('sts','m').split(',')): return
    i = len(k.stn)
    if i >= k.smax: print("stamp dropped", name); return
    k.stn.append(name)
    k(f"{'s_memtime' if OPT['stamp']==2 else 's_memrealtime'} s[{k.sb+2*i}:{k.sb+1+2*i}]")
def stamp_out(k, kidx, vt, sw):
    if not OPT['stamp']: return
    k("s_waitcnt vmcnt(0)")
    k.smax += 1
    OPT['sts'] = OPT.get('sts','m') + ',end'
    stamp(k, "end")
    nst = len(k.stn)-1
    k("s_waitcnt lgkmcnt(0)")
    k(f"s_lshl_b32 s61, s2, 2\ns_add_u32 s60, s{sw}, s61\ns_lshl_b32 s60, s60, 6\ns_add_u32 s60, s60, {DBGOFF+kidx*0x10000:#x}")
    for i in range(16): k(f"v_mov_b32 v{vt+i}, s{k.sb+2*min(i,nst)}")
    k(f"v_mov_b32 v{vt+16}, 0")
    for i in range(4): k(f"buffer_store_dwordx4 v[{vt+4*i}:{vt+4*i+3}], v{vt+16}, s[4:7], s60 offen offset:{16*i}")
    k.L.insert(0, "; STAMPS " + ",".join(k.stn))

def xhalf_add(k, a, t):
    k(f"v_mov_b32 v{t}, v{a}")
    k(f"v_permlane32_swap_b32 v{a}, v{t}")
    k(f"v_add_f32 v{a}, v{a}, v{t}")
def x16_add(k, a, t):
    k(f"v_mov_b32 v{t}, v{a}")
    k(f"v_permlane16_swap_b32 v{a}, v{t}")
    k(f"v_add_f32 v{a}, v{a}, v{t}")
def stats_from_sums(k, s, q, mu, r, t):
    k(f"v_mul_f32 v{mu}, {fhex(1/512)}, v{s}")
    k(f"v_mul_f32 v{q}, {fhex(1/512)}, v{q}")
    k(f"v_fma_f32 v{q}, -v{mu}, v{mu}, v{q}")
    k(f"v_max_f32 v{q}, 0, v{q}")
    k(f"v_add_f32 v{t}, {fhex(EPS)}, v{q}")
    k(f"v_rsq_f32 v{r}, v{t}")
def code_prefetch(k, lab0, lab1, part_sgpr, vt):
    sk = k.newlabel()
    k(f"s_lshl_b32 s64, s{part_sgpr}, 13")
    k(f"s_cmp_ge_u32 s64, {lab1}-{lab0}\ns_cbranch_scc1 {sk}")
    pc = k.newlabel()
    k("s_getpc_b64 s[62:63]")
    k.label(pc)
    k(f"s_add_u32 s62, s62, {lab0}-{pc}\ns_addc_u32 s63, s63, 0" if lab0 != "qkv_kernel" else f"s_sub_u32 s62, s62, {pc}-{lab0}\ns_subb_u32 s63, s63, 0")
    k(f"v_lshlrev_b32 v{vt}, 7, v1\nv_add_u32 v{vt}, s64, v{vt}\nv_min_u32 v{vt}, {lab1}-{lab0}-4, v{vt}\nv_mov_b32 v{vt+1}, s63")
    k(f"v_add_co_u32 v{vt}, vcc, s62, v{vt}\nv_addc_co_u32 v{vt+1}, vcc, 0, v{vt+1}, vcc")
    n0 = len(k.vmq)
    k(f"global_load_dword v{vt+2}, v[{vt}:{vt+1}], off")
    del k.vmq[n0:]
    k.label(sk)

SLOT=28928; XOFF=12288; XW=4160; STG=5*SLOT; MUA=STG+16384
def gen_k1():
    k = Kern("qkv_kernel", vgpr=200, sgpr=102); k.sb = 70; k.stn = []; k.smax = 6
    done = "L_k1_done"
    sc1 = ' sc1' if OPT.get('k1sc') else ''
    def em(x):
        if callable(x): x()
        elif isinstance(x, tuple): k(x[0], tag=x[1])
        else: k(x)
    k(f"s_cmp_ge_u32 s2, 256\ns_cbranch_scc1 {done}")
    stamp(k,"m_start")
    k("s_load_dwordx16 s[32:47], s[0:1], 0")
    k("s_load_dwordx2 s[4:5], s[0:1], 80")
    k("v_lshrrev_b32 v2, 6, v0\nv_and_b32 v1, 63, v0")
    k(f"s_mov_b32 s6, {WS_SZ:#x}\ns_mov_b32 s7, 0x00020000")
    k("s_and_b32 s16, s2, 6\ns_lshl_b32 s16, s16, 1\ns_lshr_b32 s19, s2, 3\ns_and_b32 s18, s19, 3\ns_add_u32 s16, s16, s18")
    k("s_and_b32 s17, s2, 1\ns_lshl_b32 s17, s17, 3\ns_lshr_b32 s18, s19, 2\ns_add_u32 s17, s17, s18")
    k("v_readfirstlane_b32 s23, v2")
    k(f"s_xor_b32 s96, s17, 8\ns_add_u32 s97, s17, 4\ns_and_b32 s97, s97, 15")
    k("v_lshrrev_b32 v9, 2, v1\nv_and_b32 v10, 3, v1\nv_lshlrev_b32 v3, 4, v1")
    k("s_and_b32 s18, s23, 3")
    k("s_lshl_b32 s22, s16, 2\ns_add_u32 s22, s22, s18")
    k(f"s_mul_i32 s26, s18, 3072\ns_mul_i32 s27, s18, {XW}\ns_add_u32 s27, s27, {XOFF}")
    if OPT.get('gwx', 1): k("s_and_b32 s28, s2, 7\ns_lshl_b32 s28, s28, 5\ns_add_u32 s28, s28, s19")
    else: k("s_mov_b32 s28, s2")
    k("s_lshl_b32 s29, s28, 2\ns_add_u32 s29, s29, s18")
    k(f"s_lshl_b32 s99, s18, 8\ns_add_u32 s99, s99, s2\ns_lshl_b32 s67, s18, 12\ns_add_u32 s67, s67, {STG}\ns_add_u32 s68, s67, 2048\ns_mov_b32 s69, {MUA}")
    k("s_cmp_lt_u32 s23, 4\ns_cbranch_scc1 L_k1_comp")
    SEL=112; CP=168; CSX = MUA+1024
    def wtr(d):
        k("v_and_b32 v14, 31, v1\nv_lshrrev_b32 v15, 5, v1")
        k(f"v_and_b32 v{d}, 3, v9\nv_lshl_add_u32 v{d}, v15, 3, v{d}\nv_lshlrev_b32 v{d}, 6, v{d}\nv_and_b32 v28, 16, v1\nv_lshl_add_u32 v{d}, v28, 1, v{d}")
        k(f"v_and_b32 v28, 1, v1\nv_lshl_add_u32 v{d}, v28, 4, v{d}\nv_and_b32 v28, 2, v1\nv_lshl_add_u32 v{d}, v28, 2, v{d}")
        k(f"v_lshrrev_b32 v29, 4, v1\nv_xor_b32 v28, v9, v29\nv_and_b32 v28, 1, v28\nv_add_u32 v28, -1, v28\nv_and_b32 v{SEL}, {ONES:#x}, v28")
        for r in range(1,4): k(f"v_mov_b32 v{SEL+r}, v{SEL}")
    k(f"s_mov_b32 s10, {2048*512*2:#x}\ns_mov_b32 s11, 0x00020000\ns_mov_b32 s14, {512*1536*2:#x}\ns_mov_b32 s15, 0x00020000")
    k("v_mul_u32_u24 v8, 3072, v9\nv_lshl_add_u32 v8, v10, 4, v8")
    k("s_lshl_b32 s98, s96, 6\nv_add_u32 v16, s98, v8\ns_lshl_b32 s98, s97, 6\nv_add_u32 v17, s98, v8\ns_lshl_b32 s98, s17, 6\nv_add_u32 v8, s98, v8")
    k("v_lshrrev_b32 v11, 3, v1\nv_and_b32 v12, 7, v1\nv_and_b32 v13, 2, v11\nv_lshlrev_b32 v13, 1, v13\nv_xor_b32 v12, v12, v13")
    k("v_lshlrev_b32 v4, 10, v11\nv_lshl_add_u32 v4, v12, 4, v4")
    for i in range(1,4): k(f"v_add_u32 v{4+i}, {8192*i:#x}, v4")
    k("s_lshl_b32 s24, s22, 15")
    k(f"s_mul_i32 s25, s18, {16*3072}")
    k("s_lshl_b32 s20, s16, 1\ns_add_u32 s20, s20, s17\ns_and_b32 s20, s20, 7")
    def issue(c):
        sl = c % 5
        if c: k("s_add_u32 s20, s20, 1\ns_and_b32 s20, s20, 7")
        k(f"s_mul_i32 s21, s20, {64*3072}\ns_add_u32 m0, s26, {sl*SLOT}\ns_add_u32 s21, s25, s21")
        if c == 0:
            k("s_waitcnt lgkmcnt(0)")
            k("s_mov_b32 s12, s34\ns_mov_b32 s13, s35\ns_mov_b32 s8, s32\ns_mov_b32 s9, s33")
        for g in range(3): k(f"buffer_load_dwordx4 v{(8,16,17)[g]}, s[12:15], s21 offen offset:{1024*g} lds", tag=f"c{c}")
        k("s_lshl_b32 s21, s20, 7\ns_add_u32 s21, s24, s21")
        for i in range(4):
            k(f"s_add_u32 m0, s27, {sl*SLOT+i*1040}")
            k(f"buffer_load_dwordx4 v{4+i}, s[8:11], s21 offen lds", tag=f"c{c}")
    LA = OPT.get('k1la', 2)
    SJ = {}
    def decode(r):
        S = 48+4*r
        so, dst, fd, st = 84+4*r, 85+4*r, 86+4*r, 87+4*r
        SJ[r] = (S, so, dst, fd, st)
        k(f"s_mov_b32 s{S+3}, 0x00020000")
        end = k.newlabel()
        def pairmode(v, jstride, base):
            k(f"s_lshr_b32 s30, s{v}, 4\ns_and_b32 s31, s{v}, 15")
            k(f"s_lshl_b32 s{so}, s30, 15\ns_lshl_b32 s{fd}, s31, 6\ns_add_u32 s{so}, s{so}, s{fd}")
            k(f"s_lshr_b32 s{dst}, s31, 1\ns_mul_i32 s{dst}, s{dst}, {jstride}\ns_lshl_b32 s30, s30, 12\ns_add_u32 s{dst}, s{dst}, s30")
            k(f"s_and_b32 s31, s31, 1\ns_lshl_b32 s31, s31, 11\ns_add_u32 s{dst}, s{dst}, s31\ns_add_u32 s{dst}, s{dst}, {base}")
            k(f"s_mov_b32 s{fd}, 1024\ns_mov_b32 s{st}, 1024")
        def w4(off):
            k(f"s_mov_b32 s{S}, s46\ns_mov_b32 s{S+1}, s47\ns_mov_b32 s{S+2}, {1376*512*2:#x}")
            k(f"s_add_u32 s65, s29, {off & 0xffffffff:#x}")
            pairmode(65, 43*4096, f"{W4F:#x}")
        def w3(off, src="s29"):
            k(f"s_mov_b32 s{S}, s44\ns_mov_b32 s{S+1}, s45\ns_mov_b32 s{S+2}, {1376*512*2:#x}")
            k(f"s_add_u32 s65, {src}, {off & 0xffffffff:#x}")
            k(f"s_mul_i32 s30, s65, 1525\ns_lshr_b32 s30, s30, 16\ns_mul_i32 s31, s30, 43\ns_sub_u32 s31, s65, s31")
            k(f"s_mul_i32 s{so}, s30, {32*2752}\ns_lshl_b32 s{fd}, s31, 6\ns_add_u32 s{so}, s{so}, s{fd}")
            k(f"s_lshl_b32 s{dst}, s31, 15\ns_lshl_b32 s30, s30, 10\ns_add_u32 s{dst}, s{dst}, s30\ns_add_u32 s{dst}, s{dst}, {W3F:#x}")
            k(f"s_mov_b32 s{fd}, 16384\ns_mov_b32 s{st}, 2752")
        if r == 0:
            l4 = k.newlabel()
            k(f"s_cmp_ge_u32 s29, 768\ns_cbranch_scc1 {l4}")
            k(f"s_lshr_b32 s66, s29, 8")
            k(f"s_cmp_eq_u32 s66, 1\ns_cselect_b32 s{S}, s40, s36\ns_cselect_b32 s{S+1}, s41, s37")
            k(f"s_cmp_eq_u32 s66, 2\ns_cselect_b32 s{S}, s42, s{S}\ns_cselect_b32 s{S+1}, s43, s{S+1}")
            k(f"s_mov_b32 s{S+2}, {512*512*2:#x}")
            k(f"s_and_b32 s65, s29, 255\ns_lshl_b32 s66, s66, 19\ns_add_u32 s66, s66, {WOF:#x}")
            pairmode(65, 65536, "s66")
            k(f"s_branch {end}")
            k.label(l4); w4(-768)
        elif r == 1:
            l3 = k.newlabel()
            k(f"s_cmp_ge_u32 s29, 432\ns_cbranch_scc1 {l3}")
            w4(256); k(f"s_branch {end}")
            k.label(l3); w3(-432)
        else:
            w3(592, "s2")
        k.label(end)
    def sj_issue(r, m0expr):
        S, so, dst, fd, st = SJ[r]
        k(f"v_mul_u32_u24 v12, s{st}, v9\nv_lshl_add_u32 v12, v10, 4, v12")
        k(m0expr(0))
        k(f"buffer_load_dwordx4 v12, s[{S}:{S+3}], s{so} offen lds", tag=f"sj{r}")
        k(f"s_lshl_b32 s30, s{st}, 4\ns_add_u32 s30, s30, s{so}")
        k(m0expr(1024))
        k(f"buffer_load_dwordx4 v12, s[{S}:{S+3}], s30 offen lds", tag=f"sj{r}")
    def sj_rd(r, sbase, T):
        k(f"v_add_u32 v12, s{sbase}, v13")
        for b in range(2):
            for a in range(2): k(f"ds_read_b64_tr_b16 {vr(T+4*b+2*a,2)}, v12 offset:{256*a+8*b}")
    def sj_st(r, T, vo=3):
        S, so, dst, fd, st = SJ[r]
        k(f"s_add_u32 s30, s{dst}, s{fd}")
        if r == 2: k("s_cmp_ge_u32 s99, 96\ns_cselect_b32 s31, 0x80000000, 0\nv_add_u32 v12, s31, v3")
        k(f"buffer_store_dwordx4 {vr(T)}, v{vo}, s[4:7], s{dst} offen{sc1}", tag="st")
        k(f"buffer_store_dwordx4 {vr(T+4)}, v{vo}, s[4:7], s30 offen{sc1}", tag="st")
    def only96(f):
        sk = k.newlabel()
        k(f"s_cmp_ge_u32 s99, 96\ns_cbranch_scc1 {sk}")
        n0 = len(k.vmq)
        f()
        del k.vmq[n0:]
        k.label(sk)
    def clears():
        T = 192
        k(f"s_lshl_b32 s24, s29, 11\ns_add_u32 s24, s24, {OF:#x}")
        for r in range(4): k(f"v_mov_b32 v{T+r}, -1")
        k(f"s_cmp_gt_u32 s29, 256\ns_cselect_b32 s25, 0x80000000, 0\nv_add_u32 v12, s25, v3")
        k(f"s_lshl_b32 s25, s29, 10\ns_add_u32 s25, s25, {GM:#x}")
        return [f"buffer_store_dwordx4 {vr(T)}, v12, s[4:7], s25 offen sc1"] + [f"buffer_store_dwordx4 {vr(T)}, v3, s[4:7], s24 offen offset:{1024*i} sc1" for i in range(2)]
    assert XT == GM + 0x40000
    def sj012():
        sj_issue(2, lambda o: f"s_add_u32 m0, s69, {o}")
        sj_issue(0, lambda o: f"s_add_u32 m0, s67, {o}"); sj_issue(1, lambda o: f"s_add_u32 m0, s68, {o}")
    SJB = OPT.get('sjb', 3)
    sch = str(OPT.get('sch', '01.23.4s...567')).split('.')
    sch += ['']*(9-len(sch))
    for j in sch[0]: issue(int(j))
    for r in range(3): decode(r)
    k("s_cmp_ge_u32 s99, 96\ns_cselect_b32 s58, 0, s58\ns_cselect_b32 s69, s67, s69")
    if OPT.get('sjfake'):
        for r in range(3): k(f"s_mov_b32 s{48+4*r}, s34\ns_mov_b32 s{49+4*r}, s35")
    sched = {c: sch[c+1] for c in range(8)}
    for c in range(8):
        for j in sched[c]: assert j == 's' or c < int(j) <= c+4
    SJA = int("".join(sch).split('s')[0][-1])
    k("v_lshrrev_b32 v13, 4, v1\nv_lshlrev_b32 v13, 3, v13\nv_and_b32 v14, 3, v9\nv_add_u32 v13, v13, v14\nv_lshlrev_b32 v13, 6, v13\nv_lshl_add_u32 v13, v10, 4, v13")
    wtr(20)
    k(f"v_add_u32 v20, s26, v20\nv_add_u32 v21, {2*SLOT:#x}, v20\nv_add_u32 v22, {4*SLOT:#x}, v20")
    k(f"s_lshl_b32 s30, s18, 2\ns_add_u32 s30, s30, {CSX}\nv_lshlrev_b32 v28, 4, v14\nv_add_u32 v28, s30, v28")
    last = max(c for c in sched if sched[c])
    for c in range(8):
        k.waitvm(f"c{c}")
        k("s_barrier")
        sl = c % 5; st = sl//2; imm = (sl-2*st)*SLOT
        for g in range(3):
            for a in range(2): k(f"ds_read_b64_tr_b16 {vr(32+4*g+2*a,2)}, v{20+st} offset:{imm+g*1024+a*256}")
        for j in sched[c]:
            if j == 's': sj012()
            else: issue(int(j))
        if c == max(SJA+1, last):
            sj_rd(0, 67, 44); sj_rd(1, 68, 52); sj_rd(2, 69, 68)
        k("s_waitcnt lgkmcnt(0)")
        for b in range(3): k(f"v_mfma_f32_16x16x32_bf16 {vr(CP+4*b)}, {vr(SEL)}, {vr(32+4*b)}, {0 if c == 0 else vr(CP+4*b)}")
        if c == max(SJA+1, last):
            sj_st(0, 44); sj_st(1, 52); sj_st(2, 68, 12)
    for b in range(3): k(f"ds_write_b32 v28, v{CP+4*b} offset:{512*b}")
    k("s_waitcnt lgkmcnt(0)\ns_barrier\ns_endpgm")
    k.label("L_k1_comp")
    k.vmq = []; k.lgq = []
    if OPT['pref']:
        k("s_lshl_b32 s28, s19, 2\ns_add_u32 s28, s28, s18")
        code_prefetch(k, "qkv_kernel", "L_code_end", 28, 196)
    XA0=16; XA1=19; WA=22
    wtr(WA)
    k(f"v_lshrrev_b32 v25, 3, v14\nv_mul_u32_u24 v25, 1040, v25\nv_and_b32 v26, 7, v14\nv_lshl_add_u32 v25, v26, 7, v25\nv_lshl_add_u32 v25, v15, 4, v25\nv_add_u32 v25, s27, v25")
    k(f"v_and_b32 v26, 2, v14\nv_lshlrev_b32 v26, 5, v26\nv_add_u32 v{XA0}, v25, v26\nv_xor_b32 v26, 64, v26\nv_add_u32 v{XA1}, v25, v26")
    for b in (XA0, XA1, WA):
        k(f"v_add_u32 v{b+1}, {2*SLOT:#x}, v{b}\nv_add_u32 v{b+2}, {4*SLOT:#x}, v{b}")
    ACC=32; CSA=80; XB=[116,120,124]; WB=[128,140,152]; SUM=164; SQ=180; CV=188
    k(f"v_lshlrev_b32 v29, 4, v14\nv_add_u32 v29, {CSX}, v29")
    k(f"s_lshl_b32 s30, s18, 8\ns_add_u32 s30, s30, {MUA}")
    k("v_lshlrev_b32 v30, 2, v14\nv_add_u32 v30, s30, v30\nv_lshlrev_b32 v31, 4, v15\nv_add_u32 v31, s30, v31")
    k(f"s_lshl_b32 s31, s17, 17\ns_lshl_b32 s30, s22, 10\ns_add_u32 s31, s31, s30\ns_add_u32 s65, s31, 0x10000")
    k(f"s_lshl_b32 s30, s30, 1\ns_add_u32 s30, s30, {KV:#x}\ns_lshl_b32 s66, s96, 18\ns_add_u32 s66, s66, s30\ns_add_u32 s67, s66, 0x20000\ns_lshl_b32 s68, s97, 18\ns_add_u32 s68, s68, s30")
    k("v_lshrrev_b32 v26, 4, v14\nv_lshlrev_b32 v26, 17, v26\nv_and_b32 v27, 15, v14\nv_lshl_add_u32 v26, v27, 4, v26\nv_lshl_add_u32 v26, v15, 8, v26")
    k("v_cmp_eq_u32 s[40:41], 1, v10\nv_cmp_eq_u32 s[42:43], 2, v10\nv_cmp_eq_u32 s[44:45], 3, v10" if 0 else "")
    def reads(n):
        c, ks = n//4, n%4; sl = c%5; st = sl//2; imm = (sl-2*st)*SLOT
        L = [f"ds_read_b128 {vr(XB[n%3])}, v{(XA0 if ks<2 else XA1)+st} offset:{imm+32*(ks&1)}"]
        for g in range(3):
            for a in range(2): L.append(f"ds_read_b64_tr_b16 {vr(WB[n%3]+4*g+2*a,2)}, v{WA+st} offset:{imm+ks*3072+g*1024+a*256}")
        return [(x, f"r{n}") for x in L]
    XG = {}
    def put(n, g, L): XG.setdefault((n, g), []).extend(L)
    for i, x in enumerate(clears()): put(OPT.get('clat', 0)+i, 2, [x])
    put(29, 0, ["s_barrier"] + [(f"ds_read_b128 {vr(CP+4*b)}, v29 offset:{512*b}", "cx") for b in range(3)])
    put(30, 0, [lambda: k.waitlg("cx")] + [f"v_add_f32 v{CP+4*b+r}, v{CP+4*b+r}, v{CP+4*b+r+1}" for b in range(2) for r in (0, 2)])
    put(30, 1, [f"v_add_f32 v{CP+4*b}, v{CP+4*b}, v{CP+4*b+2}" for b in range(2)] + [f"v_add_f32 v{CP+8+r}, v{CP+8+r}, v{CP+8+r+1}" for r in (0, 2)])
    put(30, 2, [f"ds_write_b32 v30, v{CP+4*b} offset:{128*b}" for b in range(2)] + [f"v_add_f32 v{CV}, v{CP+8}, v{CP+10}"])
    put(31, 0, [(f"ds_read_b128 {vr(CSA+16+4*a)}, v31 offset:{128+32*a}", "cb") for a in range(4)])
    put(31, 1, [(f"ds_read_b128 {vr(CSA+4*a)}, v31 offset:{32*a}", "ca") for a in range(4)])
    k("s_waitcnt lgkmcnt(0)")
    k("v_cmp_eq_u32 s[40:41], 1, v10\nv_cmp_eq_u32 s[42:43], 2, v10\nv_cmp_eq_u32 s[44:45], 3, v10")
    stamp(k,"m_pre")
    k("s_barrier")
    stamp(k,"m_c0")
    for x in reads(0) + reads(1): em(x)
    for n in range(32):
        c = n//4; x = XB[n%3]; w = WB[n%3]
        z = lambda a, q=16: 0 if n == 0 else vr(a, q)
        S3 = [f"v_mfma_f32_16x16x32_bf16 {vr(SUM)}, {vr(SEL)}, {vr(x)}, {z(SUM,4)}",
              f"v_mfma_f32_4x4x4_16b_bf16 {vr(SQ)}, {vr(x,2)}, {vr(x,2)}, {z(SQ,4)}",
              f"v_mfma_f32_4x4x4_16b_bf16 {vr(SQ+4)}, {vr(x+2,2)}, {vr(x+2,2)}, {z(SQ+4,4)}"]
        M = [f"v_mfma_f32_32x32x16_bf16 {vr(ACC+16,16)}, {vr(w+4)}, {vr(x)}, {z(ACC+16)}",
             f"v_mfma_f32_32x32x16_bf16 {vr(ACC,16)}, {vr(w)}, {vr(x)}, {z(ACC)}",
             f"v_mfma_f32_32x32x16_bf16 {vr(ACC+32,16)}, {vr(x)}, {vr(w+8)}, {z(ACC+32)}"]
        G = {i: [] for i in range(len(M))}
        if n % 4 == 2 and n < 28:
            G[0] += (["s_waitcnt lgkmcnt(0)"] if c <= 3 else []) + ["s_barrier", lambda c=c: stamp(k, f"{'a' if c<3 else 'b'}_c{c+1}")]
        R = reads(n+2) if n < 30 else []
        G[0] += R[0:3]; G[1] += R[3:5]; G[2] += R[5:7]
        for g in range(3): G[g] += XG.get((n, g), [])
        k.waitlg(f"r{n}")
        for y in S3: k(y)
        for i, m in enumerate(M):
            k(m)
            for y in G[i]: em(y)
            if n == 31 and i == 1:
                MU=16; RS=18; QS=20
                for r in range(4): k(f"v_add_f32 v{SQ+r}, v{SQ+r}, v{SQ+4+r}")
                for r in range(1,4): k(f"v_cndmask_b32 v{SQ}, v{SQ}, v{SQ+r}, s[{38+2*r}:{39+2*r}]")
                xhalf_add(k, SQ, 25)
    stamp(k,"m_loop")
    pr = lambda b: vr(b, 2)
    stats_from_sums(k, SUM, SQ, MU, RS, 25)
    k.waitlg("ca")
    k(f"ds_write_b32 v30, v{MU}\nds_write_b32 v30, v{RS} offset:128")
    k(f"v_mul_f32 v{QS}, {fhex(0.25*LOG2E)}, v{RS}")
    TM=128
    for a in range(4): k(f"ds_read_b128 {vr(TM+4*a)}, v31 offset:{32*a}\nds_read_b128 {vr(TM+16+4*a)}, v31 offset:{128+32*a}")
    P=164
    def qk(b):
        for hf in range(2):
            R = range(8*hf, 8*hf+8, 2)
            for r in R: k(f"v_pk_fma_f32 {pr(ACC+16*b+r)}, {pr(MU)}, {pr(CSA+16*b+r)}, {pr(ACC+16*b+r)} op_sel_hi:[0,1,1] neg_lo:[1,0,0] neg_hi:[1,0,0]")
            for r in R: k(f"v_pk_mul_f32 {pr(ACC+16*b+r)}, {pr(QS if b==0 else RS)}, {pr(ACC+16*b+r)} op_sel_hi:[0,1]")
            for r in R: k(f"v_cvt_pk_bf16_f32 v{P+8*b+r//2}, v{ACC+16*b+r}, v{ACC+16*b+r+1}")
            k(f"buffer_store_dwordx4 {vr(P+8*b+4*hf)}, v3, s[4:7], s{[[31,65],[66,67]][b][hf]} offen{sc1}")
    qk(1)
    k("s_waitcnt lgkmcnt(0)")
    for hf in range(2):
        R = range(8*hf, 8*hf+8, 2)
        for r in R: k(f"v_pk_fma_f32 {pr(ACC+32+r)}, {pr(TM+r)}, {pr(CV)}, {pr(ACC+32+r)} op_sel_hi:[1,0,1] neg_lo:[1,0,0] neg_hi:[1,0,0]")
        for r in R: k(f"v_pk_mul_f32 {pr(ACC+32+r)}, {pr(TM+16+r)}, {pr(ACC+32+r)}")
        for r in R: k(f"v_cvt_pk_bf16_f32 v{P+16+r//2}, v{ACC+32+r}, v{ACC+32+r+1}")
        k(f"buffer_store_dwordx4 {vr(P+16+4*hf)}, v26, s[4:7], s68 offen offset:{1024+512*hf}{sc1}")
    qk(0)
    stamp(k,"m_epi")
    stamp_out(k, 0, 32, 18)
    k.label(done)
    k("s_endpgm")
    return k
```

```python
import re, struct
from asmlib import vr, ar, sr, f2u, fhex, HEADER

TRANS = ("v_exp_", "v_log_", "v_rcp_", "v_rsq_", "v_sqrt_", "v_sin_", "v_cos_")
def regs_of(tok):
    tok = tok.strip().lstrip('-').strip('|')
    m = re.fullmatch(r"([vas])\[(\d+):(\d+)\]", tok)
    if m: return [(m.group(1), i) for i in range(int(m.group(2)), int(m.group(3))+1)]
    m = re.fullmatch(r"([vas])(\d+)", tok)
    if m: return [(m.group(1), int(m.group(2)))]
    if tok in ("vcc",): return [("s","vcc")]
    if tok in ("m0",): return [("s","m0")]
    if tok in ("exec",): return [("s","exec")]
    return []
class I:
    def __init__(s, text):
        s.text = text
        t = text.split(";")[0].strip()
        p = t.split(None, 1)
        s.op = p[0]
        rest = p[1] if len(p) > 1 else ""
        toks = [x.strip() for x in rest.split(",")]
        ops = []
        for x in toks:
            w = x.split()
            if w: ops.append(w[0])
        s.mods = rest
        op = s.op
        s.kind = None; s.w = []; s.r = []
        R = [regs_of(x) for x in ops]
        flat = lambda L: [y for x in L for y in x]
        if op.startswith("v_mfma"):
            s.kind = "mfma"; s.D, s.A, s.B, s.C = R[0], R[1], R[2], R[3]
            s.w = s.D; s.r = s.A + s.B + s.C
            s.passes = 8 if "32x32x16" in op else 4
        elif op.startswith("v_"):
            s.kind = "valu"
            if "permlane" in op and "swap" in op: s.w = R[0]+R[1]; s.r = R[0]+R[1]
            else:
                s.w = list(R[0]); s.r = flat(R[1:])
                if op.startswith(("v_add_co","v_sub_co","v_addc_co")): s.w += R[1]; s.r = flat(R[2:])
                if op.startswith(("v_fmac","v_dot2c","v_pk_fmac")) : s.r += R[0]
                if op.startswith("v_cndmask") and len(ops) == 3: s.r.append(("s","vcc"))
            s.trans = op.startswith(TRANS); s.dot = op.startswith("v_dot")
            s.dpp = "_dpp" in op or "row_" in rest or "quad_perm" in rest
        elif op.startswith(("buffer_load","global_load")):
            s.kind = "vmem"
            if re.search(r"\blds\b", rest): s.lds = True; s.r = flat(R) + [("s","m0")]
            else: s.lds = False; s.w = R[0]; s.r = flat(R[1:])
        elif op.startswith(("buffer_store","global_store","buffer_atomic","global_atomic")):
            s.kind = "vmem"; s.lds = False; s.r = flat(R); s.store = True
            s.data = R[0] if op.startswith("buffer") else R[1]
            s.wide = "x3" in op or "x4" in op
        elif op.startswith("ds_read"):
            s.kind = "ds"; s.w = R[0]; s.r = flat(R[1:])
        elif op.startswith("ds_"):
            s.kind = "ds"; s.r = flat(R)
        elif op.startswith("s_"):
            s.kind = "salu"
            if op.startswith(("s_cmp","s_cbranch","s_branch","s_waitcnt","s_nop","s_barrier","s_endpgm","s_sleep","s_setprio","s_bitcmp","s_setpc")): s.r = flat(R)
            else:
                s.w = list(R[0]) if R else []; s.r = flat(R[1:])
        else:
            raise ValueError("unknown instr " + text)
        s.ws = 1
        if op == "s_nop": s.ws = int(ops[0]) + 1
def need(p, c):
    n = 0
    pw = set(p.w); cr = set(c.r); cw = set(c.w)
    if p.kind == "valu":
        vw = {x for x in pw if x[0] in "va"}; sw = {x for x in pw if x[0] == "s"}
        if c.kind == "mfma" and vw & cr: n = max(n, 3 if p.dot else 2)
        if c.kind == "valu":
            if p.trans and not c.trans and vw & cr: n = max(n, 1)
            if ("permlane" in c.op or c.dpp) and vw & cr: n = max(n, 2)
            if c.op.startswith(("v_readfirstlane","v_readlane")) and vw & cr: n = max(n, 1)
            if sw & cr: n = max(n, 2)
        if p.dot and (vw & (cr | cw)):
            if c.kind == "valu" and c.op == p.op:
                ops = [x for x in c.r]
                t = c.text.split(None,1)[1].split(",")
                ab = set(regs_of(t[1].split()[0]) + regs_of(t[2].split()[0]))
                if vw & ab: n = max(n, 3)
            else: n = max(n, 3)
        if c.kind == "vmem" and sw & cr: n = max(n, 5)
        if ("s","exec") in sw and c.kind == "mfma": n = max(n, 4)
    if p.kind == "mfma":
        D = set(p.D); big = 12 if p.passes == 8 else 8
        if c.kind == "mfma":
            if D & set(c.A + c.B): n = max(n, big)
            if D & set(c.C):
                if not (c.C == p.D and c.passes == p.passes): n = max(n, big - 2)
            elif D & set(c.D): n = max(n, big - 2)
        elif c.kind in ("valu","vmem","ds"):
            if D & (cr | cw): n = max(n, big)
        if c.kind == "valu" and set(p.C) & cw: n = max(n, 7 if p.passes == 8 else 3)
    if p.kind == "salu" and ("s","m0") in pw and c.kind in ("vmem",) and getattr(c,"lds",False): n = max(n, 1)
    if p.kind == "vmem" and getattr(p,"store",False) and p.wide and set(p.data) & cw: n = max(n, 2)
    return n

class Kern:
    def __init__(self, name, vgpr=256, sgpr=102, accum=None):
        self.name = name; self.L = []; self.vgpr = vgpr; self.sgpr = sgpr; self.accum = accum
        self.nlab = 0; self.vmq = []; self.lgq = []; self.tail = []
    def __call__(self, s, tag=None):
        for ln in s.split("\n"):
            ln = ln.strip()
            if ln:
                self.L.append("    " + ln)
                if ln.startswith(("buffer_","global_")): self.vmq.append(tag)
                if ln.startswith("ds_"): self.lgq.append(tag)
    def label(self, l): self.L.append(f"{l}:")
    def newlabel(self, p="L"):
        self.nlab += 1
        return f"{p}_{self.name}_{self.nlab}"
    def vmn(self, tag):
        idx = max(i for i, t in enumerate(self.vmq) if t == tag)
        return len(self.vmq) - 1 - idx
    def waitvm(self, tag, extra=""):
        n = min(63, self.vmn(tag))
        self(f"s_waitcnt vmcnt({n}) {extra}".strip())
    def lgn(self, tag):
        idx = max(i for i, t in enumerate(self.lgq) if t == tag)
        return min(15, len(self.lgq) - 1 - idx)
    def waitlg(self, tag):
        self(f"s_waitcnt lgkmcnt({self.lgn(tag)})")
    def fix(self, verbose=True):
        out = []; hist = []; ins = 0
        for ln in self.L:
            t = ln.strip()
            if t.endswith(":") or t.startswith((".",";")):
                out.append(ln); continue
            c = I(t)
            d = 0; req = 0
            for p in reversed(hist):
                nd = need(p, c)
                if nd - d > req: req = nd - d; why = p.text
                d += p.ws
                if d >= 20: break
            if req > 0:
                if verbose: print(f"[{self.name}] +{req} ws before '{t}' (after '{why}')")
                ins += 1
                while req > 0:
                    m = min(req, 16)
                    nop = f"s_nop {m-1}"
                    out.append("    " + nop); hist.append(I(nop)); req -= m
            out.append(ln); hist.append(c)
            if len(hist) > 40: hist = hist[-30:]
        self.L = out
        return ins
    def text(self):
        h = f".globl {self.name}\n.p2align 8\n.type {self.name},@function\n{self.name}:\n"
        return h + "\n".join(self.L) + "\n"
    def desc(self):
        acc = self.accum if self.accum is not None else min(256, (self.vgpr + 3) // 4 * 4)
        return f""".p2align 6
.amdhsa_kernel {self.name}
  .amdhsa_next_free_vgpr {self.vgpr}
  .amdhsa_next_free_sgpr {self.sgpr}
  .amdhsa_accum_offset {acc}
  .amdhsa_group_segment_fixed_size 0
  .amdhsa_kernarg_size 88
  .amdhsa_user_sgpr_count 2
  .amdhsa_user_sgpr_kernarg_segment_ptr 1
  .amdhsa_system_sgpr_workgroup_id_x 1
.end_amdhsa_kernel
"""
def hopentry(k, W, name, nw, first=0):
    pc = k.newlabel(); bk = k.newlabel()
    k("s_getpc_b64 s[20:21]"); k.label(pc)
    k(f"s_add_u32 s20, s20, {bk}-{pc}\ns_addc_u32 s21, s21, 0")
    k("s_mov_b64 exec, 0")
    for i in range(nw-1): k(f"s_cmp_eq_u32 {W}, {i}\ns_cbranch_scc1 L_hop_{name}_{i+first}")
    k(f"s_branch L_hop_{name}_{nw-1+first}")
    k.label(bk)
    k("s_mov_b64 exec, -1")
def hopend(k, nw, end):
    k.hop = (nw, end)
    k.label(f"L_hopb_{k.name}")
    k("s_setpc_b64 s[20:21]")
def isinst(ln):
    t = ln.strip()
    return not (t.endswith(":") or t.startswith((".",";")))
def add_hops(path, launches, kerns, step=4096):
    import subprocess
    hk = [k for k in kerns if getattr(k, 'hop', None)]
    if not hk: return
    save = {k.name: list(k.L) for k in hk}
    for k in hk:
        i = k.L.index(f"L_hopb_{k.name}:")
        k.L[i:i] = [f"L_hop_{k.name}_{j}:" for j in range(k.hop[0]+1)]
    emit(path, launches, kerns, hops=False)
    subprocess.run(["clang","-x","assembler","-target","amdgcn-amd-amdhsa","-mcpu=gfx950","-c",path,"-o","hop.o"],check=True)
    o = subprocess.run(["llvm-objdump","-d","--mcpu=gfx950","hop.o"],capture_output=True,text=True).stdout.split("\n")
    for k in hk:
        i0 = [i for i, l in enumerate(o) if l.endswith(f"<{k.name}>:")][0]
        sz = [len(re.search(r"// [0-9A-F]+: ([0-9A-F ]+)", l).group(1).split())*4 for l in o[i0:] if re.search(r"// [0-9A-F]+: ", l)]
        nw, end = k.hop
        L = save[k.name]; out = []; a = 0; nb = 0; n = 0; q = 0; pos = []
        for ln in L:
            if ln == end + ":": nb = 1 << 30
            if isinst(ln):
                if a >= nb:
                    pos.append(len(out)); out.append(None); a += 4; nb += step
                a += sz[q]; q += 1
            out.append(ln)
        for j, p_ in enumerate(pos):
            t = f"L_hop_{k.name}_{j+nw}" if j+nw < len(pos) else f"L_hopb_{k.name}"
            out[p_] = f"L_hop_{k.name}_{j}:\n    s_cbranch_execz {t}"
        i = out.index(f"L_hopb_{k.name}:")
        out[i:i] = [f"L_hop_{k.name}_{j}:" for j in range(len(pos), nw+1)]
        k.L = out
        print(k.name, "hops", len(pos))
def emit(path, launches, kerns, hops=True, step=4096):
    if hops: add_hops(path, launches, kerns, step)
    s = HEADER
    for (k, grid, block, lds) in launches:
        s += f"; @launch kernel={k} grid=({grid},1,1) block=({block},1,1) lds={lds}\n"
    s += '.amdgcn_target "amdgcn-amd-amdhsa--gfx950"\n.text\n'
    for k in kerns: s += ".p2align 12\n" + k.text()
    s += '.section .rodata,"a"\n'
    for k in kerns: s += k.desc()
    open(path, "w").write(s)

def verify(k):
    vm = []; lg = []; saved = {}; dead = False; nerr = 0
    for ln in k.L:
        t = ln.strip()
        if t.startswith((".",";")): continue
        if t.endswith(":"):
            l = t[:-1]
            if dead:
                if dead == 1 or l in saved: vm, lg = [list(x) for x in saved.get(l, ([], []))]
                dead = 2
            continue
        dead = False
        c = I(t)
        if c.op == "s_waitcnt":
            m = re.search(r"vmcnt\((\d+)\)", t)
            if m:
                n = int(m.group(1)); vm = vm[len(vm)-n:] if n < len(vm) and n else ([] if n == 0 else vm)
            m = re.search(r"lgkmcnt\((\d+)\)", t)
            if m:
                n = int(m.group(1)); lg = lg[len(lg)-n:] if n < len(lg) and n else ([] if n == 0 else lg)
            continue
        touched = set(c.r) | set(c.w)
        for q, nm in ((vm, "vm"), (lg, "lg")):
            for d, txt in q:
                if d & touched:
                    if (nm == "vm" and c.kind == "vmem" and not (d & set(c.r))) or (nm == "lg" and c.kind == "ds" and not (d & set(c.r))): continue
                    nerr += 1
                    if nerr < 20: print(f"[{k.name}] VERIFY: '{t}' touches pending {nm} dest of '{txt}'")
        if c.kind == "vmem": vm.append((set(c.w), t))
        if c.kind == "ds": lg.append((set(c.w), t))
        if c.op.startswith(("s_cbranch", "s_branch", "s_call")):
            l = t.split()[-1]
            if l not in saved: saved[l] = (list(vm), list(lg))
        if c.op in ("s_branch", "s_endpgm", "s_setpc_b64"): dead = 1
    return nerr
```

```python
import math, sys
from asmlib2 import *

QF=0x000000; KV=0x200000; OF=0x600000
SETB=0x800000; SETS=0x180000; GO=0; HO=0x40000; XO=0x80000; SO=0xC0000; UO=0xC8000
WOF=0x1400000; W1F=0x1480000; W2F=0x1500000; W3F=0x1580000; W4F=0x1700000
GM=0x18C0000
XT=0x1900000
DBGOFF=0x1E00000
WS_SZ=0x2000000
ONES=0x3F803F80
EPS=1e-5
LOG2E=1.4426950408889634
GA = -2*LOG2E*math.sqrt(2/math.pi)*0.044715
GB = -2*LOG2E*math.sqrt(2/math.pi)
OPT = dict(stamp=False, slow=False, I0=2, pref=True, rot=3, k1sc=1, gram=1, nv=3, cpf=55, hop=6, early=0, fill0=4, lastfill=54, spf=2, spft=54, spfs=2, prb=0, inl=3, la=6, w2g=10, lw1=10, lwo=0, u0s=1)

def stamp(k, name):
    if not OPT['stamp']: return
    if not any(name.startswith(p) for p in OPT.get('sts','m').split(',')): return
    i = len(k.stn)
    if i >= k.smax: print("stamp dropped", name); return
    k.stn.append(name)
    k(f"{'s_memtime' if OPT['stamp']==2 else 's_memrealtime'} s[{k.sb+2*i}:{k.sb+1+2*i}]")
    if OPT['stamp']==3 and name != 'end' and i+1 < k.smax:
        k.stn.append(name+"#")
        k(f"s_memtime s[{k.sb+2*i+2}:{k.sb+3+2*i}]")
def stamp_out(k, kidx, vt, sw):
    if not OPT['stamp']: return
    k("s_waitcnt vmcnt(0)")
    k.smax += 1
    OPT['sts'] = OPT.get('sts','m') + ',end'
    stamp(k, "end")
    nst = len(k.stn)-1
    k("s_waitcnt lgkmcnt(0)")
    k(f"s_lshl_b32 s61, s2, 2\ns_add_u32 s60, s{sw}, s61\ns_lshl_b32 s60, s60, 6\ns_add_u32 s60, s60, {DBGOFF+kidx*0x10000:#x}")
    for i in range(16): k(f"v_mov_b32 v{vt+i}, s{k.sb+2*min(i,nst)}")
    k(f"v_mov_b32 v{vt+16}, 0")
    for i in range(4): k(f"buffer_store_dwordx4 v[{vt+4*i}:{vt+4*i+3}], v{vt+16}, s[4:7], s60 offen offset:{16*i}")
    k.L.insert(0, "; STAMPS " + ",".join(k.stn))

def xhalf_add(k, a, t):
    k(f"v_mov_b32 v{t}, v{a}")
    k(f"v_permlane32_swap_b32 v{a}, v{t}")
    k(f"v_add_f32 v{a}, v{a}, v{t}")
def x16_add(k, a, t):
    k(f"v_mov_b32 v{t}, v{a}")
    k(f"v_permlane16_swap_b32 v{a}, v{t}")
    k(f"v_add_f32 v{a}, v{a}, v{t}")
def stats_from_sums(k, s, q, mu, r, t):
    k(f"v_mul_f32 v{mu}, {fhex(1/512)}, v{s}")
    k(f"v_mul_f32 v{q}, {fhex(1/512)}, v{q}")
    k(f"v_fma_f32 v{q}, -v{mu}, v{mu}, v{q}")
    k(f"v_max_f32 v{q}, 0, v{q}")
    k(f"v_add_f32 v{t}, {fhex(EPS)}, v{q}")
    k(f"v_rsq_f32 v{r}, v{t}")
def code_prefetch(k, lab0, lab1, part_sgpr, vt):
    sk = k.newlabel()
    k(f"s_lshl_b32 s64, s{part_sgpr}, 13")
    k(f"s_cmp_ge_u32 s64, {lab1}-{lab0}\ns_cbranch_scc1 {sk}")
    pc = k.newlabel()
    k("s_getpc_b64 s[62:63]")
    k.label(pc)
    k(f"s_add_u32 s62, s62, {lab0}-{pc}\ns_addc_u32 s63, s63, 0" if lab0 != "qkv_kernel" else f"s_sub_u32 s62, s62, {pc}-{lab0}\ns_subb_u32 s63, s63, 0")
    k(f"v_lshlrev_b32 v{vt}, 7, v1\nv_add_u32 v{vt}, s64, v{vt}\nv_min_u32 v{vt}, {lab1}-{lab0}-4, v{vt}\nv_mov_b32 v{vt+1}, s63")
    k(f"v_add_co_u32 v{vt}, vcc, s62, v{vt}\nv_addc_co_u32 v{vt+1}, vcc, 0, v{vt+1}, vcc")
    n0 = len(k.vmq)
    k(f"global_load_dword v{vt+2}, v[{vt}:{vt+1}], off")
    del k.vmq[n0:]
    k.label(sk)

SLOT=28928; XOFF=12288; XW=4160; STG=5*SLOT; MUA=STG+16384
def gen_k1():
    k = Kern("qkv_kernel", vgpr=200, sgpr=102); k.sb = 70; k.stn = []; k.smax = 6
    done = "L_k1_done"
    sc1 = ' sc1' if OPT.get('k1sc') else ''
    def em(x):
        if callable(x): x()
        elif isinstance(x, tuple): k(x[0], tag=x[1])
        else: k(x)
    k(f"s_cmp_ge_u32 s2, 256\ns_cbranch_scc1 {done}")
    stamp(k,"m_start")
    k("s_load_dwordx16 s[32:47], s[0:1], 0")
    k("s_load_dwordx2 s[4:5], s[0:1], 80")
    k("v_lshrrev_b32 v2, 6, v0\nv_and_b32 v1, 63, v0")
    k(f"s_mov_b32 s6, {WS_SZ:#x}\ns_mov_b32 s7, 0x00020000")
    k("s_and_b32 s16, s2, 6\ns_lshl_b32 s16, s16, 1\ns_lshr_b32 s19, s2, 3\ns_and_b32 s18, s19, 3\ns_add_u32 s16, s16, s18")
    k("s_and_b32 s17, s2, 1\ns_lshl_b32 s17, s17, 3\ns_lshr_b32 s18, s19, 2\ns_add_u32 s17, s17, s18")
    k("v_readfirstlane_b32 s23, v2")
    k(f"s_xor_b32 s96, s17, 8\ns_add_u32 s97, s17, 4\ns_and_b32 s97, s97, 15")
    k("v_lshrrev_b32 v9, 2, v1\nv_and_b32 v10, 3, v1\nv_lshlrev_b32 v3, 4, v1")
    k("s_and_b32 s18, s23, 3")
    k("s_lshl_b32 s22, s16, 2\ns_add_u32 s22, s22, s18")
    k(f"s_mul_i32 s26, s18, 3072\ns_mul_i32 s27, s18, {XW}\ns_add_u32 s27, s27, {XOFF}")
    if OPT.get('gwx', 1): k("s_and_b32 s28, s2, 7\ns_lshl_b32 s28, s28, 5\ns_add_u32 s28, s28, s19")
    else: k("s_mov_b32 s28, s2")
    k("s_lshl_b32 s29, s28, 2\ns_add_u32 s29, s29, s18")
    k(f"s_lshl_b32 s99, s18, 8\ns_add_u32 s99, s99, s2\ns_lshl_b32 s67, s18, 12\ns_add_u32 s67, s67, {STG}\ns_add_u32 s68, s67, 2048\ns_mov_b32 s69, {MUA}")
    k("s_cmp_lt_u32 s23, 4\ns_cbranch_scc1 L_k1_comp")
    SEL=112; CP=168; CSX = MUA+1024
    def wtr(d):
        k("v_and_b32 v14, 31, v1\nv_lshrrev_b32 v15, 5, v1")
        k(f"v_and_b32 v{d}, 3, v9\nv_lshl_add_u32 v{d}, v15, 3, v{d}\nv_lshlrev_b32 v{d}, 6, v{d}\nv_and_b32 v28, 16, v1\nv_lshl_add_u32 v{d}, v28, 1, v{d}")
        k(f"v_and_b32 v28, 1, v1\nv_lshl_add_u32 v{d}, v28, 4, v{d}\nv_and_b32 v28, 2, v1\nv_lshl_add_u32 v{d}, v28, 2, v{d}")
        k(f"v_lshrrev_b32 v29, 4, v1\nv_xor_b32 v28, v9, v29\nv_and_b32 v28, 1, v28\nv_add_u32 v28, -1, v28\nv_and_b32 v{SEL}, {ONES:#x}, v28")
        for r in range(1,4): k(f"v_mov_b32 v{SEL+r}, v{SEL}")
    k(f"s_mov_b32 s10, {2048*512*2:#x}\ns_mov_b32 s11, 0x00020000\ns_mov_b32 s14, {512*1536*2:#x}\ns_mov_b32 s15, 0x00020000")
    k("v_mul_u32_u24 v8, 3072, v9\nv_lshl_add_u32 v8, v10, 4, v8")
    k("s_lshl_b32 s98, s96, 6\nv_add_u32 v16, s98, v8\ns_lshl_b32 s98, s97, 6\nv_add_u32 v17, s98, v8\ns_lshl_b32 s98, s17, 6\nv_add_u32 v8, s98, v8")
    k("v_lshrrev_b32 v11, 3, v1\nv_and_b32 v12, 7, v1\nv_and_b32 v13, 2, v11\nv_lshlrev_b32 v13, 1, v13\nv_xor_b32 v12, v12, v13")
    k("v_lshlrev_b32 v4, 10, v11\nv_lshl_add_u32 v4, v12, 4, v4")
    for i in range(1,4): k(f"v_add_u32 v{4+i}, {8192*i:#x}, v4")
    k("s_lshl_b32 s24, s22, 15")
    k(f"s_mul_i32 s25, s18, {16*3072}")
    k("s_lshl_b32 s20, s16, 1\ns_add_u32 s20, s20, s17\ns_and_b32 s20, s20, 7")
    def issue(c):
        sl = c % 5
        if c: k("s_add_u32 s20, s20, 1\ns_and_b32 s20, s20, 7")
        k(f"s_mul_i32 s21, s20, {64*3072}\ns_add_u32 m0, s26, {sl*SLOT}\ns_add_u32 s21, s25, s21")
        if c == 0:
            k("s_waitcnt lgkmcnt(0)")
            k("s_mov_b32 s12, s34\ns_mov_b32 s13, s35\ns_mov_b32 s8, s32\ns_mov_b32 s9, s33")
        for g in range(3): k(f"buffer_load_dwordx4 v{(8,16,17)[g]}, s[12:15], s21 offen offset:{1024*g} lds", tag=f"c{c}")
        k("s_lshl_b32 s21, s20, 7\ns_add_u32 s21, s24, s21")
        for i in range(4):
            k(f"s_add_u32 m0, s27, {sl*SLOT+i*1040}")
            k(f"buffer_load_dwordx4 v{4+i}, s[8:11], s21 offen lds", tag=f"c{c}")
    LA = OPT.get('k1la', 2)
    SJ = {}
    def decode(r):
        S = 48+4*r
        so, dst, fd, st = 84+4*r, 85+4*r, 86+4*r, 87+4*r
        SJ[r] = (S, so, dst, fd, st)
        k(f"s_mov_b32 s{S+3}, 0x00020000")
        end = k.newlabel()
        def pairmode(v, jstride, base):
            k(f"s_lshr_b32 s30, s{v}, 4\ns_and_b32 s31, s{v}, 15")
            k(f"s_lshl_b32 s{so}, s30, 15\ns_lshl_b32 s{fd}, s31, 6\ns_add_u32 s{so}, s{so}, s{fd}")
            k(f"s_lshr_b32 s{dst}, s31, 1\ns_mul_i32 s{dst}, s{dst}, {jstride}\ns_lshl_b32 s30, s30, 12\ns_add_u32 s{dst}, s{dst}, s30")
            k(f"s_and_b32 s31, s31, 1\ns_lshl_b32 s31, s31, 11\ns_add_u32 s{dst}, s{dst}, s31\ns_add_u32 s{dst}, s{dst}, {base}")
            k(f"s_mov_b32 s{fd}, 1024\ns_mov_b32 s{st}, 1024")
        def w4(off):
            k(f"s_mov_b32 s{S}, s46\ns_mov_b32 s{S+1}, s47\ns_mov_b32 s{S+2}, {1376*512*2:#x}")
            k(f"s_add_u32 s65, s29, {off & 0xffffffff:#x}")
            pairmode(65, 43*4096, f"{W4F:#x}")
        def w3(off, src="s29"):
            k(f"s_mov_b32 s{S}, s44\ns_mov_b32 s{S+1}, s45\ns_mov_b32 s{S+2}, {1376*512*2:#x}")
            k(f"s_add_u32 s65, {src}, {off & 0xffffffff:#x}")
            k(f"s_mul_i32 s30, s65, 1525\ns_lshr_b32 s30, s30, 16\ns_mul_i32 s31, s30, 43\ns_sub_u32 s31, s65, s31")
            k(f"s_mul_i32 s{so}, s30, {32*2752}\ns_lshl_b32 s{fd}, s31, 6\ns_add_u32 s{so}, s{so}, s{fd}")
            k(f"s_lshl_b32 s{dst}, s31, 15\ns_lshl_b32 s30, s30, 10\ns_add_u32 s{dst}, s{dst}, s30\ns_add_u32 s{dst}, s{dst}, {W3F:#x}")
            k(f"s_mov_b32 s{fd}, 16384\ns_mov_b32 s{st}, 2752")
        if r == 0:
            l4 = k.newlabel()
            k(f"s_cmp_ge_u32 s29, 768\ns_cbranch_scc1 {l4}")
            k(f"s_lshr_b32 s66, s29, 8")
            k(f"s_cmp_eq_u32 s66, 1\ns_cselect_b32 s{S}, s40, s36\ns_cselect_b32 s{S+1}, s41, s37")
            k(f"s_cmp_eq_u32 s66, 2\ns_cselect_b32 s{S}, s42, s{S}\ns_cselect_b32 s{S+1}, s43, s{S+1}")
            k(f"s_mov_b32 s{S+2}, {512*512*2:#x}")
            k(f"s_and_b32 s65, s29, 255\ns_lshl_b32 s66, s66, 19\ns_add_u32 s66, s66, {WOF:#x}")
            pairmode(65, 65536, "s66")
            k(f"s_branch {end}")
            k.label(l4); w4(-768)
        elif r == 1:
            l3 = k.newlabel()
            k(f"s_cmp_ge_u32 s29, 432\ns_cbranch_scc1 {l3}")
            w4(256); k(f"s_branch {end}")
            k.label(l3); w3(-432)
        else:
            w3(592, "s2")
        k.label(end)
    def sj_issue(r, m0expr):
        S, so, dst, fd, st = SJ[r]
        k(f"v_mul_u32_u24 v12, s{st}, v9\nv_lshl_add_u32 v12, v10, 4, v12")
        k(m0expr(0))
        k(f"buffer_load_dwordx4 v12, s[{S}:{S+3}], s{so} offen lds", tag=f"sj{r}")
        k(f"s_lshl_b32 s30, s{st}, 4\ns_add_u32 s30, s30, s{so}")
        k(m0expr(1024))
        k(f"buffer_load_dwordx4 v12, s[{S}:{S+3}], s30 offen lds", tag=f"sj{r}")
    def sj_rd(r, sbase, T):
        k(f"v_add_u32 v12, s{sbase}, v13")
        for b in range(2):
            for a in range(2): k(f"ds_read_b64_tr_b16 {vr(T+4*b+2*a,2)}, v12 offset:{256*a+8*b}")
    def sj_st(r, T, vo=3):
        S, so, dst, fd, st = SJ[r]
        k(f"s_add_u32 s30, s{dst}, s{fd}")
        if r == 2: k("s_cmp_ge_u32 s99, 96\ns_cselect_b32 s31, 0x80000000, 0\nv_add_u32 v12, s31, v3")
        k(f"buffer_store_dwordx4 {vr(T)}, v{vo}, s[4:7], s{dst} offen{sc1}", tag="st")
        k(f"buffer_store_dwordx4 {vr(T+4)}, v{vo}, s[4:7], s30 offen{sc1}", tag="st")
    def only96(f):
        sk = k.newlabel()
        k(f"s_cmp_ge_u32 s99, 96\ns_cbranch_scc1 {sk}")
        n0 = len(k.vmq)
        f()
        del k.vmq[n0:]
        k.label(sk)
    def clears():
        T = 192
        k(f"s_lshl_b32 s24, s29, 11\ns_add_u32 s24, s24, {OF:#x}")
        for r in range(4): k(f"v_mov_b32 v{T+r}, -1")
        k(f"s_cmp_gt_u32 s29, 287\ns_cselect_b32 s25, 0x80000000, 0\nv_add_u32 v12, s25, v3")
        k(f"s_lshl_b32 s25, s29, 10\ns_add_u32 s25, s25, {GM:#x}")
        return [f"buffer_store_dwordx4 {vr(T)}, v12, s[4:7], s25 offen sc1"] + [f"buffer_store_dwordx4 {vr(T)}, v3, s[4:7], s24 offen offset:{1024*i} sc1" for i in range(2)]
    assert XT == GM + 0x40000
    def sj012():
        sj_issue(2, lambda o: f"s_add_u32 m0, s69, {o}")
        sj_issue(0, lambda o: f"s_add_u32 m0, s67, {o}"); sj_issue(1, lambda o: f"s_add_u32 m0, s68, {o}")
    SJB = OPT.get('sjb', 3)
    sch = str(OPT.get('sch', '01.23.4s..5.67')).split('.')
    sch += ['']*(9-len(sch))
    for j in sch[0]: issue(int(j))
    for r in range(3): decode(r)
    k("s_cmp_ge_u32 s99, 96\ns_cselect_b32 s58, 0, s58\ns_cselect_b32 s69, s67, s69")
    if OPT.get('sjfake'):
        for r in range(3): k(f"s_mov_b32 s{48+4*r}, s34\ns_mov_b32 s{49+4*r}, s35")
    sched = {c: sch[c+1] for c in range(8)}
    for c in range(8):
        for j in sched[c]: assert j == 's' or c < int(j) <= c+4
    SJA = int("".join(sch).split('s')[0][-1])
    k("v_lshrrev_b32 v13, 4, v1\nv_lshlrev_b32 v13, 3, v13\nv_and_b32 v14, 3, v9\nv_add_u32 v13, v13, v14\nv_lshlrev_b32 v13, 6, v13\nv_lshl_add_u32 v13, v10, 4, v13")
    wtr(20)
    k(f"v_add_u32 v20, s26, v20\nv_add_u32 v21, {2*SLOT:#x}, v20\nv_add_u32 v22, {4*SLOT:#x}, v20")
    k(f"s_lshl_b32 s30, s18, 2\ns_add_u32 s30, s30, {CSX}\nv_lshlrev_b32 v28, 4, v14\nv_add_u32 v28, s30, v28")
    last = max(c for c in sched if sched[c])
    for c in range(8):
        k.waitvm(f"c{c}")
        k("s_barrier")
        sl = c % 5; st = sl//2; imm = (sl-2*st)*SLOT
        for g in range(3):
            for a in range(2): k(f"ds_read_b64_tr_b16 {vr(32+4*g+2*a,2)}, v{20+st} offset:{imm+g*1024+a*256}")
        for j in sched[c]:
            if j == 's': sj012()
            else: issue(int(j))
        if c == max(SJA+1, last):
            sj_rd(0, 67, 44); sj_rd(1, 68, 52); sj_rd(2, 69, 68)
        k("s_waitcnt lgkmcnt(0)")
        for b in range(3): k(f"v_mfma_f32_16x16x32_bf16 {vr(CP+4*b)}, {vr(SEL)}, {vr(32+4*b)}, {0 if c == 0 else vr(CP+4*b)}")
        if c == max(SJA+1, last):
            sj_st(0, 44); sj_st(1, 52); sj_st(2, 68, 12)
    for b in range(3): k(f"ds_write_b32 v28, v{CP+4*b} offset:{512*b}")
    k("s_waitcnt lgkmcnt(0)\ns_barrier")
    if OPT.get('hop', 1) & 2: hopentry(k, "s18", "main_kernel", 4)
    k("s_endpgm")
    k.label("L_k1_comp")
    k.vmq = []; k.lgq = []
    if OPT['pref']:
        k("s_lshl_b32 s28, s19, 2\ns_add_u32 s28, s28, s18")
        code_prefetch(k, "qkv_kernel", "L_code_end", 28, 196)
    if OPT.get('hop', 1) & 4: hopentry(k, "s18", k.name, 4, 1)
    XA0=16; XA1=19; WA=22
    wtr(WA)
    k(f"v_lshrrev_b32 v25, 3, v14\nv_mul_u32_u24 v25, 1040, v25\nv_and_b32 v26, 7, v14\nv_lshl_add_u32 v25, v26, 7, v25\nv_lshl_add_u32 v25, v15, 4, v25\nv_add_u32 v25, s27, v25")
    k(f"v_and_b32 v26, 2, v14\nv_lshlrev_b32 v26, 5, v26\nv_add_u32 v{XA0}, v25, v26\nv_xor_b32 v26, 64, v26\nv_add_u32 v{XA1}, v25, v26")
    for b in (XA0, XA1, WA):
        k(f"v_add_u32 v{b+1}, {2*SLOT:#x}, v{b}\nv_add_u32 v{b+2}, {4*SLOT:#x}, v{b}")
    ACC=32; CSA=80; XB=[116,120,124]; WB=[128,140,152]; SUM=164; SQ=180; CV=188
    k(f"v_lshlrev_b32 v29, 4, v14\nv_add_u32 v29, {CSX}, v29")
    k(f"s_lshl_b32 s30, s18, 8\ns_add_u32 s30, s30, {MUA}")
    k("v_lshlrev_b32 v30, 2, v14\nv_add_u32 v30, s30, v30\nv_lshlrev_b32 v31, 4, v15\nv_add_u32 v31, s30, v31")
    k(f"s_lshl_b32 s31, s17, 17\ns_lshl_b32 s30, s22, 10\ns_add_u32 s31, s31, s30\ns_add_u32 s65, s31, 0x10000")
    k(f"s_lshl_b32 s30, s30, 1\ns_add_u32 s30, s30, {KV:#x}\ns_lshl_b32 s66, s96, 18\ns_add_u32 s66, s66, s30\ns_add_u32 s67, s66, 0x20000\ns_lshl_b32 s68, s97, 18\ns_add_u32 s68, s68, s30")
    k("v_lshrrev_b32 v26, 4, v14\nv_lshlrev_b32 v26, 17, v26\nv_and_b32 v27, 15, v14\nv_lshl_add_u32 v26, v27, 4, v26\nv_lshl_add_u32 v26, v15, 8, v26")
    k("v_cmp_eq_u32 s[40:41], 1, v10\nv_cmp_eq_u32 s[42:43], 2, v10\nv_cmp_eq_u32 s[44:45], 3, v10" if 0 else "")
    def reads(n):
        c, ks = n//4, n%4; sl = c%5; st = sl//2; imm = (sl-2*st)*SLOT
        L = [f"ds_read_b128 {vr(XB[n%3])}, v{(XA0 if ks<2 else XA1)+st} offset:{imm+32*(ks&1)}"]
        for g in range(3):
            for a in range(2): L.append(f"ds_read_b64_tr_b16 {vr(WB[n%3]+4*g+2*a,2)}, v{WA+st} offset:{imm+ks*3072+g*1024+a*256}")
        return [(x, f"r{n}") for x in L]
    XG = {}
    def put(n, g, L): XG.setdefault((n, g), []).extend(L)
    for i, x in enumerate(clears()): put(OPT.get('clat', 0)+i, 2, [x])
    put(29, 0, ["s_barrier"] + [(f"ds_read_b128 {vr(CP+4*b)}, v29 offset:{512*b}", "cx") for b in range(3)])
    put(30, 0, [lambda: k.waitlg("cx")] + [f"v_add_f32 v{CP+4*b+r}, v{CP+4*b+r}, v{CP+4*b+r+1}" for b in range(2) for r in (0, 2)])
    put(30, 1, [f"v_add_f32 v{CP+4*b}, v{CP+4*b}, v{CP+4*b+2}" for b in range(2)] + [f"v_add_f32 v{CP+8+r}, v{CP+8+r}, v{CP+8+r+1}" for r in (0, 2)])
    put(30, 2, [f"ds_write_b32 v30, v{CP+4*b} offset:{128*b}" for b in range(2)] + [f"v_add_f32 v{CV}, v{CP+8}, v{CP+10}"])
    put(31, 0, [(f"ds_read_b128 {vr(CSA+16+4*a)}, v31 offset:{128+32*a}", "cb") for a in range(4)])
    put(31, 1, [(f"ds_read_b128 {vr(CSA+4*a)}, v31 offset:{32*a}", "ca") for a in range(4)])
    k("s_waitcnt lgkmcnt(0)")
    k("v_cmp_eq_u32 s[40:41], 1, v10\nv_cmp_eq_u32 s[42:43], 2, v10\nv_cmp_eq_u32 s[44:45], 3, v10")
    stamp(k,"m_pre")
    k("s_barrier")
    stamp(k,"m_c0")
    for x in reads(0) + reads(1): em(x)
    for n in range(32):
        c = n//4; x = XB[n%3]; w = WB[n%3]
        z = lambda a, q=16: 0 if n == 0 else vr(a, q)
        S3 = [f"v_mfma_f32_16x16x32_bf16 {vr(SUM)}, {vr(SEL)}, {vr(x)}, {z(SUM,4)}",
              f"v_mfma_f32_4x4x4_16b_bf16 {vr(SQ)}, {vr(x,2)}, {vr(x,2)}, {z(SQ,4)}",
              f"v_mfma_f32_4x4x4_16b_bf16 {vr(SQ+4)}, {vr(x+2,2)}, {vr(x+2,2)}, {z(SQ+4,4)}"]
        M = [f"v_mfma_f32_32x32x16_bf16 {vr(ACC+16,16)}, {vr(w+4)}, {vr(x)}, {z(ACC+16)}",
             f"v_mfma_f32_32x32x16_bf16 {vr(ACC,16)}, {vr(w)}, {vr(x)}, {z(ACC)}",
             f"v_mfma_f32_32x32x16_bf16 {vr(ACC+32,16)}, {vr(x)}, {vr(w+8)}, {z(ACC+32)}"]
        G = {i: [] for i in range(len(M))}
        if n % 4 == 2 and n < 28:
            G[0] += (["s_waitcnt lgkmcnt(0)"] if c <= 3 else []) + ["s_barrier", lambda c=c: stamp(k, f"{'a' if c<3 else 'b'}_c{c+1}")]
        R = reads(n+2) if n < 30 else []
        G[0] += R[0:3]; G[1] += R[3:5]; G[2] += R[5:7]
        for g in range(3): G[g] += XG.get((n, g), [])
        k.waitlg(f"r{n}")
        for y in S3: k(y)
        for i, m in enumerate(M):
            k(m)
            for y in G[i]: em(y)
            if n == 31 and i == 1:
                MU=16; RS=18; QS=20
                for r in range(4): k(f"v_add_f32 v{SQ+r}, v{SQ+r}, v{SQ+4+r}")
                for r in range(1,4): k(f"v_cndmask_b32 v{SQ}, v{SQ}, v{SQ+r}, s[{38+2*r}:{39+2*r}]")
                xhalf_add(k, SQ, 25)
    stamp(k,"m_loop")
    pr = lambda b: vr(b, 2)
    stats_from_sums(k, SUM, SQ, MU, RS, 25)
    k.waitlg("ca")
    k(f"ds_write_b32 v30, v{MU}\nds_write_b32 v30, v{RS} offset:128")
    k(f"v_mul_f32 v{QS}, {fhex(0.25*LOG2E)}, v{RS}")
    TM=128
    for a in range(4): k(f"ds_read_b128 {vr(TM+4*a)}, v31 offset:{32*a}\nds_read_b128 {vr(TM+16+4*a)}, v31 offset:{128+32*a}")
    P=164
    def qk(b):
        for hf in range(2):
            R = range(8*hf, 8*hf+8, 2)
            for r in R: k(f"v_pk_fma_f32 {pr(ACC+16*b+r)}, {pr(MU)}, {pr(CSA+16*b+r)}, {pr(ACC+16*b+r)} op_sel_hi:[0,1,1] neg_lo:[1,0,0] neg_hi:[1,0,0]")
            for r in R: k(f"v_pk_mul_f32 {pr(ACC+16*b+r)}, {pr(QS if b==0 else RS)}, {pr(ACC+16*b+r)} op_sel_hi:[0,1]")
            for r in R: k(f"v_cvt_pk_bf16_f32 v{P+8*b+r//2}, v{ACC+16*b+r}, v{ACC+16*b+r+1}")
            k(f"buffer_store_dwordx4 {vr(P+8*b+4*hf)}, v3, s[4:7], s{[[31,65],[66,67]][b][hf]} offen{sc1}")
    qk(1)
    k("s_waitcnt lgkmcnt(0)")
    for hf in range(2):
        R = range(8*hf, 8*hf+8, 2)
        for r in R: k(f"v_pk_fma_f32 {pr(ACC+32+r)}, {pr(TM+r)}, {pr(CV)}, {pr(ACC+32+r)} op_sel_hi:[1,0,1] neg_lo:[1,0,0] neg_hi:[1,0,0]")
        for r in R: k(f"v_pk_mul_f32 {pr(ACC+32+r)}, {pr(TM+16+r)}, {pr(ACC+32+r)}")
        for r in R: k(f"v_cvt_pk_bf16_f32 v{P+16+r//2}, v{ACC+32+r}, v{ACC+32+r+1}")
        k(f"buffer_store_dwordx4 {vr(P+16+4*hf)}, v26, s[4:7], s68 offen offset:{1024+512*hf}{sc1}")
    qk(0)
    stamp(k,"m_epi")
    stamp_out(k, 0, 32, 18)
    k.label(done)
    k("s_endpgm")
    hopend(k, 4, "L_k1_end")
    k.label("L_k1_end")
    return k
```

```python
from gen3 import *

WA=0; WB=0x10000; RING=0x20000; RP=2064; NR=13; MISC=0x26900; CSL=MISC; STL=MISC+256
UT=43*1024
BOUND=20000
OOB=0x80000000
def M16(d, a, b, c): return f"v_mfma_f32_16x16x32_bf16 {d}, {a}, {b}, {c}"
def M32(d, a, b, c): return f"v_mfma_f32_32x32x16_bf16 {d}, {a}, {b}, {c}"
def w3reg(t, s):
    n = 16*t+s
    return vr(144+4*n) if n < 28 else ar(176+4*(n-28))
def w4reg(ks, nb):
    b = 64+16*ks if ks < 7 else 16*(ks-7)
    return ar(b+4*nb)
pr = lambda b: vr(b,2)

class SA:
    def __init__(s, lo, hi): s.n = lo; s.hi = hi; s.m = {}
    def __call__(s, name, align=1, cnt=1):
        if name in s.m: return s.m[name]
        while s.n % align: s.n += 1
        r = s.n; s.n += cnt
        assert s.n <= s.hi, "out of sgprs"
        s.m[name] = f"s{r}"; return s.m[name]

def gen_k2():
    k = Kern("main_kernel", vgpr=512, sgpr=102, accum=256); k.sb = 78; k.stn = []; k.smax = 11
    k.label("L_code_begin")
    done = "L_k2_done"
    S_ = SA(19, 78)
    X, HD, W, T = "s16", "s17", "s18", S_("T")
    S_("RET", 2, 2); T2 = S_("T2")
    def em(x):
        if callable(x): x()
        elif isinstance(x, tuple): k(x[0], tag=x[1])
        else: k(x)
    k(f"s_cmp_ge_u32 s2, 256\ns_cbranch_scc1 {done}")
    stamp(k,"m_start")
    k("s_load_dwordx2 s[4:5], s[0:1], 80\ns_load_dwordx2 s[8:9], s[0:1], 0\ns_load_dwordx2 s[12:13], s[0:1], 64")
    k(f"s_mov_b32 s6, {WS_SZ:#x}\ns_mov_b32 s7, 0x00020000\ns_mov_b32 s10, 0x200000\ns_mov_b32 s11, 0x00020000\ns_mov_b32 s14, 0x200000\ns_mov_b32 s15, 0x00020000")
    k("v_lshrrev_b32 v2, 6, v0\nv_and_b32 v1, 63, v0")
    k("s_and_b32 s16, s2, 7\ns_lshr_b32 s17, s2, 3")
    k("v_readfirstlane_b32 s18, v2")
    k("v_lshlrev_b32 v3, 4, v1")
    for q in range(1,4): k(f"v_add_u32 v{3+q}, {4096*q:#x}, v3")
    sKV, sRW = S_("KV"), S_("RW")
    k(f"s_lshl_b32 {T2}, {HD}, 16\ns_lshl_b32 {T}, {X}, 13\ns_add_u32 {T2}, {T2}, {T}\ns_lshl_b32 {T}, {W}, 11\ns_add_u32 {T2}, {T2}, {T}")
    k(f"s_lshl_b32 {sKV}, {HD}, 17\ns_add_u32 {sKV}, {sKV}, {T}\ns_add_u32 {sKV}, {sKV}, {KV:#x}")
    k(f"s_mul_i32 {sRW}, {W}, {RP}\ns_add_u32 {sRW}, {sRW}, {RING:#x}")
    QA=16; QB=20; C=24; S=[40,56]; P=[72,80]; O=[88,104]; KR=120; V0=124; V1=128
    KA=7; VA0=8; VA1=9; XV=132; XTV=133
    k(f"s_mov_b32 m0, {sRW}")
    k("s_waitcnt lgkmcnt(0)")
    stamp(k,"k_karg")
    k(f"buffer_load_dwordx4 v3, s[4:7], {sKV} offen lds", tag="g0")
    k(f"buffer_load_dwordx4 {vr(QA)}, v3, s[4:7], {T2} offen", tag="g0")
    k(f"buffer_load_dwordx4 {vr(QB)}, v3, s[4:7], {T2} offen offset:1024", tag="g0")
    k(f"buffer_load_dwordx4 v3, s[4:7], {sKV} offen offset:1024 lds", tag="g0")
    def kvm0(n):
        a = 4*n % NR
        return f"s_add_u32 m0, {sRW}, {a*RP}" if a+3 < NR else f"s_mov_b32 m0, {S_('WR%d'%a)}"
    kvso = f"s_add_u32 {sKV}, {sKV}, 16384"
    def kvld(n): return [(f"buffer_load_dwordx4 v{5 if n & 1 else 3}, s[4:7], {sKV} offen offset:{o} lds", f"g{n}") for o in (0, 1024)]
    for x in [kvm0(1)] + kvld(1) + [kvm0(2), kvso] + kvld(2): em(x)
    MG = "s3"; J, MTB, MT, JW, W14, T14 = [S_(n) for n in "J MTB MT JW W14 T14".split()]
    k(f"s_lshr_b32 {MG}, {HD}, 3\ns_and_b32 {J}, {HD}, 7")
    k(f"s_lshl_b32 {MTB}, {X}, 4\ns_lshl_b32 {T}, {MG}, 2\ns_add_u32 {MTB}, {MTB}, {T}\ns_add_u32 {MT}, {MTB}, {W}")
    k(f"s_lshl_b32 {JW}, {J}, 2\ns_add_u32 {JW}, {JW}, {W}\ns_lshl_b32 {W14}, {W}, 14\ns_lshl_b32 {T14}, {MT}, 14")
    sONE, sM2, sCNT, sXC = S_("ONE"), S_("M2"), S_("CNT"), S_("XC")
    RET = S_("RET", 2, 2); RETP = f"s[{RET[1:]}:{int(RET[1:])+1}]"
    k(f"s_mov_b32 {sONE}, {ONES:#x}\ns_mov_b32 {sM2}, -2\ns_mov_b32 {sCNT}, 0")
    k(f"s_getreg_b32 {sXC}, hwreg(HW_REG_XCC_ID, 0, 4)")
    for r in range(4): k(f"v_accvgpr_write_b32 a{168+r}, -1")
    k("v_and_b32 v10, 31, v1\nv_lshrrev_b32 v11, 5, v1\nv_and_b32 v12, 15, v1\nv_lshrrev_b32 v13, 4, v1")
    sXT = S_("XT")
    k(f"s_lshl_b32 {sXT}, {X}, 12\ns_add_u32 {sXT}, {sXT}, {XT:#x}\ns_lshl_b32 {T}, {HD}, 7\ns_add_u32 {T}, {T}, {sXT}")
    k(f"v_sub_u32 v14, 0, v0\nv_and_b32 v14, {OOB:#x}, v14\nv_mov_b32 v15, {sXC}")
    k(f"buffer_store_dword v15, v14, s[4:7], {T} offen sc1", tag="clr")
    sCL, sSet, sXT_, sW2a, sW2b = S_("CL"), S_("Set"), S_("XTl"), S_("W2a"), S_("W2b")
    k(f"s_mul_i32 {sSet}, {X}, {SETS:#x}\ns_add_u32 {sSet}, {sSet}, {SETB:#x}")
    k(f"s_lshl_b32 {T}, {HD}, 2\ns_add_u32 {T}, {T}, {W}\ns_mul_i32 {T}, {T}, 12288\ns_add_u32 {sCL}, {sSet}, {T}")
    CL = [f"buffer_store_dwordx4 a[168:171], v{3+i//4}, s[4:7], {sCL} offen offset:{1024*(i%4)}" for i in range(12)]
    atr = []
    def clpair(i):
        def f():
            a = k.newlabel("Z"); c = k.newlabel("C")
            k(f"s_cbranch_scc1 {a}")
            for x in CL[i:i+2]: k(x, tag="clr")
            k.label(c)
            atr.append([f"{a}:"] + [x + " sc1" for x in CL[i:i+2]] + [f"s_branch {c}"])
        return f
    k(f"v_lshlrev_b32 v{XV}, 10, v12\nv_lshl_add_u32 v{XV}, v13, 4, v{XV}")
    k(f"s_lshl_b32 {sXT_}, {J}, 7\ns_add_u32 {sXT_}, {sXT_}, {T14}")
    EL = [(f"buffer_load_dwordx4 a[160:163], v{XV}, s[8:11], {sXT_} offen", "w"), (f"buffer_load_dwordx4 a[164:167], v{XV}, s[8:11], {sXT_} offen offset:64", "w")]
    sSh, sSx = S_("Sh"), S_("Sx")
    k(f"s_and_b32 {T}, {MT}, 15\ns_lshl_b32 {T}, {T}, 10\ns_add_u32 {sSh}, {sSet}, {T}\ns_add_u32 {sSh}, {sSh}, {SO:#x}\ns_add_u32 {sSx}, {sSh}, 0x4000")
    sWO, sW1, sSA, sSB = S_("WO"), S_("W1"), RET, S_("SB")
    k(f"s_lshl_b32 {T2}, {J}, 16\ns_add_u32 {sWO}, {T2}, {W14}\ns_add_u32 {sW1}, {sWO}, {W1F:#x}\ns_add_u32 {sWO}, {sWO}, {WOF:#x}")
    k(f"s_mul_i32 {sSA}, {W}, 6144\ns_mul_i32 {sSB}, {W}, 10240\ns_add_u32 {sSB}, {sSB}, 24576\ns_add_u32 {T2}, {T2}, {W2F:#x}")
    def ldr(dst, so, i, vo=None): return (f"buffer_load_dwordx4 {dst}, {vo or 'v%d' % (3+i//4)}, s[4:7], {so} offen offset:{1024*(i%4)}", "w")
    k(f"s_add_u32 {sW2a}, {T2}, {sSA}\ns_add_u32 {sW2b}, {T2}, {sSB}")
    EL += [ldr(ar(4*i), sW2a, i) for i in range(6)] + [ldr(ar(24+4*i), sW2b, i) for i in range(10)]
    if OPT.get('xlate'): EL = EL[2:] + EL[:2]
    ne = OPT.get('early', 6)
    for x in EL[:ne]: em(x)
    EL = EL[ne:]
    for a in (10, 11, 12):
        r = S_(f"WR{a}")
        k(f"s_cmp_ge_u32 {W}, {NR-a}\ns_cselect_b32 {T}, {NR*RP}, 0\ns_sub_u32 {r}, {sRW}, {T}\ns_add_u32 {r}, {r}, {a*RP}")
    s3 = [S_("3a"), S_("3b"), S_("3c")]; s4 = [S_("4a"), S_("4b"), S_("4c")]
    k(f"s_lshl_b32 {s3[0]}, {JW}, 15\ns_add_u32 {s3[0]}, {s3[0]}, {W3F:#x}\ns_add_u32 {s3[1]}, {s3[0]}, 16384")
    k(f"s_add_u32 {s3[2]}, {JW}, 64\ns_min_u32 {s3[2]}, {s3[2]}, 85\ns_lshl_b32 {s3[2]}, {s3[2]}, 14\ns_add_u32 {s3[2]}, {s3[2]}, {W3F:#x}")
    k(f"s_mul_i32 {s4[0]}, {J}, 43\ns_mul_i32 {T}, {W}, 11\ns_add_u32 {s4[0]}, {s4[0]}, {T}\ns_lshl_b32 {s4[0]}, {s4[0]}, 12\ns_add_u32 {s4[0]}, {s4[0]}, {W4F:#x}")
    k(f"s_add_u32 {s4[1]}, {s4[0]}, 16384\ns_add_u32 {s4[2]}, {s4[0]}, 32768")
    sOs = [S_("Os0"), S_("Os1")]
    k(f"s_lshl_b32 {sOs[0]}, {X}, 18\ns_lshl_b32 {T}, {W}, 16\ns_add_u32 {sOs[0]}, {sOs[0]}, {T}\ns_lshl_b32 {T}, {HD}, 9\ns_add_u32 {sOs[0]}, {sOs[0]}, {T}\ns_add_u32 {sOs[0]}, {sOs[0]}, {OF:#x}\ns_add_u32 {sOs[1]}, {sOs[0]}, 0x8000")
    sOl, sHl, sHs, sGl, sGs, sXl, sXs, sDP, sDN, sMB, sSV = [S_(n) for n in "Ol Hl Hs Gl Gs Xl Xs DP DN MB SV".split()]
    k(f"s_add_u32 {sOl}, {T14}, {OF:#x}\ns_and_b32 {T14}, {T14}, 0x3ffff\ns_add_u32 {T14}, {T14}, {sSet}")
    k(f"s_add_u32 {sHl}, {T14}, {HO:#x}\ns_add_u32 {sXl}, {T14}, {XO:#x}\ns_sub_u32 {sGl}, {T14}, {32+16384-GO:#x}")
    k(f"s_lshl_b32 {T}, {J}, 11\ns_add_u32 {sHs}, {sHl}, {T}\ns_add_u32 {sXs}, {sXl}, {T}\ns_sub_u32 {sGs}, {sHs}, {HO-GO:#x}")
    sOt = MTB2 = S_("Ot")
    k(f"s_add_u32 {sOt}, {sOl}, {T}\nv_lshlrev_b32 v{XV+2}, 5, v1")
    k(f"s_lshl_b32 {T2}, {X}, 15\ns_add_u32 {sMB}, {T2}, {T}\ns_add_u32 {sMB}, {sMB}, {GM:#x}")
    k(f"s_sub_u32 {T2}, {T2}, {T14}\ns_add_u32 {T2}, {T2}, {GM-GO+16384:#x}")
    k(f"s_add_u32 {sDP}, {T2}, {(256-16384) & 0xffffffff:#x}\ns_add_u32 {sDN}, {T2}, {32768-256}")
    k(f"s_cmp_eq_u32 {X}, 0\ns_cselect_b32 {sDP}, {OOB:#x}, {sDP}\ns_cmp_eq_u32 {X}, 7\ns_cselect_b32 {sDN}, {OOB:#x}, {sDN}")
    k(f"s_and_b32 {T}, {MT}, 15\ns_cmp_eq_u32 {T}, 0\ns_cselect_b32 {sDP}, {sDP}, 256\ns_cmp_eq_u32 {T}, 15\ns_cselect_b32 {sDN}, {sDN}, {32768-256}")
    k(f"s_cselect_b32 {T2}, 16384, 0\ns_add_u32 {sMB}, {sMB}, {T2}")
    k(f"s_bitcmp1_b32 {J}, 1\ns_cselect_b32 {T2}, 0, 15\ns_cmp_eq_u32 {T}, {T2}\ns_cselect_b32 {sMB}, {sMB}, 0")
    k(f"s_lshr_b32 {sSV}, {J}, 1\ns_lshl_b32 {sSV}, {sSV}, 8\ns_and_b32 {T}, {J}, 1\ns_lshl_b32 {T}, {T}, 3\ns_add_u32 {sSV}, {sSV}, {T}")
    sTid = [W] + [S_(f"Tid{q}") for q in range(1,4)]
    sUs = [S_(f"Us{q}") for q in range(4)]; sUl = [sSet, T14] + [S_(f"Ul{q}") for q in range(2,4)]; sHF, sOut = MG, [JW, MT]
    for q in range(1,4): k(f"s_cmp_le_u32 {W}, {q-1}\ns_cselect_b32 {sTid[q]}, {q}, {q-1}")
    k(f"s_mul_i32 {T2}, {MG}, {4*UT}\ns_add_u32 {sSet}, {sSet}, {T2}\ns_add_u32 {sSet}, {sSet}, {UO:#x}")
    k(f"s_lshl_b32 {T}, {JW}, 10\ns_add_u32 {T}, {T}, {sSet}")
    for q in range(4): k(f"s_mul_i32 {sUs[q]}, {sTid[q]}, {UT}\ns_add_u32 {sUs[q]}, {sUs[q]}, {T}")
    k(f"s_lshr_b32 {T}, {JW}, 1\ns_add_u32 {T}, {T}, 32\ns_sub_u32 {T}, {T}, {JW}\ns_lshl_b32 {T}, {T}, 10\ns_and_b32 {T2}, {JW}, 1\ns_lshl_b32 {T2}, {T2}, 3\ns_add_u32 {T}, {T}, {T2}")
    k(f"s_cmp_lt_u32 {JW}, 22\ns_cselect_b32 {sHF}, {T}, {OOB:#x}")
    k(f"s_mul_i32 {T}, {W}, {11*1024}\ns_add_u32 {sUl[0]}, {sSet}, {T}")
    for t in range(1,4): k(f"s_add_u32 {sUl[t]}, {sUl[0]}, {t*UT}")
    k(f"s_lshr_b32 {T}, {W}, 1\ns_add_u32 {T}, {T}, {MTB}\ns_lshl_b32 {sOut[0]}, {T}, 14\ns_lshl_b32 {T}, {J}, 7\ns_add_u32 {sOut[0]}, {sOut[0]}, {T}")
    k(f"s_and_b32 {T}, {W}, 1\ns_lshl_b32 {T}, {T}, 6\ns_add_u32 {sOut[0]}, {sOut[0]}, {T}\ns_add_u32 {sOut[1]}, {sOut[0]}, 0x8000")
    k(f"v_add_u32 v{KA}, {RING:#x}, v3")
    k(f"v_lshlrev_b32 v14, 4, v12\nv_lshl_add_u32 v14, v11, 8, v14")
    k(f"v_add_u32 v{VA0}, {RING+1024:#x}, v14\nv_add_u32 v{VA1}, {RING+1536:#x}, v14\nv_mov_b32 v15, {RING+2048:#x}")
    k(f"v_cmp_gt_u32 vcc, 16, v10\nv_cndmask_b32 v{VA0}, v15, v{VA0}, vcc\nv_cndmask_b32 v{VA1}, v15, v{VA1}, vcc")
    k("v_lshrrev_b32 v2, 4, v10\nv_lshl_add_u32 v2, v2, 14, v14")
    k(f"v_lshlrev_b32 v{XTV}, 7, v10")
    k(f"v_min_u32 v15, {NR-1}, v1\nv_mul_u32_u24 v15, {RP}, v15\nv_add_u32 v15, {RING+2048:#x}, v15")
    for r in range(4): k(f"v_mov_b32 v{V0+r}, {sONE}")
    k(f"ds_write_b128 v15, {vr(V0)}")
    for r in range(4): k(f"v_accvgpr_write_b32 a{172+r}, v{V0}")
    for r in range(32): k(f"v_mov_b32 v{O[0]+r}, 0")
    for r in range(4,8): k(f"v_mov_b32 v{P[1]+r}, 0")
    for r in range(4): k(f"v_mov_b32 v{V1+r}, 0")
    k(f"s_lshl_b32 {T}, {W}, 10\ns_add_u32 {T}, {T}, {WB:#x}\nv_add_u32 v10, {T}, v3")
    k(f"s_lshl_b32 {T}, {W}, 6\ns_add_u32 {T}, {T}, {CSL:#x}\nv_lshlrev_b32 v11, 4, v13\nv_add_u32 v11, {T}, v11")
    k(f"v_add_u32 v15, {sSA}, v{KA}")
    if OPT.get('cpf'):
        pc = k.newlabel()
        k(f"s_getpc_b64 {RETP}"); k.label(pc)
        k(f"s_add_u32 {RET}, {RET}, L_attn_fin-{pc}\ns_addc_u32 s{int(RET[1:])+1}, s{int(RET[1:])+1}, 0\ns_lshl_b32 {T}, {W}, 13")
        k(f"v_lshlrev_b32 v136, 7, v1\nv_add_u32 v136, {T}, v136\nv_min_u32 v136, L_code_end-L_attn_fin-4, v136\nv_mov_b32 v137, s{int(RET[1:])+1}")
        k(f"v_add_co_u32 v136, vcc, {RET}, v136\nv_addc_co_u32 v137, vcc, 0, v137, vcc")
    DM = []
    for so, lb in ((sWO, WA), (sW1, WB)):
        for q in range(4): DM.append((f"s_add_u32 m0, {W14}, {lb+4096*q:#x}", [(f"buffer_load_dwordx4 v{3+q}, s[4:7], {so} offen offset:{1024*i} lds", "w") for i in range(4)]))
    RL = [ldr(w3reg(t, s), s3[t], s) for t in range(3) for s in range(16)] + [ldr(w4reg(i//4, i%4), s4[i//16], i%16) for i in range(24)]
    if OPT.get('nofill'): DM = []
    if OPT.get('fakeld'):
        import re as _re
        fk = lambda x: (_re.sub(r"s\[4:7\], s\d+ ", "s[4:7], 0 ", x[0]), x[1])
        DM = [(m, [fk(x) for x in L]) for m, L in DM]; RL = [fk(x) for x in RL]; EL = [fk(x) for x in EL]
    spot = {}
    def put(t, sp, x): spot.setdefault((t, sp), []).append(x)
    for n in range(1, 14):
        put(4*n-2, 'Bpv_s', kvm0(n+2))
        if not (n+2) & 1: put(4*n-2, 'Bmid_s', kvso)
        for x in kvld(n+2): put(4*n-1, 'Apv', x)
    free = []
    F0 = OPT.get('fill0', 0)
    for t in range(F0, 64):
        g = (t+1-F0)//4
        if t % 4 in (0, 1) and g < len(DM):
            for x in DM[g][1][2*(t%4):2*(t%4)+2]: put(t, 'Apv', x)
            if t % 4 == 0:
                if t: put(t-1, 'Bmid_s', DM[g][0])
                else: k(DM[g][0])
        elif t % 4 == 3 and t < 55: free.append((t, 'Bpre'))
        else: free.append((t, 'Apv'))
    LT = OPT.get('lastfill', 56)
    free = [f for f in free if f[0] < LT]
    RL = EL + RL
    if OPT.get('nofill'): RL = []; CL = []
    FL = [RL[i:i+2] for i in range(0, len(RL), 2)]
    C0 = OPT.get('clr0', 36); ctl = [t for t in range(C0, 64) if t % 4 in (0, 1)][:len(CL)//2]
    assert not ctl or ctl[-1] < 51
    for i, t in enumerate(ctl):
        put(t-1, 'Bpv_s', "s_cmp_lg_u64 s[0:1], 0"); put(t, 'Bmid', clpair(2*i))
    put(C0-13, 'Bmid', (f"buffer_load_dword v{XTV}, v{XTV}, s[4:7], {sXT} offen sc1", "xt"))
    put(C0-2, 'Bpre', lambda: (k.waitvm("xt"), k(f"v_cmp_ne_u32 s[0:1], {sXC}, v{XTV}" if not OPT.get('slowtail') else "s_mov_b64 s[0:1], -1")))
    if OPT.get('cpf'): put(OPT['cpf'], 'Bmid', ("global_load_dword v0, v[136:137], off", "cpf"))
    if OPT.get('spf', 8):
        n = OPT.get('spf', 8); L = -(-50//n); h = n//2
        k(f"s_mul_i32 {T}, {X}, {SETS:#x}\ns_lshl_b32 {T2}, {HD}, 2\ns_add_u32 {T2}, {T2}, {W}\ns_mul_i32 {T2}, {T2}, 6400\ns_add_u32 {T}, {T}, {T2}\ns_add_u32 {T}, {T}, {SETB:#x}")
        k(f"v_sub_u32 v139, {L-1}, v1\nv_and_b32 v139, {OOB:#x}, v139\nv_lshl_add_u32 v138, v1, 7, v139\nv_add_u32 v138, {T}, v138\nv_add_u32 v139, {128*L*h}, v138")
        t0 = OPT.get('spft', 30); ts = OPT.get('spfs', 4)
        for i in range(n): put(t0+ts*i, 'Bmid', (f"buffer_load_dword v0, v{138+i//h}, s[4:7], 0 offen offset:{128*L*(i%h)} sc1", "spf"))
        if OPT.get('spu'):
            k(f"s_mul_i32 {T2}, {T2}, 43\ns_mul_i32 {T}, {X}, {SETS:#x}\ns_add_u32 {T}, {T}, {SETB+UO:#x}")
            k(f"s_lshl_b32 {T2}, {HD}, 2\ns_add_u32 {T2}, {T2}, {W}\ns_mul_i32 {T2}, {T2}, {43*128}\ns_add_u32 {T}, {T}, {T2}")
            k(f"v_sub_u32 v140, 42, v1\nv_and_b32 v140, {OOB:#x}, v140\nv_lshl_add_u32 v140, v1, 7, v140\nv_add_u32 v140, {T}, v140")
            put(OPT['spu'], 'Bmid', (f"buffer_load_dword v0, v140, s[4:7], 0 offen sc1", "spf"))
    put(51, 'Bmid', (f"buffer_load_dword v0, v{XV+2}, s[4:7], {sOt} offen sc1", "ot"))
    need = len(FL) - len(free)
    cand = [t for t in range(F0, LT) if t % 4 != 3 and t not in ctl]
    for i in range(max(0, need)): free.append((cand[i*len(cand)//need], 'Bmid'))
    free.sort()
    for f, xs in zip(free, FL):
        for x in xs: put(*f, x)
    assert RET == "s20"
    if OPT.get('hop', 1) & 1: hopentry(k, W, k.name, 4, 1)
    k.waitvm("g0", "lgkmcnt(0)")
    k("s_barrier")
    stamp(k,"m_g0")
    k(f"ds_read_b128 {vr(KR)}, v{KA}\nds_read_b128 {vr(V0)}, v{VA0}")
    k("s_waitcnt lgkmcnt(1)")
    k(M32(vr(S[0],16), vr(KR), vr(QA), 0)); k(M32(vr(S[1],16), vr(KR), vr(QB), 0))
    k(f"v_max_f32 v{C}, v{S[0]}, v{S[0]+1}")
    for r in range(2,32,2): k(f"v_max3_f32 v{C}, v{C}, v{S[0]+r}, v{S[0]+r+1}")
    k(f"v_mov_b32 v{C+1}, v{C}\nv_permlane32_swap_b32 v{C}, v{C+1}\nv_max_f32 v{C}, v{C}, v{C+1}")
    k(f"v_sub_f32 v{C}, 0, v{C}")
    for r in range(1,16): k(f"v_mov_b32 v{C+r}, v{C}")
    for r in range(0,16,2): k(f"v_pk_add_f32 {pr(S[0]+r)}, {pr(S[0]+r)}, {pr(C)}")
    k(f"v_mov_b32 v{S[1]+14}, 0\nv_mov_b32 v{S[1]+15}, 0")
    stamp(k,"k_att0")
    MIDJ = OPT.get('midj', 1); PVJ = OPT.get('pvj', 5)
    def half(X_, t):
        s = S[X_]; p = P[X_]; Y = 1-X_; last = t == 63
        pos = lambda tt: (tt % NR)*RP
        g = lambda sp: spot.get((t, sp), [])
        if X_ == 0:
            a = []
            if (t+1) % 4 == 0 and not last: a = [lambda: k.waitvm(f"g{(t+1)//4}"), "s_barrier"]
            if not last: a.append(f"ds_read_b128 {vr(KR)}, v{KA} offset:{pos(t+1)}")
            pre = [M32(vr(S[1],16), vr(KR), vr(QB), vr(C,16))] + a
            mid = [f"s_waitcnt lgkmcnt({0 if last else 1})", f"ds_read_b128 {vr(V1)}, v{VA1} offset:{pos(t)}"]
            pv = ([] if last else ["s_waitcnt lgkmcnt(1)"]) + g('Apv')
        else:
            pre = ([] if last else [M32(vr(S[0],16), vr(KR), vr(QA), vr(C,16))]) + ["s_waitcnt lgkmcnt(0)"] + g('Bpre')
            mid = g('Bmid_s') + g('Bmid')
            pv = g('Bpv_s') + ([] if last else [f"ds_read_b128 {vr(V0)}, v{VA0} offset:{pos(t+1)}"])
        for j in range(8):
            k(f"v_exp_f32 v{s+2*j}, v{s+2*j}")
            if j == 0:
                k(f"v_cvt_pk_bf16_f32 v{P[Y]+7}, v{S[Y]+14}, v{S[Y]+15}")
                for x in pre: em(x)
            k(f"v_exp_f32 v{s+2*j+1}, v{s+2*j+1}")
            if j >= 1: k(f"v_cvt_pk_bf16_f32 v{p+j-1}, v{s+2*j-2}, v{s+2*j-1}")
            if j == MIDJ:
                k(M32(vr(O[Y],16), vr(V1), vr(P[Y]+4), vr(O[Y],16)))
                for x in mid: em(x)
            if j == PVJ:
                k(M32(vr(O[X_],16), vr(V0), vr(p), vr(O[X_],16)))
                for x in pv: em(x)
    for t in range(64):
        half(0, t); half(1, t)
        if t == 31: stamp(k,"m_att32")
        stamp(k, f"t{t%4}_{t:02d}")
    k(f"v_cvt_pk_bf16_f32 v{P[1]+7}, v{S[1]+14}, v{S[1]+15}")
    T0 = S[0]
    k(f"v_rcp_f32 v{T0+4}, v{O[0]+8}")
    k(M32(vr(O[1],16), vr(V1), vr(P[1]+4), vr(O[1],16)))
    stamp(k,"m_att64")
    def norm(X_):
        for r in range(0,8,2): k(f"v_pk_mul_f32 {pr(O[X_]+r)}, {pr(O[X_]+r)}, {pr(T0+4+2*X_)} op_sel_hi:[1,0]")
        for r in range(4): k(f"v_cvt_pk_bf16_f32 v{P[X_]+r}, v{O[X_]+2*r}, v{O[X_]+2*r+1}")
        k(f"v_min_u32 v{P[X_]}, {sM2}, v{P[X_]}")
    k(f"v_pk_mul_f32 {pr(T0)}, {pr(O[0]+8)}, 0 op_sel_hi:[1,0]")
    for r in range(0,8,2): k(f"v_pk_fma_f32 {pr(T0)}, {pr(O[0]+r)}, 0, {pr(T0)} op_sel_hi:[1,0,1]")
    norm(0)
    k(f"s_mov_b32 {T}, {fhex(2.0**-30)}\ns_mov_b32 {T2}, {fhex(2.0**30)}")
    k(f"v_rcp_f32 v{T0+6}, v{O[1]+8}")
    for r in range(0,10,2): k(f"v_pk_fma_f32 {pr(T0)}, {pr(O[1]+r)}, 0, {pr(T0)} op_sel_hi:[1,0,1]")
    k(f"v_min_f32 v{T0+2}, v{O[0]+8}, v{O[1]+8}\nv_max_f32 v{T0+3}, v{O[0]+8}, v{O[1]+8}")
    k(f"v_cmp_u_f32 vcc, v{T0}, v{T0+1}")
    k(f"v_cmp_gt_f32 {RETP}, {T}, v{T0+2}")
    k(f"s_or_b64 vcc, vcc, {RETP}")
    k(f"v_cmp_lt_f32 {RETP}, {T2}, v{T0+3}")
    k(f"s_or_b64 vcc, vcc, {RETP}")
    if OPT['slow']: k("s_branch L_attn_slow")
    if not OPT.get('noslow'): k("s_cbranch_vccnz L_attn_slow")
    k.label("L_attn_fin")
    k("s_cmp_lg_u64 s[0:1], 0")
    k("s_cbranch_scc1 L_tail_sc")

    def tail(fast):
        sc = "" if fast else " sc1"
        stubs = []; tramp = []
        st = (lambda n: stamp(k, n)) if fast != bool(OPT.get('slowtail')) else (lambda n: None)
        ACT=16; H=80; STR=96; A2=100; TMP=132; PK=ACT+32
        WV = [120,124,128,132,136,140,96,100,116,104,108,112]
        R10 = [ar(4*i) for i in range(6)] + [vr(116+4*i) for i in range(4)]
        def buf(e): return vr(WV[e % 12]) if e < 80 else R10[(e-80) % 10]
        def rd(e):
            if e < 16: a = f"v10 offset:{4096*e}"
            elif e < 80: a = f"v3 offset:{1024*(e-16)}"
            elif e < 144: a = f"v8 offset:{1024*(e-80)}"
            elif e < 168: a = f"v{KA} offset:{1024*(e-144)}"
            else: a = f"v3 offset:{1024*(e-144)}"
            return (f"ds_read_b128 {buf(e)}, {a}", f"r{e}")
        def refill(e):
            n = e+12 if e < 78 else (e+10 if e >= 80 else None)
            return [rd(n)] if n is not None and n < 208 else []
        def stub(name, L):
            lab = k.newlabel("S"+name)
            o = [f"{lab}:"]
            for x, regs in L:
                sk = k.newlabel("K")
                o += maxl(regs) + [f"s_cbranch_vccz {sk}", x, f"{sk}:"]
            o += ["s_waitcnt vmcnt(0)", f"s_setpc_b64 {RETP}"]
            stubs.append(o); return dict(lab=lab, L=L, iss=set())
        def maxl(regs):
            r = list(regs); o = []
            if len(r) == 1: return [f"v_cmp_eq_u32 vcc, -1, v{r[0]}"]
            if len(r) % 2 == 0: o.append(f"v_max_u32 v0, v{r[0]}, v{r[1]}"); r = r[2:]
            else: o.append(f"v_max3_u32 v0, v{r[0]}, v{r[1]}, v{r[2]}"); r = r[3:]
            while r: o.append(f"v_max3_u32 v0, v0, v{r[0]}, v{r[1]}"); r = r[2:]
            return o + ["v_cmp_eq_u32 vcc, -1, v0"]
        def br(D, own):
            def f():
                a = k.newlabel("R"); c = k.newlabel("C")
                if D.get('inl'):
                    assert all(i in D['iss'] for i in own), (own, D['iss'])
                    D['iss'] -= set(own)
                    od = D['ord']; p0 = min(j for j, (i, q) in enumerate(od) if i in own and i < 16)
                    p1 = max(j for j, (i, q) in enumerate(od) if i in own)
                    assert len(k.vmq) - od[p0][1] == len(od) - p0
                    re_ = [i for j, (i, q) in enumerate(od) if j >= p0 or i in own]
                    o = [D['L'][i][0] for i in re_] + [f"s_add_u32 {sCNT}, {sCNT}, 1", f"s_cmp_gt_u32 {sCNT}, {BOUND}", f"s_waitcnt vmcnt({len(od)-1-p1})"]
                    o += maxl([r for i in own for r in D['L'][i][1]]) + [f"s_cbranch_scc1 {c}", f"s_cbranch_vccnz {a}"]
                    if D['inl'] == 1 or (D['inl'] == 3 and 0 in own):
                        k(f"s_cbranch_vccz {c}"); k.label(a)
                        n0 = len(k.vmq)
                        for x in o: k(x)
                        del k.vmq[n0:]
                        k.label(c)
                    else:
                        k(f"s_cbranch_vccnz {a}"); k.label(c)
                        tramp.append([f"{a}:"] + o + [f"s_branch {c}"])
                    return
                k(f"s_cbranch_vccnz {a}"); k.label(c)
                assert all(i in D['iss'] for i in own), (own, D['iss'])
                D['iss'] -= set(own)
                o = [f"{a}:"] + [D['L'][i][0] for i in own]
                o += [f"s_add_u32 {sCNT}, {sCNT}, 1", f"s_cmp_gt_u32 {sCNT}, {BOUND}", "s_waitcnt vmcnt(0)", f"s_cbranch_scc1 {c}"]
                o += maxl([r for i in own for r in D['L'][i][1]]) + [f"s_cbranch_vccnz {a}"]
                if D['iss']:
                    o += maxl([r for i in sorted(D['iss']) for r in D['L'][i][1]]) + [f"s_cbranch_vccz {c}", f"s_call_b64 {RETP}, {D['lab']}"]
                tramp.append(o + [f"s_branch {c}"])
            return f
        def iss(D, i, tag):
            def f():
                D.setdefault('ord', []).append((i, len(k.vmq)))
                k(D['L'][i][0], tag=tag); D['iss'].add(i)
            return f
        def stream(M, G):
            for i, m in enumerate(M):
                k(m)
                for x in G.get(i, []): em(x)
        def spread(G, items, gaps):
            n = len(items); g = len(gaps)
            for i, x in enumerate(items): G.setdefault(gaps[i*g//n], []).append(x)
        LA = OPT.get('la', 8)
        def actl(name, vo, so, sst, sreg=STR):
            L = [(f"buffer_load_dwordx4 {vr(ACT+4*s)}, v{vo[s//4]}, s[4:7], {so} offen offset:{1024*(s%4)} sc1", [ACT+4*s]) for s in range(16)]
            if sst: L.append((f"buffer_load_dwordx4 {vr(sreg)}, v3, s[4:7], {sst} offen sc1", [sreg+i for i in range(4)]))
            D = stub(name, L)
            D['inl'] = OPT.get('inl', 1)
            if D['inl']: stubs.pop()
            I = [iss(D, s, f"{name}{s//2}") for s in range(16)]
            if sst: I.insert(6, iss(D, 16, "sts"))
            n = LA + (1 if sst else 0)
            D['rest'] = I[n:]
            return I[:n], D
        def first_check(name, D):
            k.waitvm(f"{name}0")
            for x in maxl([ACT, ACT+4]): k(x)
            br(D, [0, 1])()
        def mstage(name, D, e0, AC, zero, has_st, early, late, fin=()):
            M = [M16(vr(AC+4*(i%4)), buf(e0+i), vr(ACT+4*(i//4)), 0 if (zero and i < 4) else vr(AC+4*(i%4))) for i in range(64)]
            G = {i: [] for i in range(64)}
            used = set()
            for i in range(64):
                if i % 2 == 1 and i < 63: G[i].append(lambda i=i: k.waitlg(f"r{e0+i+2}"))
                p = i//8
                if p < 7 and i % 8 == 4: G[i].append(lambda p=p: k.waitvm(f"{name}{p+1}"))
                if p < 7 and i % 8 == 6: G[i].append(br(D, ([16] if has_st and p == 3 else []) + [2*p+2, 2*p+3]))
                G[i] += refill(e0+i)
            for j, x in enumerate(D['rest']):
                gi = 8*(j//2) + (0, 7)[j % 2]; G[gi].append(x); used.add(gi)
            for p in range(7):
                regs = [ACT+8*p+8, ACT+8*p+12]
                if has_st and p == 3: regs = [STR, STR+1, STR+2, STR+3] + regs
                L = maxl(regs)
                for j, x in enumerate(L):
                    gi = 8*p+5-(len(L)-1-j); G[gi].append(x); used.add(gi)
            for j, x in enumerate(fin): G[56+j].append(x); used.add(56+j)
            spread(G, list(early), [i for i in range(0, 32) if i not in used])
            spread(G, list(late), [i for i in range(31, 64) if i not in used])
            st(f"{name}_w")
            first_check(name, D)
            k.waitlg(f"r{e0+1}")
            st(f"{name}_m")
            stream(M, G)
            st(f"{name}_e")
        def packstore(AC, so):
            for p in range(2):
                for r in range(4): k(f"v_cvt_pk_bf16_f32 v{PK+4*p+r}, v{AC+8*p+2*r}, v{AC+8*p+2*r+1}")
                k(f"v_min_u32 v{PK+4*p}, {sM2}, v{PK+4*p}")
                k(f"buffer_store_dwordx4 {vr(PK+4*p)}, v3, s[4:7], {so} offen offset:{1024*p}{sc}", tag="st")
        SV=9
        def pstats(so, a):
            k(f"v_dot2_f32_bf16 v{a}, v{PK}, {sONE}, 0\nv_dot2_f32_bf16 v{a+1}, v{PK}, v{PK}, 0")
            for r in range(1,8): k(f"v_dot2_f32_bf16 v{a}, v{PK+r}, {sONE}, v{a}\nv_dot2_f32_bf16 v{a+1}, v{PK+r}, v{PK+r}, v{a+1}")
            k(f"v_permlane16_swap_b32 v{a}, v{a+1}\nv_add_f32 v{a}, v{a}, v{a+1}")
            xhalf_add(k, a, a+1)
            k(f"v_min_u32 v{a}, {sM2}, v{a}")
            k(f"buffer_store_dword v{a}, v{SV}, s[4:7], {so} offen{sc}", tag="st")
        def cs3(t): return [M16(ar(160+4*t), w3reg(t, s), "a[172:175]", 0 if s == 0 else ar(160+4*t)) for s in range(16)]
        def statlist(a, NMU, RS, t):
            L = [f"v_add_f32 v{a}, v{a}, v{a+2}", f"v_add_f32 v{a+1}, v{a+1}, v{a+3}"]
            for op in ("v_permlane16_swap_b32", "v_permlane32_swap_b32"):
                L += [f"v_mov_b32 v{a+2}, v{a}", f"v_mov_b32 v{a+3}, v{a+1}", f"{op} v{a}, v{a+2}", f"{op} v{a+1}, v{a+3}",
                      f"v_add_f32 v{a}, v{a}, v{a+2}", f"v_add_f32 v{a+1}, v{a+1}, v{a+3}"]
            L += [f"v_mul_f32 v{NMU}, {fhex(-1/512)}, v{a}", f"v_mul_f32 v{a+1}, {fhex(1/512)}, v{a+1}", f"v_fma_f32 v{a+1}, -v{NMU}, v{NMU}, v{a+1}",
                  f"v_max_f32 v{a+1}, 0, v{a+1}", f"v_add_f32 v{t}, {fhex(EPS)}, v{a+1}", f"v_rsq_f32 v{RS}, v{t}"]
            return L
        def gconsts(R, IRS, A, B):
            return [f"v_rcp_f32 v{IRS}, v{R}", f"v_mul_f32 v{A}, v{R}, v{R}", f"v_mul_f32 v{B}, {fhex(GB)}, v{R}", f"v_mul_f32 v{A}, v{A}, v{R}", f"v_mul_f32 v{A}, {fhex(GA)}, v{A}"]
        def window(M, loads, pre, extra):
            G = {}
            n = len(M)
            spread(G, loads, list(range(pre, n)))
            for gi, x in extra: G.setdefault(gi, []).append(x)
            stream(M, G)
        PRB = OPT.get('prb', 1)
        def probe(name, so, I, work):
            nsp = OPT.get(name+'sp', OPT.get('spec', 0))
            k(f"v_lshlrev_b32 v{ACT+63}, 8, v1")
            if OPT.get('dbgst'):
                st(f"{name}_a"); k("s_waitcnt vmcnt(1)"); st(f"{name}_b"); k("s_waitcnt vmcnt(0)"); st(f"{name}_c")
            pl = [f"buffer_load_dword v0, v{ACT+63}, s[4:7], {so} offen sc1"]
            for x in pl: k(x, tag="prb")
            n0 = len(k.L)
            for x in I[:nsp]: em(x)
            rep = [x.strip() for x in k.L[n0:]]
            work()
            k.waitvm("prb")
            st(f"{name}_p")
            P_ = k.newlabel("P"); OK = k.newlabel("Q")
            k(f"v_cmp_eq_u32 vcc, -1, v0\ns_cbranch_vccz {OK}")
            k.label(P_)
            n0 = len(k.vmq)
            for x in pl + rep: k(x)
            del k.vmq[n0:]
            k(f"s_add_u32 {sCNT}, {sCNT}, 1\ns_cmp_gt_u32 {sCNT}, {BOUND}\ns_waitcnt vmcnt({nsp})\nv_cmp_eq_u32 vcc, -1, v0\ns_cbranch_scc1 {OK}\ns_cbranch_vccnz {P_}")
            k.label(OK)
            st(f"{name}_q")
            return I[nsp:]
        def pwindow(name, so, M, I, extra):
            a = OPT.get(name+'wa', OPT.get('wa', 0))
            G = {}
            for gi, x in extra: G.setdefault(gi, []).append(x)
            R = probe(name, so, I, lambda: stream(M[:a], G))
            n1 = OPT.get('l0', 2)
            for x in R[:n1]: em(x)
            G = {g-a: v for g, v in G.items() if g >= a}
            if a < len(M):
                G2 = {}
                spread(G2, R[n1:], list(range(0, min(len(M)-a, OPT.get('lsp', 4)))))
                for g in G2: G[g] = G2[g] + G.get(g, [])
                stream(M[a:], G)
            else:
                for x in R[n1:]: em(x)
        k(f"buffer_store_dwordx4 {vr(P[0])}, v2, s[4:7], {sOs[0]} offen{sc}", tag="st")
        for e in range(6): em(rd(e))
        norm(1)
        k(f"buffer_store_dwordx4 {vr(P[1])}, v2, s[4:7], {sOs[1]} offen{sc}", tag="st")
        st("m_ost")
        I, labO = actl("o", [3,4,5,6], sOl, None)
        M = [M16("a[168:171]", buf(e), "a[172:175]", 0 if e == 0 else "a[168:171]") for e in range(16)]
        def b0work():
            k("s_barrier")
            for i in range(6): k(f"ds_write_b128 v15, {ar(4*i)} offset:{1024*i}")
            for r in range(8): k(f"v_accvgpr_read_b32 v{H+2*r+1}, a{160+r}")
            for r in range(8): k(f"v_lshlrev_b32 v{H+2*r}, 16, v{H+2*r+1}\nv_and_b32 v{H+2*r+1}, 0xffff0000, v{H+2*r+1}")
        if PRB:
            a = OPT.get('owa', 0)
            G = {e: ([lambda e=e: k.waitlg(f"r{e+2}")] if e % 2 == 1 and e < 15 else []) + refill(e) for e in range(16)}
            def w0():
                for e in range(6, 12): em(rd(e))
                k(f"v_add_u32 v8, {WB:#x}, v3")
                b0work()
                k.waitlg("r1")
                stream(M[:a], G)
            R = probe("o", sOl, I, w0)
            n1 = OPT.get('l0', 2) if a < 16 else 99
            for x in R[:n1]: em(x)
            G = {g-a: v for g, v in G.items() if g >= a}
            G2 = {}
            if a < 16: spread(G2, R[n1:], list(range(0, min(16-a, OPT.get('lsp', 4)))))
            for g in G2: G[g] = G2[g] + G[g]
            stream(M[a:], G)
        else:
            for x in I[:2]: em(x)
            for e in range(6, 12): em(rd(e))
            k(f"v_add_u32 v8, {WB:#x}, v3")
            k.waitlg("r1")
            G = {}
            for e in range(16):
                G[e] = ([lambda e=e: k.waitlg(f"r{e+2}")] if e % 2 == 1 and e < 15 else []) + refill(e) + (I[2+e//2:3+e//2] if e % 2 == 0 else [])
            stream(M, G)
            b0work()
        k("ds_write_b128 v11, a[168:171]")
        GV = [2, 10, 11, 15]
        E = [f"v_lshrrev_b32 v{SV}, 5, v1", f"v_lshlrev_b32 v{SV}, 31, v{SV}", f"v_lshl_add_u32 v{SV}, v12, 4, v{SV}", f"v_lshl_add_u32 v{SV}, v13, 2, v{SV}", f"v_add_u32 v{SV}, {sSV}, v{SV}",
             "v_mov_b32 v14, 0x4000"]
        for gi, sh in enumerate((-1, 1, -2, 2)):
            v = GV[gi]
            E += [f"v_add_u32 v{v}, {sh}, v12", f"v_bfe_i32 v{v}, v{v}, 4, 1", f"v_bfi_b32 v{v}, v{v}, {sDP if sh < 0 else sDN}, v14", f"v_add3_u32 v{v}, v{3+gi}, v{v}, {16*(sh+2)}"]
        E += ["v_add_u32 v14, 2, v12", "v_and_b32 v14, 12, v14", "v_sub_u32 v14, 0, v14", "v_and_b32 v14, 0x80000000, v14", "v_add_u32 v14, v14, v3"]
        mstage("o", labO, 16, H, False, False, [], E)
        packstore(H, sHs)
        st("m_hst")
        pstats(sSh, TMP)
        I, labH = actl("h", [3,4,5,6], sHl, sSh)
        k(f"v_add_u32 v{TMP}, {sSB}, v3\nv_lshlrev_b32 v{TMP+1}, 4, v13\nv_add_u32 v{TMP+1}, {CSL:#x}, v{TMP+1}")
        NG = OPT.get('w2g', 0)
        w2w = [f"ds_write_b128 v{TMP}, {ar(24+4*i)} offset:{1024*i}" for i in range(10)]
        ex = [(OPT.get('b1g', 3), "s_barrier")] + [(min(15, OPT.get('b1g', 3)+1+i), x) for i, x in enumerate(w2w[:10-NG])]
        exg = [(i, x) for i, x in enumerate(w2w[10-NG:])] + [(15, "s_waitcnt lgkmcnt(0)\ns_barrier" if NG else "s_barrier")]
        if PRB: pwindow("h", sHl, cs3(0), I, ex)
        else: window(cs3(0), I, OPT.get('hpre', 0), ex)
        NMU=TMP+2; IRS=TMP+3; GA_=TMP+4; GB_=TMP+5; R1=TMP+6; KK=TMP+7; TT=TMP+8; RR=TMP+9; EP=TMP+10
        late = statlist(STR, NMU, R1, TT) + [f"v_mul_f32 v{TT}, v{R1}, v{R1}", f"v_fma_f32 v{TT}, v{TT}, v{STR+1}, v{EP}", f"v_rsq_f32 v{TT}, v{TT}",
              f"v_mul_f32 v{KK}, v{NMU}, v{R1}", f"v_mul_f32 v{RR}, v{R1}, v{TT}"] + gconsts(RR, IRS, GA_, GB_)
        CS=ACT; G0=ACT+16
        mstage("h", labH, 80, A2, True, True, [f"v_mov_b32 v{EP}, {fhex(EPS)}"], late, [(f"ds_read_b128 {vr(CS+4*nb)}, v{TMP+1} offset:{64*nb}", "cs") for nb in range(4)])
        k.waitlg("cs")
        k(f"s_cmp_lg_u32 {sMB}, 0")
        for p in range(2):
            R = range(8*p, 8*p+8, 2)
            for r in R: k(f"v_pk_fma_f32 {pr(A2+r)}, {pr(CS+r)}, {pr(NMU)}, {pr(A2+r)} op_sel_hi:[1,0,1]")
            for r in R: k(f"v_pk_mul_f32 {pr(G0+r)}, {pr(A2+r)}, {pr(A2+r)}")
            for r in R: k(f"v_pk_fma_f32 {pr(G0+r)}, {pr(G0+r)}, {pr(GA_)}, {pr(GA_)} op_sel:[0,0,1] op_sel_hi:[1,0,1]")
            for r in R: k(f"v_pk_mul_f32 {pr(G0+r)}, {pr(G0+r)}, {pr(A2+r)}")
            for r in range(8*p, 8*p+8): k(f"v_exp_f32 v{G0+r}, v{G0+r}")
            for r in R: k(f"v_pk_fma_f32 {pr(G0+r)}, {pr(G0+r)}, {pr(NMU)}, {pr(NMU)} op_sel:[0,1,1] op_sel_hi:[1,1,1]")
            for r in range(8*p, 8*p+8): k(f"v_rcp_f32 v{G0+r}, v{G0+r}")
            for r in R: k(f"v_pk_mul_f32 {pr(A2+r)}, {pr(A2+r)}, {pr(G0+r)}")
            for r in range(4): k(f"v_cvt_pk_bf16_f32 v{PK+4*p+r}, v{A2+8*p+2*r}, v{A2+8*p+2*r+1}")
            k(f"v_min_u32 v{PK+4*p}, {sM2}, v{PK+4*p}")
            a = k.newlabel("M"); c = k.newlabel("C")
            k(f"s_cbranch_scc1 {a}"); k.label(c)
            tramp.append([f"{a}:", f"buffer_store_dwordx4 {vr(PK+4*p)}, v14, s[4:7], {sMB} offen offset:{1024*p} sc1", f"s_branch {c}"])
            k(f"buffer_store_dwordx4 {vr(PK+4*p)}, v3, s[4:7], {sGs} offen offset:{1024*p}{sc}", tag="st")
        st("m_gst")
        for r in range(0,16,2): k(f"v_pk_fma_f32 {pr(A2+r)}, {pr(H+r)}, {pr(R1)}, {pr(R1)} op_sel:[0,0,1] op_sel_hi:[1,0,1]")
        I, labG = actl("g", GV, sGl, None)
        if PRB:
            k(f"s_sub_u32 {T}, {sHl}, {HO-GO:#x}")
            pwindow("g", T, cs3(1), I, exg)
        else: window(cs3(1), I, OPT.get('gpre', 4), exg)
        E = ["v_lshl_add_u32 v14, v13, 2, v12", "v_and_b32 v14, 15, v14", "v_lshlrev_b32 v14, 4, v14", "v_lshl_add_u32 v14, v13, 8, v14",
             f"s_lshl_b32 {T}, {W}, 12", f"v_add_u32 v14, {T}, v14", f"v_add_u32 v{KA}, {W14}, v8"]
        mstage("g", labG, 144, A2, False, False, [], E)
        packstore(A2, sXs)
        st("m_x1st")
        pstats(sSx, TMP)
        for r in range(0,16,2): k(f"v_pk_add_f32 {pr(H+r)}, {pr(H+r)}, {pr(A2+r)}")
        for nb in range(4): k(f"ds_write_b128 v14, {vr(H+4*nb)} offset:{1024*nb}")
        ST3=136
        I, labX = actl("x", [3,4,5,6], sXl, sSx, ST3)
        if PRB: pwindow("x", sXl, cs3(2), I, [])
        else: window(cs3(2), I, OPT.get('xpre', 0), [])
        AC=[84,96]; C3=108; GT=120; SP=[132,32,36,32]; UP=136; TT=140; RS=141
        M = [M16(vr(AC[0]+4*t), w3reg(t,s), vr(ACT+4*s), 0 if s == 0 else vr(AC[0]+4*t)) for s in range(16) for t in range(3)]
        G = {i: [] for i in range(48)}; used = set()
        for p in range(8):
            for h in range(2): G[6*p+h].append(f"ds_write_b128 v{KA}, {vr(ACT+8*p+4*h)} offset:{2048*p+1024*h}")
            if p < 7:
                regs = [ACT+8*p+8, ACT+8*p+12]
                if p == 3: regs = [ST3+i for i in range(4)] + regs
                G[6*p+3].append(lambda p=p: k.waitvm(f"x{p+1}"))
                L = maxl(regs)
                for j, x in enumerate(L):
                    gi = 6*p+4-(len(L)-1-j); G[gi].append(x)
                G[6*p+5].append(br(labX, ([16] if p == 3 else []) + [2*p+2, 2*p+3]))
        for j, x in enumerate(labX['rest']): G[3*j+2].append(x)
        early = [f"v_accvgpr_read_b32 v{C3+r}, a{160+r}" for r in range(12)]
        early += [f"s_lshl_b32 {T}, {W}, 8", "v_lshlrev_b32 v15, 4, v12", f"v_add_u32 v15, {STL:#x}, v15", f"v_add_u32 v2, {T}, v15",
                  f"v_add_u32 v10, {sHF}, v3", f"s_cmp_eq_u32 {W}, 3\ns_cselect_b32 {T}, {OOB:#x}, 0", f"v_add_u32 v11, {T}, v5",
                  f"s_lshr_b32 {T}, {T}, 21", f"v_subrev_u32 v12, {T}, v5"]
        spread(G, early, list(range(2, 24)))
        late = statlist(ST3, SP[0], RS, TT) + gconsts(RS, SP[0]+1, SP[0]+2, SP[0]+3) + [f"ds_write_b128 v2, {vr(SP[0])}"]
        TB=[None,80,81,82]; SB=[None,83,142,143]
        for q in range(1,4): late += [f"s_lshl_b32 {T}, {sTid[q]}, 14", f"v_add_u32 v{TB[q]}, {T}, v8", f"s_lshl_b32 {T}, {sTid[q]}, 8", f"v_add_u32 v{SB[q]}, {T}, v15"]
        spread(G, late, list(range(24, 48)))
        st("x_w")
        first_check("x", labX)
        st("x_m")
        stream(M, G)
        st("x_e")
        k("s_waitcnt lgkmcnt(0)\ns_barrier")
        st("m_B3")
        def gelu_list(a, sp, q):
            L = []
            for c in range(2):
                R = range(0,8) if c == 0 else range(8,12)
                L += [f"v_fma_f32 v{a+r}, v{sp}, v{C3+r}, v{a+r}" for r in R]
                L += [f"v_mul_f32 v{GT+r}, v{a+r}, v{a+r}" for r in R]
                L += [f"v_fma_f32 v{GT+r}, v{GT+r}, v{sp+2}, v{sp+3}" for r in R]
                L += [f"v_mul_f32 v{GT+r}, v{GT+r}, v{a+r}" for r in R]
                L += [f"v_exp_f32 v{GT+r}, v{GT+r}" for r in R]
                L += [f"v_fma_f32 v{GT+r}, v{GT+r}, v{sp+1}, v{sp+1}" for r in R]
                L += [f"v_rcp_f32 v{GT+r}, v{GT+r}" for r in R]
                L += [f"v_mul_f32 v{a+r}, v{a+r}, v{GT+r}" for r in R]
                L += [f"v_cvt_pk_bf16_f32 v{UP+r//2}, v{a+r}, v{a+r+1}" for r in R if r % 2 == 0]
                if c == 0:
                    L += [f"v_min_u32 v{UP}, {sM2}, v{UP}", f"v_min_u32 v{UP+2}, {sM2}, v{UP+2}",
                          (f"buffer_store_dwordx4 {vr(UP)}, v3, s[4:7], {sUs[q]} offen{sc}", "st")]
                else:
                    L += [f"v_min_u32 v{UP+4}, {sM2}, v{UP+4}", (f"buffer_store_dwordx2 {vr(UP+4,2)}, v10, s[4:7], {sUs[q]} offen{sc}", "st")]
            return L
        cost = lambda x: 8 if isinstance(x, tuple) or x.startswith(TRANS) else 4
        def spreadw(G, items, gaps):
            tot = sum(cost(x) for x in items); acc = 0; g = len(gaps)
            for x in items:
                gi = min(g-1, acc*g//tot); acc += cost(x)
                if isinstance(x, tuple) and gi+1 < g: G.setdefault(('m', gaps[gi+1]), []).append(x)
                else: G.setdefault(gaps[gi], []).append(x)
        def stream2(M, F, G):
            for i, m in enumerate(M):
                k(m)
                for x in F.get(i, []) + G.get(('m', i), []) + G.get(i, []): em(x)
        lateW = [(ldr(w4reg(i//4, i%4), s4[i//16], i%16, "v11" if i >= 40 else None)[0], "w4") for i in range(24, 44)]
        BB=ACT
        def rdB(n):
            q = n//16+1; s = n % 16
            return (f"ds_read_b128 {vr(BB+4*(n%4))}, v{TB[q]} offset:{1024*s}", f"b{n}")
        UB=[40,144,188,40]
        UV=[80,80,80,80]
        def uld(t): return [f"buffer_load_dwordx4 {vr(UB[t]+4*ks)}, v{12 if ks == 10 else 3+ks//4}, s[4:7], {sUl[t]} offen offset:{1024*(ks%4)} sc1" for ks in range(11)]
        labU = [stub(f"u{t}", [(x, [UB[t]+4*ks, UB[t]+4*ks+2]) for ks, x in enumerate(uld(t))]) for t in range(4)]
        def uiss(t): return [iss(labU[t], ks, f"u{t}_{ks//2}") for ks in range(11)]
        for n in range(4): em(rdB(n))
        for q in range(1,4):
            M = []; F = {}; G = {}
            for s in range(16):
                n = 16*(q-1)+s
                for t in range(3): M.append(M16(vr(AC[q%2]+4*t), w3reg(t,s), vr(BB+4*(n%4)), 0 if s == 0 else vr(AC[q%2]+4*t)))
                F[3*s+2] = ([lambda n=n: k.waitlg(f"b{n+1}")] if n < 47 else []) + ([rdB(n+4)] if n+4 < 48 else [])
            F.setdefault(30, []).append((f"ds_read_b128 {vr(SP[q])}, v{SB[q]}", f"sp{q}"))
            mem = lateW if q == 1 else ([] if q == 2 else uiss(0)[:10])
            g0 = 0 if q == 1 else OPT.get('u0at', 6)
            for i, x in enumerate(mem): F.setdefault(3*(g0+i//2), []).append(x)
            gl = gelu_list(AC[(q-1)%2], SP[q-1], q-1)
            if q == 1:
                for x in gl[:OPT.get('lead1', 20)]: em(x)
                gl = gl[OPT.get('lead1', 20):]
                k.waitlg("b0")
                spreadw(G, gl, list(range(0, 48)))
            else: spreadw(G, gl, list(range(2, 48)))
            stream2(M, F, G)
            st(f"u_slot{q}")
        st("m_w3e")
        em(uiss(0)[10])
        A4=[232,16]
        RD=84
        RA=[8,124]
        red_addr = ["v_lshrrev_b32 v7, 2, v1", "v_and_b32 v8, 3, v1", "v_lshl_add_u32 v9, v8, 2, v7", "v_and_b32 v9, 15, v9", "v_lshlrev_b32 v9, 4, v9", "v_lshl_add_u32 v9, v8, 8, v9",
                    "v_lshlrev_b32 v7, 10, v7", "v_lshl_add_u32 v7, v8, 4, v7",
                    f"s_and_b32 {T}, {W}, 1", f"s_lshl_b32 {T}, {T}, 11", f"v_add_u32 v9, {T}, v9",
                    f"s_mov_b32 {T2}, 16384", f"s_cmp_lt_u32 {W}, 2\ns_cselect_b32 {T}, {RING:#x}, {T2}", f"v_add_u32 v{RA[0]}, {T}, v9",
                    f"s_lshr_b32 {T2}, {W}, 1", f"s_lshl_b32 {T}, {T2}, 14", f"s_add_u32 {T}, {T}, 0x8000", f"v_add_u32 v{RA[1]}, {T}, v9",
                    f"s_lshl_b32 {T}, {T2}, 12", f"v_add_u32 v9, {T}, v9"]
        def red_list(u):
            L = []
            for src in range(4):
                for b in range(2): L.append((f"ds_read_b128 {vr(RD+8*src+4*b)}, v{RA[u]} offset:{4096*src+1024*b}", f"rd{src}"))
            for b in range(2): L.append((f"ds_read_b128 {vr(RD+32+4*b)}, v9 offset:{8192*u+1024*b}", "rd4"))
            add = (lambda d, s: [f"v_add_f32 v{d+r}, v{d+r}, v{s+r}" for r in range(8)]) if u == 0 else (lambda d, s: [f"v_pk_add_f32 {pr(d+r)}, {pr(d+r)}, {pr(s+r)}" for r in range(0,8,2)])
            L.append(lambda: k.waitlg("rd1")); L += add(RD, RD+8)
            L.append(lambda: k.waitlg("rd3")); L += add(RD+16, RD+24)
            L.append(lambda: k.waitlg("rd4")); L += add(RD, RD+32) + add(RD, RD+16)
            L += [f"v_cvt_pk_bf16_f32 v{RD+8+r}, v{RD+2*r}, v{RD+2*r+1}" for r in range(4)]
            L.append((f"buffer_store_dwordx4 {vr(RD+8)}, v7, s[12:15], {sOut[u]} offen{' sc1' if OPT.get('outsc') else ''}", "out"))
            return L
        def ureg(t, c): return [UB[t]+4*ks+d for ks in range(2*c, min(2*c+2, 11)) for d in (0, 2)]
        k(f"v_add_u32 v2, {RING:#x}, v14")
        k.waitvm("u0_0")
        for x in maxl(ureg(0, 0)): k(x)
        br(labU[0], [0, 1])()
        k.waitlg("sp3")
        for t in range(4):
            a = A4[t%2]
            M = [M16(vr(a+4*nb), w4reg(ks,nb), vr(UB[t]+4*ks), 0 if ks == 0 else vr(a+4*nb)) for ks in range(11) for nb in range(4)]
            F = {}; G = {}; used = set()
            for c in range(1, 7):
                tt, cc, e = (t, c, 8*c) if c < 6 else (t+1, 0, 44)
                if tt > 3: continue
                L = maxl(ureg(tt, cc))
                F.setdefault(e-1-len(L), []).append(lambda tt=tt, cc=cc: k.waitvm(f"u{tt}_{cc}"))
                for j, x in enumerate(L): G.setdefault(e-1-len(L)+j, []).append(x); used.add(e-1-len(L)+j)
                F.setdefault(e-1, []).append(br(labU[tt], list(range(2*cc, min(2*cc+2, 11)))))
            if t >= 1:
                pa = A4[(t-1)%2]
                for nb in range(4): F.setdefault(8+nb, []).append(f"ds_write_b128 v2, {vr(pa+4*nb)} offset:{1024*nb}" if t == 1 else f"ds_write_b128 v14, {vr(pa+4*nb)} offset:{16384*(t-1)+1024*nb}")
            if t < 3:
                u0 = OPT.get(f'u{t+1}at', 0); us = OPT.get('ustep', 4)
                for i, x in enumerate(uiss(t+1)): F.setdefault(min(43, u0+us*i), []).append(x)
            if t == 0:
                F.setdefault(22, []).insert(0, lambda: k.waitvm("w4"))
                spreadw(G, gelu_list(AC[1], SP[3], 3), list(range(2, OPT.get('g3end', 36))))
            if t == 1: spread(G, red_addr, [i for i in range(14, 44) if i not in used])
            if t == 2:
                F.setdefault(32, []).append("s_waitcnt lgkmcnt(0)"); F.setdefault(32, []).append("s_barrier")
            if t == 3: spread(G, red_list(0), [i for i in range(0, 44) if i not in used])
            stream2(M, F, G)
            st(f"u_t{t}")
        for nb in range(4): k(f"ds_write_b128 v14, {vr(A4[1]+4*nb)} offset:{16384*3+1024*nb}")
        k("s_waitcnt lgkmcnt(0)\ns_barrier")
        st("m_w4e")
        for x in red_list(1): em(x)
        if fast != bool(OPT.get('slowtail')):
            if OPT.get('cnt'): k(f"s_mov_b32 s{k.sb}, {sCNT}")
            stamp_out(k, 1, 16, 18)
        if fast: k.label(done)
        k("s_endpgm")
        for L in tramp + stubs:
            for x in L:
                if x.endswith(":"): k.label(x[:-1])
                else: k(x)
    vq, lq = list(k.vmq), list(k.lgq)
    tail(True)
    hopend(k, 4, "L_code_end")
    k.label("L_code_end")
    k.label("L_tail_sc")
    k.vmq, k.lgq = list(vq), list(lq)
    k("s_nop 7")
    tail(False)
    for L in atr:
        for x in L:
            if x.endswith(":"): k.label(x[:-1])
            else: k(x)
    k.label("L_attn_slow")
    k("s_waitcnt vmcnt(0)")
    M=[C, C+1]; TM=C+2; TX=C+3; AL=C+4
    for X_ in range(2): k(f"v_mov_b32 v{M[X_]}, {fhex(-3.0e38)}")
    for r in range(32): k(f"v_mov_b32 v{O[0]+r}, 0")
    for r in range(8): k(f"v_mov_b32 v{V0+r}, {sONE}")
    k(f"s_lshl_b32 {sKV}, {HD}, 17\ns_add_u32 {sKV}, {sKV}, {KV:#x}\ns_mov_b32 {sRW}, 64\ns_mov_b32 {RET}, 0x0000ffff\ns_mov_b32 s{int(RET[1:])+1}, 0x0000ffff")
    k.label("L_attn_sloop")
    k(f"buffer_load_dwordx4 {vr(KR)}, v3, s[4:7], {sKV} offen")
    k(f"s_mov_b64 exec, {RETP}")
    k(f"buffer_load_dwordx4 {vr(V0)}, v14, s[4:7], {sKV} offen offset:1024")
    k(f"buffer_load_dwordx4 {vr(V1)}, v14, s[4:7], {sKV} offen offset:1536")
    k("s_mov_b64 exec, -1")
    k("s_waitcnt vmcnt(0)")
    for X_ in range(2):
        s = S[X_]; p = P[X_]
        k(M32(vr(s,16), vr(KR), vr([QA,QB][X_]), 0))
        k(f"v_max_f32 v{TM}, v{s}, v{s+1}")
        for r in range(2,16,2): k(f"v_max3_f32 v{TM}, v{TM}, v{s+r}, v{s+r+1}")
        k(f"v_mov_b32 v{TX}, v{TM}\nv_permlane32_swap_b32 v{TM}, v{TX}\nv_max3_f32 v{TM}, v{TM}, v{TX}, v{M[X_]}")
        k(f"v_sub_f32 v{AL}, v{M[X_]}, v{TM}\nv_exp_f32 v{AL}, v{AL}\nv_mov_b32 v{M[X_]}, v{TM}")
        for r in range(16): k(f"v_mul_f32 v{O[X_]+r}, v{O[X_]+r}, v{AL}")
        for r in range(16): k(f"v_sub_f32 v{s+r}, v{s+r}, v{TM}")
        for r in range(16): k(f"v_exp_f32 v{s+r}, v{s+r}")
        for r in range(8): k(f"v_cvt_pk_bf16_f32 v{p+r}, v{s+2*r}, v{s+2*r+1}")
        k(M32(vr(O[X_],16), vr(V0), vr(p), vr(O[X_],16)))
        k(M32(vr(O[X_],16), vr(V1), vr(p+4), vr(O[X_],16)))
    k("s_nop 15")
    k(f"s_add_u32 {sKV}, {sKV}, 2048\ns_sub_u32 {sRW}, {sRW}, 1\ns_cmp_lg_u32 {sRW}, 0\ns_cbranch_scc1 L_attn_sloop")
    k(f"v_rcp_f32 v{T0+4}, v{O[0]+8}\nv_rcp_f32 v{T0+6}, v{O[1]+8}")
    norm(0)
    k("s_nop 3")
    k("s_branch L_attn_fin")
    print("sgprs used up to", S_.n)
    return k

if __name__ == "__main__":
    out = sys.argv[1]
    for a in sys.argv[2:]:
        kk, v = a.split("="); OPT[kk] = int(v) if v.lstrip("-").isdigit() else v
    k2 = gen_k2(); n2 = k2.fix(verbose=bool(OPT.get('v')))
    k1 = gen_k1(); n1 = k1.fix(verbose=bool(OPT.get('v')))
    print("nops inserted", n1, n2, "verify errors", verify(k1), verify(k2))
    emit(out, [("qkv_kernel",256,512,163840),("main_kernel",256,256,163840)], [k1, k2], step=OPT.get('hopstep', 4096))
```

```python
from gen3 import *

WA=0; WB=0x10000; RING=0x20000; RP=2064; NR=13; MISC=0x26900; CSL=MISC; STL=MISC+256
UT=43*1024
BOUND=20000
OOB=0x80000000
def M16(d, a, b, c): return f"v_mfma_f32_16x16x32_bf16 {d}, {a}, {b}, {c}"
def M32(d, a, b, c): return f"v_mfma_f32_32x32x16_bf16 {d}, {a}, {b}, {c}"
def w3reg(t, s):
    n = 16*t+s
    return vr(144+4*n) if n < 28 else ar(176+4*(n-28))
def w4reg(ks, nb):
    b = 64+16*ks if ks < 7 else 16*(ks-7)
    return ar(b+4*nb)
pr = lambda b: vr(b,2)

class SA:
    def __init__(s, lo, hi): s.n = lo; s.hi = hi; s.m = {}
    def __call__(s, name, align=1, cnt=1):
        if name in s.m: return s.m[name]
        while s.n % align: s.n += 1
        r = s.n; s.n += cnt
        assert s.n <= s.hi, "out of sgprs"
        s.m[name] = f"s{r}"; return s.m[name]

def gen_k2():
    k = Kern("main_kernel", vgpr=512, sgpr=102, accum=256); k.sb = 78; k.stn = []; k.smax = 11
    k.label("L_code_begin")
    done = "L_k2_done"
    S_ = SA(19, 78)
    X, HD, W, T = "s16", "s17", "s18", S_("T")
    S_("RET", 2, 2); T2 = S_("T2")
    def em(x):
        if callable(x): x()
        elif isinstance(x, tuple): k(x[0], tag=x[1])
        else: k(x)
    k(f"s_cmp_ge_u32 s2, 256\ns_cbranch_scc1 {done}")
    stamp(k,"m_start")
    k("s_load_dwordx2 s[4:5], s[0:1], 80\ns_load_dwordx2 s[8:9], s[0:1], 0\ns_load_dwordx2 s[12:13], s[0:1], 64")
    k(f"s_mov_b32 s6, {WS_SZ:#x}\ns_mov_b32 s7, 0x00020000\ns_mov_b32 s10, 0x200000\ns_mov_b32 s11, 0x00020000\ns_mov_b32 s14, 0x200000\ns_mov_b32 s15, 0x00020000")
    k("v_lshrrev_b32 v2, 6, v0\nv_and_b32 v1, 63, v0")
    k("s_and_b32 s16, s2, 7\ns_lshr_b32 s17, s2, 3")
    k("v_readfirstlane_b32 s18, v2")
    k("v_lshlrev_b32 v3, 4, v1")
    for q in range(1,4): k(f"v_add_u32 v{3+q}, {4096*q:#x}, v3")
    sKV, sRW = S_("KV"), S_("RW")
    k(f"s_lshl_b32 {T2}, {HD}, 16\ns_lshl_b32 {T}, {X}, 13\ns_add_u32 {T2}, {T2}, {T}\ns_lshl_b32 {T}, {W}, 11\ns_add_u32 {T2}, {T2}, {T}")
    k(f"s_lshl_b32 {sKV}, {HD}, 17\ns_add_u32 {sKV}, {sKV}, {T}\ns_add_u32 {sKV}, {sKV}, {KV:#x}")
    k(f"s_mul_i32 {sRW}, {W}, {RP}\ns_add_u32 {sRW}, {sRW}, {RING:#x}")
    QA=16; QB=20; C=24; S=[40,56]; P=[72,80]; O=[88,104]; KR=120; V0=124; V1=128
    KA=7; VA0=8; VA1=9; XV=132; XTV=133
    k(f"s_mov_b32 m0, {sRW}")
    k("s_waitcnt lgkmcnt(0)")
    stamp(k,"k_karg")
    k(f"buffer_load_dwordx4 v3, s[4:7], {sKV} offen lds", tag="g0")
    k(f"buffer_load_dwordx4 {vr(QA)}, v3, s[4:7], {T2} offen", tag="g0")
    k(f"buffer_load_dwordx4 {vr(QB)}, v3, s[4:7], {T2} offen offset:1024", tag="g0")
    k(f"buffer_load_dwordx4 v3, s[4:7], {sKV} offen offset:1024 lds", tag="g0")
    def kvm0(n):
        a = 4*n % NR
        return f"s_add_u32 m0, {sRW}, {a*RP}" if a+3 < NR else f"s_mov_b32 m0, {S_('WR%d'%a)}"
    kvso = f"s_add_u32 {sKV}, {sKV}, 16384"
    def kvld(n): return [(f"buffer_load_dwordx4 v{5 if n & 1 else 3}, s[4:7], {sKV} offen offset:{o} lds", f"g{n}") for o in (0, 1024)]
    for x in [kvm0(1)] + kvld(1) + [kvm0(2), kvso] + kvld(2): em(x)
    MG = "s3"; J, MTB, MT, JW, W14, T14 = [S_(n) for n in "J MTB MT JW W14 T14".split()]
    k(f"s_lshr_b32 {MG}, {HD}, 3\ns_and_b32 {J}, {HD}, 7")
    k(f"s_lshl_b32 {MTB}, {X}, 4\ns_lshl_b32 {T}, {MG}, 2\ns_add_u32 {MTB}, {MTB}, {T}\ns_add_u32 {MT}, {MTB}, {W}")
    k(f"s_lshl_b32 {JW}, {J}, 2\ns_add_u32 {JW}, {JW}, {W}\ns_lshl_b32 {W14}, {W}, 14\ns_lshl_b32 {T14}, {MT}, 14")
    sONE, sM2, sCNT, sXC = S_("ONE"), S_("M2"), S_("CNT"), S_("XC")
    RET = S_("RET", 2, 2); RETP = f"s[{RET[1:]}:{int(RET[1:])+1}]"
    k(f"s_mov_b32 {sONE}, {ONES:#x}\ns_mov_b32 {sM2}, -2\ns_mov_b32 {sCNT}, 0")
    k(f"s_getreg_b32 {sXC}, hwreg(HW_REG_XCC_ID, 0, 4)")
    for r in range(4): k(f"v_accvgpr_write_b32 a{168+r}, -1")
    k("v_and_b32 v10, 31, v1\nv_lshrrev_b32 v11, 5, v1\nv_and_b32 v12, 15, v1\nv_lshrrev_b32 v13, 4, v1")
    sXT = S_("XT")
    k(f"s_lshl_b32 {sXT}, {X}, 12\ns_add_u32 {sXT}, {sXT}, {XT:#x}\ns_lshl_b32 {T}, {HD}, 7\ns_add_u32 {T}, {T}, {sXT}")
    k(f"v_sub_u32 v14, 0, v0\nv_and_b32 v14, {OOB:#x}, v14\nv_mov_b32 v15, {sXC}")
    k(f"buffer_store_dword v15, v14, s[4:7], {T} offen sc1", tag="clr")
    sCL, sSet, sXT_, sW2a, sW2b = S_("CL"), S_("Set"), S_("XTl"), S_("W2a"), S_("W2b")
    k(f"s_mul_i32 {sSet}, {X}, {SETS:#x}\ns_add_u32 {sSet}, {sSet}, {SETB:#x}")
    k(f"s_lshl_b32 {T}, {HD}, 2\ns_add_u32 {T}, {T}, {W}\ns_mul_i32 {T}, {T}, 12288\ns_add_u32 {sCL}, {sSet}, {T}")
    CL = [f"buffer_store_dwordx4 a[168:171], v{3+i//4}, s[4:7], {sCL} offen offset:{1024*(i%4)}" for i in range(12)]
    atr = []
    def clpair(i):
        def f():
            a = k.newlabel("Z"); c = k.newlabel("C")
            k(f"s_cbranch_scc1 {a}")
            for x in CL[i:i+2]: k(x, tag="clr")
            k.label(c)
            atr.append([f"{a}:"] + [x + " sc1" for x in CL[i:i+2]] + [f"s_branch {c}"])
        return f
    k(f"v_lshlrev_b32 v{XV}, 10, v12\nv_lshl_add_u32 v{XV}, v13, 4, v{XV}")
    k(f"s_lshl_b32 {sXT_}, {J}, 7\ns_add_u32 {sXT_}, {sXT_}, {T14}")
    EL = [(f"buffer_load_dwordx4 a[160:163], v{XV}, s[8:11], {sXT_} offen", "w"), (f"buffer_load_dwordx4 a[164:167], v{XV}, s[8:11], {sXT_} offen offset:64", "w")]
    sSh, sSx = S_("Sh"), S_("Sx")
    k(f"s_and_b32 {T}, {MT}, 15\ns_lshl_b32 {T}, {T}, 10\ns_add_u32 {sSh}, {sSet}, {T}\ns_add_u32 {sSh}, {sSh}, {SO:#x}\ns_add_u32 {sSx}, {sSh}, 0x4000")
    sWO, sW1, sSA, sSB = S_("WO"), S_("W1"), RET, S_("SB")
    k(f"s_lshl_b32 {T2}, {J}, 16\ns_add_u32 {sWO}, {T2}, {W14}\ns_add_u32 {sW1}, {sWO}, {W1F:#x}\ns_add_u32 {sWO}, {sWO}, {WOF:#x}")
    k(f"s_mul_i32 {sSA}, {W}, 6144\ns_mul_i32 {sSB}, {W}, 10240\ns_add_u32 {sSB}, {sSB}, 24576\ns_add_u32 {T2}, {T2}, {W2F:#x}")
    def ldr(dst, so, i, vo=None): return (f"buffer_load_dwordx4 {dst}, {vo or 'v%d' % (3+i//4)}, s[4:7], {so} offen offset:{1024*(i%4)}", "w")
    k(f"s_add_u32 {sW2a}, {T2}, {sSA}\ns_add_u32 {sW2b}, {T2}, {sSB}")
    EL += [ldr(ar(4*i), sW2a, i) for i in range(6)] + [ldr(ar(24+4*i), sW2b, i) for i in range(10)]
    if OPT.get('xlate'): EL = EL[2:] + EL[:2]
    ne = OPT.get('early', 6)
    for x in EL[:ne]: em(x)
    EL = EL[ne:]
    for a in (10, 11, 12):
        r = S_(f"WR{a}")
        k(f"s_cmp_ge_u32 {W}, {NR-a}\ns_cselect_b32 {T}, {NR*RP}, 0\ns_sub_u32 {r}, {sRW}, {T}\ns_add_u32 {r}, {r}, {a*RP}")
    s3 = [S_("3a"), S_("3b"), S_("3c")]; s4 = [S_("4a"), S_("4b"), S_("4c")]
    k(f"s_lshl_b32 {s3[0]}, {JW}, 15\ns_add_u32 {s3[0]}, {s3[0]}, {W3F:#x}\ns_add_u32 {s3[1]}, {s3[0]}, 16384")
    k(f"s_add_u32 {s3[2]}, {JW}, 64\ns_min_u32 {s3[2]}, {s3[2]}, 85\ns_lshl_b32 {s3[2]}, {s3[2]}, 14\ns_add_u32 {s3[2]}, {s3[2]}, {W3F:#x}")
    k(f"s_mul_i32 {s4[0]}, {J}, 43\ns_mul_i32 {T}, {W}, 11\ns_add_u32 {s4[0]}, {s4[0]}, {T}\ns_lshl_b32 {s4[0]}, {s4[0]}, 12\ns_add_u32 {s4[0]}, {s4[0]}, {W4F:#x}")
    k(f"s_add_u32 {s4[1]}, {s4[0]}, 16384\ns_add_u32 {s4[2]}, {s4[0]}, 32768")
    sOs = [S_("Os0"), S_("Os1")]
    k(f"s_lshl_b32 {sOs[0]}, {X}, 18\ns_lshl_b32 {T}, {W}, 16\ns_add_u32 {sOs[0]}, {sOs[0]}, {T}\ns_lshl_b32 {T}, {HD}, 9\ns_add_u32 {sOs[0]}, {sOs[0]}, {T}\ns_add_u32 {sOs[0]}, {sOs[0]}, {OF:#x}\ns_add_u32 {sOs[1]}, {sOs[0]}, 0x8000")
    sOl, sHl, sHs, sGl, sGs, sXl, sXs, sDP, sDN, sMB, sSV = [S_(n) for n in "Ol Hl Hs Gl Gs Xl Xs DP DN MB SV".split()]
    k(f"s_add_u32 {sOl}, {T14}, {OF:#x}\ns_and_b32 {T14}, {T14}, 0x3ffff\ns_add_u32 {T14}, {T14}, {sSet}")
    k(f"s_add_u32 {sHl}, {T14}, {HO:#x}\ns_add_u32 {sXl}, {T14}, {XO:#x}\ns_sub_u32 {sGl}, {T14}, {32+16384-GO:#x}")
    k(f"s_lshl_b32 {T}, {J}, 11\ns_add_u32 {sHs}, {sHl}, {T}\ns_add_u32 {sXs}, {sXl}, {T}\ns_sub_u32 {sGs}, {sHs}, {HO-GO:#x}")
    sOt = MTB2 = S_("Ot")
    k(f"s_add_u32 {sOt}, {sOl}, {T}\nv_lshlrev_b32 v{XV+2}, 5, v1")
    k(f"s_lshl_b32 {T2}, {X}, 15\ns_add_u32 {sMB}, {T2}, {T}\ns_add_u32 {sMB}, {sMB}, {GM:#x}")
    k(f"s_sub_u32 {T2}, {T2}, {T14}\ns_add_u32 {T2}, {T2}, {GM-GO+16384:#x}")
    k(f"s_add_u32 {sDP}, {T2}, {(256-16384) & 0xffffffff:#x}\ns_add_u32 {sDN}, {T2}, {32768-256}")
    k(f"s_cmp_eq_u32 {X}, 0\ns_cselect_b32 {sDP}, {OOB:#x}, {sDP}\ns_cmp_eq_u32 {X}, 7\ns_cselect_b32 {sDN}, {OOB:#x}, {sDN}")
    k(f"s_and_b32 {T}, {MT}, 15\ns_cmp_eq_u32 {T}, 0\ns_cselect_b32 {sDP}, {sDP}, 256\ns_cmp_eq_u32 {T}, 15\ns_cselect_b32 {sDN}, {sDN}, {32768-256}")
    k(f"s_cselect_b32 {T2}, 16384, 0\ns_add_u32 {sMB}, {sMB}, {T2}")
    k(f"s_bitcmp1_b32 {J}, 1\ns_cselect_b32 {T2}, 0, 15\ns_cmp_eq_u32 {T}, {T2}\ns_cselect_b32 {sMB}, {sMB}, 0")
    k(f"s_lshr_b32 {sSV}, {J}, 1\ns_lshl_b32 {sSV}, {sSV}, 8\ns_and_b32 {T}, {J}, 1\ns_lshl_b32 {T}, {T}, 3\ns_add_u32 {sSV}, {sSV}, {T}")
    sTid = [W] + [S_(f"Tid{q}") for q in range(1,4)]
    sUs = [S_(f"Us{q}") for q in range(4)]; sUl = [sSet, T14] + [S_(f"Ul{q}") for q in range(2,4)]; sHF, sOut = MG, [JW, MT]
    for q in range(1,4): k(f"s_cmp_le_u32 {W}, {q-1}\ns_cselect_b32 {sTid[q]}, {q}, {q-1}")
    k(f"s_mul_i32 {T2}, {MG}, {4*UT}\ns_add_u32 {sSet}, {sSet}, {T2}\ns_add_u32 {sSet}, {sSet}, {UO:#x}")
    k(f"s_lshl_b32 {T}, {JW}, 10\ns_add_u32 {T}, {T}, {sSet}")
    for q in range(4): k(f"s_mul_i32 {sUs[q]}, {sTid[q]}, {UT}\ns_add_u32 {sUs[q]}, {sUs[q]}, {T}")
    k(f"s_lshr_b32 {T}, {JW}, 1\ns_add_u32 {T}, {T}, 32\ns_sub_u32 {T}, {T}, {JW}\ns_lshl_b32 {T}, {T}, 10\ns_and_b32 {T2}, {JW}, 1\ns_lshl_b32 {T2}, {T2}, 3\ns_add_u32 {T}, {T}, {T2}")
    k(f"s_cmp_lt_u32 {JW}, 22\ns_cselect_b32 {sHF}, {T}, {OOB:#x}")
    k(f"s_mul_i32 {T}, {W}, {11*1024}\ns_add_u32 {sUl[0]}, {sSet}, {T}")
    for t in range(1,4): k(f"s_add_u32 {sUl[t]}, {sUl[0]}, {t*UT}")
    k(f"s_lshr_b32 {T}, {W}, 1\ns_add_u32 {T}, {T}, {MTB}\ns_lshl_b32 {sOut[0]}, {T}, 14\ns_lshl_b32 {T}, {J}, 7\ns_add_u32 {sOut[0]}, {sOut[0]}, {T}")
    k(f"s_and_b32 {T}, {W}, 1\ns_lshl_b32 {T}, {T}, 6\ns_add_u32 {sOut[0]}, {sOut[0]}, {T}\ns_add_u32 {sOut[1]}, {sOut[0]}, 0x8000")
    k(f"v_add_u32 v{KA}, {RING:#x}, v3")
    k(f"v_lshlrev_b32 v14, 4, v12\nv_lshl_add_u32 v14, v11, 8, v14")
    k(f"v_add_u32 v{VA0}, {RING+1024:#x}, v14\nv_add_u32 v{VA1}, {RING+1536:#x}, v14\nv_mov_b32 v15, {RING+2048:#x}")
    k(f"v_cmp_gt_u32 vcc, 16, v10\nv_cndmask_b32 v{VA0}, v15, v{VA0}, vcc\nv_cndmask_b32 v{VA1}, v15, v{VA1}, vcc")
    k("v_lshrrev_b32 v2, 4, v10\nv_lshl_add_u32 v2, v2, 14, v14")
    k(f"v_lshlrev_b32 v{XTV}, 7, v10")
    k(f"v_min_u32 v15, {NR-1}, v1\nv_mul_u32_u24 v15, {RP}, v15\nv_add_u32 v15, {RING+2048:#x}, v15")
    for r in range(4): k(f"v_mov_b32 v{V0+r}, {sONE}")
    k(f"ds_write_b128 v15, {vr(V0)}")
    for r in range(4): k(f"v_accvgpr_write_b32 a{172+r}, v{V0}")
    for r in range(32): k(f"v_mov_b32 v{O[0]+r}, 0")
    for r in range(4,8): k(f"v_mov_b32 v{P[1]+r}, 0")
    for r in range(4): k(f"v_mov_b32 v{V1+r}, 0")
    k(f"s_lshl_b32 {T}, {W}, 10\ns_add_u32 {T}, {T}, {WB:#x}\nv_add_u32 v10, {T}, v3")
    k(f"s_lshl_b32 {T}, {W}, 6\ns_add_u32 {T}, {T}, {CSL:#x}\nv_lshlrev_b32 v11, 4, v13\nv_add_u32 v11, {T}, v11")
    k(f"v_add_u32 v15, {sSA}, v{KA}")
    if OPT.get('cpf'):
        pc = k.newlabel()
        k(f"s_getpc_b64 {RETP}"); k.label(pc)
        k(f"s_add_u32 {RET}, {RET}, L_attn_fin-{pc}\ns_addc_u32 s{int(RET[1:])+1}, s{int(RET[1:])+1}, 0\ns_lshl_b32 {T}, {W}, 13")
        k(f"v_lshlrev_b32 v136, 7, v1\nv_add_u32 v136, {T}, v136\nv_min_u32 v136, L_code_end-L_attn_fin-4, v136\nv_mov_b32 v137, s{int(RET[1:])+1}")
        k(f"v_add_co_u32 v136, vcc, {RET}, v136\nv_addc_co_u32 v137, vcc, 0, v137, vcc")
    DM = []
    for so, lb in ((sWO, WA), (sW1, WB)):
        for q in range(4): DM.append((f"s_add_u32 m0, {W14}, {lb+4096*q:#x}", [(f"buffer_load_dwordx4 v{3+q}, s[4:7], {so} offen offset:{1024*i} lds", "w") for i in range(4)]))
    RL = [ldr(w3reg(t, s), s3[t], s) for t in range(3) for s in range(16)] + [ldr(w4reg(i//4, i%4), s4[i//16], i%16) for i in range(24)]
    if OPT.get('nofill'): DM = []
    if OPT.get('fakeld'):
        import re as _re
        fk = lambda x: (_re.sub(r"s\[4:7\], s\d+ ", "s[4:7], 0 ", x[0]), x[1])
        DM = [(m, [fk(x) for x in L]) for m, L in DM]; RL = [fk(x) for x in RL]; EL = [fk(x) for x in EL]
    spot = {}
    def put(t, sp, x): spot.setdefault((t, sp), []).append(x)
    for n in range(1, 14):
        put(4*n-2, 'Bpv_s', kvm0(n+2))
        if not (n+2) & 1: put(4*n-2, 'Bmid_s', kvso)
        for x in kvld(n+2): put(4*n-1, 'Apv', x)
    free = []
    F0 = OPT.get('fill0', 0)
    for t in range(F0, 64):
        g = (t+1-F0)//4
        if t % 4 in (0, 1) and g < len(DM):
            for x in DM[g][1][2*(t%4):2*(t%4)+2]: put(t, 'Apv', x)
            if t % 4 == 0:
                if t: put(t-1, 'Bmid_s', DM[g][0])
                else: k(DM[g][0])
        elif t % 4 == 3 and t < 55: free.append((t, 'Bpre'))
        else: free.append((t, 'Apv'))
    LT = OPT.get('lastfill', 56)
    free = [f for f in free if f[0] < LT]
    RL = EL + RL
    if OPT.get('nofill'): RL = []; CL = []
    FL = [RL[i:i+2] for i in range(0, len(RL), 2)]
    C0 = OPT.get('clr0', 36); ctl = [t for t in range(C0, 64) if t % 4 in (0, 1)][:len(CL)//2]
    assert not ctl or ctl[-1] < 51
    for i, t in enumerate(ctl):
        put(t-1, 'Bpv_s', "s_cmp_lg_u64 s[0:1], 0"); put(t, 'Bmid', clpair(2*i))
    put(C0-13, 'Bmid', (f"buffer_load_dword v{XTV}, v{XTV}, s[4:7], {sXT} offen sc1", "xt"))
    put(C0-2, 'Bpre', lambda: (k.waitvm("xt"), k(f"v_cmp_ne_u32 s[0:1], {sXC}, v{XTV}" if not OPT.get('slowtail') else "s_mov_b64 s[0:1], -1")))
    if OPT.get('cpf'): put(OPT['cpf'], 'Bmid', ("global_load_dword v0, v[136:137], off", "cpf"))
    if OPT.get('spf', 8):
        n = OPT.get('spf', 8); L = -(-50//n); h = n//2
        k(f"s_mul_i32 {T}, {X}, {SETS:#x}\ns_lshl_b32 {T2}, {HD}, 2\ns_add_u32 {T2}, {T2}, {W}\ns_mul_i32 {T2}, {T2}, 6400\ns_add_u32 {T}, {T}, {T2}\ns_add_u32 {T}, {T}, {SETB:#x}")
        k(f"v_sub_u32 v139, {L-1}, v1\nv_and_b32 v139, {OOB:#x}, v139\nv_lshl_add_u32 v138, v1, 7, v139\nv_add_u32 v138, {T}, v138\nv_add_u32 v139, {128*L*h}, v138")
        t0 = OPT.get('spft', 30); ts = OPT.get('spfs', 4)
        for i in range(n): put(t0+ts*i, 'Bmid', (f"buffer_load_dword v0, v{138+i//h}, s[4:7], 0 offen offset:{128*L*(i%h)} sc1", "spf"))
        if OPT.get('spu'):
            k(f"s_mul_i32 {T2}, {T2}, 43\ns_mul_i32 {T}, {X}, {SETS:#x}\ns_add_u32 {T}, {T}, {SETB+UO:#x}")
            k(f"s_lshl_b32 {T2}, {HD}, 2\ns_add_u32 {T2}, {T2}, {W}\ns_mul_i32 {T2}, {T2}, {43*128}\ns_add_u32 {T}, {T}, {T2}")
            k(f"v_sub_u32 v140, 42, v1\nv_and_b32 v140, {OOB:#x}, v140\nv_lshl_add_u32 v140, v1, 7, v140\nv_add_u32 v140, {T}, v140")
            put(OPT['spu'], 'Bmid', (f"buffer_load_dword v0, v140, s[4:7], 0 offen sc1", "spf"))
    put(51, 'Bmid', (f"buffer_load_dword v0, v{XV+2}, s[4:7], {sOt} offen sc1", "ot"))
    need = len(FL) - len(free)
    cand = [t for t in range(F0, LT) if t % 4 != 3 and t not in ctl]
    for i in range(max(0, need)): free.append((cand[i*len(cand)//need], 'Bmid'))
    free.sort()
    for f, xs in zip(free, FL):
        for x in xs: put(*f, x)
    assert RET == "s20"
    if OPT.get('hop', 1) & 1: hopentry(k, W, k.name, 4, 1)
    k.waitvm("g0", "lgkmcnt(0)")
    k("s_barrier")
    stamp(k,"m_g0")
    k(f"ds_read_b128 {vr(KR)}, v{KA}\nds_read_b128 {vr(V0)}, v{VA0}")
    k("s_waitcnt lgkmcnt(1)")
    k(M32(vr(S[0],16), vr(KR), vr(QA), 0)); k(M32(vr(S[1],16), vr(KR), vr(QB), 0))
    k(f"v_max_f32 v{C}, v{S[0]}, v{S[0]+1}")
    for r in range(2,32,2): k(f"v_max3_f32 v{C}, v{C}, v{S[0]+r}, v{S[0]+r+1}")
    k(f"v_mov_b32 v{C+1}, v{C}\nv_permlane32_swap_b32 v{C}, v{C+1}\nv_max_f32 v{C}, v{C}, v{C+1}")
    k(f"v_sub_f32 v{C}, 0, v{C}")
    for r in range(1,16): k(f"v_mov_b32 v{C+r}, v{C}")
    for r in range(0,16,2): k(f"v_pk_add_f32 {pr(S[0]+r)}, {pr(S[0]+r)}, {pr(C)}")
    k(f"v_mov_b32 v{S[1]+14}, 0\nv_mov_b32 v{S[1]+15}, 0")
    stamp(k,"k_att0")
    MIDJ = OPT.get('midj', 1); PVJ = OPT.get('pvj', 5)
    def half(X_, t):
        s = S[X_]; p = P[X_]; Y = 1-X_; last = t == 63
        pos = lambda tt: (tt % NR)*RP
        g = lambda sp: spot.get((t, sp), [])
        if X_ == 0:
            a = []
            if (t+1) % 4 == 0 and not last: a = [lambda: k.waitvm(f"g{(t+1)//4}"), "s_barrier"]
            if not last: a.append(f"ds_read_b128 {vr(KR)}, v{KA} offset:{pos(t+1)}")
            pre = [M32(vr(S[1],16), vr(KR), vr(QB), vr(C,16))] + a
            mid = [f"s_waitcnt lgkmcnt({0 if last else 1})", f"ds_read_b128 {vr(V1)}, v{VA1} offset:{pos(t)}"]
            pv = ([] if last else ["s_waitcnt lgkmcnt(1)"]) + g('Apv')
        else:
            pre = ([] if last else [M32(vr(S[0],16), vr(KR), vr(QA), vr(C,16))]) + ["s_waitcnt lgkmcnt(0)"] + g('Bpre')
            mid = g('Bmid_s') + g('Bmid')
            pv = g('Bpv_s') + ([] if last else [f"ds_read_b128 {vr(V0)}, v{VA0} offset:{pos(t+1)}"])
        for j in range(8):
            k(f"v_exp_f32 v{s+2*j}, v{s+2*j}")
            if j == 0:
                k(f"v_cvt_pk_bf16_f32 v{P[Y]+7}, v{S[Y]+14}, v{S[Y]+15}")
                for x in pre: em(x)
            k(f"v_exp_f32 v{s+2*j+1}, v{s+2*j+1}")
            if j >= 1: k(f"v_cvt_pk_bf16_f32 v{p+j-1}, v{s+2*j-2}, v{s+2*j-1}")
            if j == MIDJ:
                k(M32(vr(O[Y],16), vr(V1), vr(P[Y]+4), vr(O[Y],16)))
                for x in mid: em(x)
            if j == PVJ:
                k(M32(vr(O[X_],16), vr(V0), vr(p), vr(O[X_],16)))
                for x in pv: em(x)
    for t in range(64):
        half(0, t); half(1, t)
        if t == 31: stamp(k,"m_att32")
        stamp(k, f"t{t%4}_{t:02d}")
    k(f"v_cvt_pk_bf16_f32 v{P[1]+7}, v{S[1]+14}, v{S[1]+15}")
    T0 = S[0]
    k(f"v_rcp_f32 v{T0+4}, v{O[0]+8}")
    k(M32(vr(O[1],16), vr(V1), vr(P[1]+4), vr(O[1],16)))
    stamp(k,"m_att64")
    def norm(X_):
        for r in range(0,8,2): k(f"v_pk_mul_f32 {pr(O[X_]+r)}, {pr(O[X_]+r)}, {pr(T0+4+2*X_)} op_sel_hi:[1,0]")
        for r in range(4): k(f"v_cvt_pk_bf16_f32 v{P[X_]+r}, v{O[X_]+2*r}, v{O[X_]+2*r+1}")
        k(f"v_min_u32 v{P[X_]}, {sM2}, v{P[X_]}")
    k(f"v_pk_mul_f32 {pr(T0)}, {pr(O[0]+8)}, 0 op_sel_hi:[1,0]")
    for r in range(0,8,2): k(f"v_pk_fma_f32 {pr(T0)}, {pr(O[0]+r)}, 0, {pr(T0)} op_sel_hi:[1,0,1]")
    norm(0)
    k(f"s_mov_b32 {T}, {fhex(2.0**-30)}\ns_mov_b32 {T2}, {fhex(2.0**30)}")
    k(f"v_rcp_f32 v{T0+6}, v{O[1]+8}")
    for r in range(0,10,2): k(f"v_pk_fma_f32 {pr(T0)}, {pr(O[1]+r)}, 0, {pr(T0)} op_sel_hi:[1,0,1]")
    k(f"v_min_f32 v{T0+2}, v{O[0]+8}, v{O[1]+8}\nv_max_f32 v{T0+3}, v{O[0]+8}, v{O[1]+8}")
    k(f"v_cmp_u_f32 vcc, v{T0}, v{T0+1}")
    k(f"v_cmp_gt_f32 {RETP}, {T}, v{T0+2}")
    k(f"s_or_b64 vcc, vcc, {RETP}")
    k(f"v_cmp_lt_f32 {RETP}, {T2}, v{T0+3}")
    k(f"s_or_b64 vcc, vcc, {RETP}")
    if OPT['slow']: k("s_branch L_attn_slow")
    if not OPT.get('noslow'): k("s_cbranch_vccnz L_attn_slow")
    k.label("L_attn_fin")
    k("s_cmp_lg_u64 s[0:1], 0")
    k("s_cbranch_scc1 L_tail_sc")

    def tail(fast):
        sc = "" if fast else " sc1"
        stubs = []; tramp = []
        st = (lambda n: stamp(k, n)) if fast != bool(OPT.get('slowtail')) else (lambda n: None)
        ACT=16; H=80; STR=96; A2=100; TMP=132; PK=ACT+32
        WV = [120,124,128,132,136,140,96,100,116,104,108,112]
        R10 = [ar(4*i) for i in range(6)] + [vr(116+4*i) for i in range(4)]
        def buf(e): return vr(WV[e % 12]) if e < 80 else R10[(e-80) % 10]
        def rd(e):
            if e < 16: a = f"v10 offset:{4096*e}"
            elif e < 80: a = f"v3 offset:{1024*(e-16)}"
            elif e < 144: a = f"v8 offset:{1024*(e-80)}"
            elif e < 168: a = f"v{KA} offset:{1024*(e-144)}"
            else: a = f"v3 offset:{1024*(e-144)}"
            return (f"ds_read_b128 {buf(e)}, {a}", f"r{e}")
        def refill(e):
            n = e+12 if e < 78 else (e+10 if e >= 80 else None)
            return [rd(n)] if n is not None and n < 208 else []
        def stub(name, L):
            lab = k.newlabel("S"+name)
            o = [f"{lab}:"]
            for x, regs in L:
                sk = k.newlabel("K")
                o += maxl(regs) + [f"s_cbranch_vccz {sk}", x, f"{sk}:"]
            o += ["s_waitcnt vmcnt(0)", f"s_setpc_b64 {RETP}"]
            stubs.append(o); return dict(lab=lab, L=L, iss=set())
        def maxl(regs):
            r = list(regs); o = []
            if len(r) == 1: return [f"v_cmp_eq_u32 vcc, -1, v{r[0]}"]
            if len(r) % 2 == 0: o.append(f"v_max_u32 v0, v{r[0]}, v{r[1]}"); r = r[2:]
            else: o.append(f"v_max3_u32 v0, v{r[0]}, v{r[1]}, v{r[2]}"); r = r[3:]
            while r: o.append(f"v_max3_u32 v0, v0, v{r[0]}, v{r[1]}"); r = r[2:]
            return o + ["v_cmp_eq_u32 vcc, -1, v0"]
        def br(D, own):
            def f():
                a = k.newlabel("R"); c = k.newlabel("C")
                if D.get('inl'):
                    assert all(i in D['iss'] for i in own), (own, D['iss'])
                    D['iss'] -= set(own)
                    od = D['ord']; p0 = min(j for j, (i, q) in enumerate(od) if i in own and (i < 16 or D.get('nst')))
                    p1 = max(j for j, (i, q) in enumerate(od) if i in own)
                    for j in range(p1+1, len(od)):
                        if len(k.vmq) - od[j][1] != len(od) - j: p1 = j
                    re_ = [i for j, (i, q) in enumerate(od) if j >= p0 or i in own]
                    o = [D['L'][i][0] for i in re_] + [f"s_add_u32 {sCNT}, {sCNT}, 1", f"s_cmp_gt_u32 {sCNT}, {BOUND}", f"s_waitcnt vmcnt({len(od)-1-p1})"]
                    o += maxl([r for i in own for r in D['L'][i][1]]) + [f"s_cbranch_scc1 {c}", f"s_cbranch_vccnz {a}"]
                    if D['inl'] == 1 or (D['inl'] == 3 and 0 in own):
                        k(f"s_cbranch_vccz {c}"); k.label(a)
                        n0 = len(k.vmq)
                        for x in o: k(x)
                        del k.vmq[n0:]
                        k.label(c)
                    else:
                        k(f"s_cbranch_vccnz {a}"); k.label(c)
                        tramp.append([f"{a}:"] + o + [f"s_branch {c}"])
                    return
                k(f"s_cbranch_vccnz {a}"); k.label(c)
                assert all(i in D['iss'] for i in own), (own, D['iss'])
                D['iss'] -= set(own)
                o = [f"{a}:"] + [D['L'][i][0] for i in own]
                o += [f"s_add_u32 {sCNT}, {sCNT}, 1", f"s_cmp_gt_u32 {sCNT}, {BOUND}", "s_waitcnt vmcnt(0)", f"s_cbranch_scc1 {c}"]
                o += maxl([r for i in own for r in D['L'][i][1]]) + [f"s_cbranch_vccnz {a}"]
                if D['iss']:
                    o += maxl([r for i in sorted(D['iss']) for r in D['L'][i][1]]) + [f"s_cbranch_vccz {c}", f"s_call_b64 {RETP}, {D['lab']}"]
                tramp.append(o + [f"s_branch {c}"])
            return f
        def iss(D, i, tag):
            def f():
                D.setdefault('ord', []).append((i, len(k.vmq)))
                k(D['L'][i][0], tag=tag); D['iss'].add(i)
            return f
        def stream(M, G):
            for i, m in enumerate(M):
                k(m)
                for x in G.get(i, []): em(x)
        def spread(G, items, gaps):
            n = len(items); g = len(gaps)
            for i, x in enumerate(items): G.setdefault(gaps[i*g//n], []).append(x)
        LA = OPT.get('la', 8)
        def actl(name, vo, so, sst, sreg=STR):
            L = [(f"buffer_load_dwordx4 {vr(ACT+4*s)}, v{vo[s//4]}, s[4:7], {so} offen offset:{1024*(s%4)} sc1", [ACT+4*s]) for s in range(16)]
            if sst: L.append((f"buffer_load_dwordx4 {vr(sreg)}, v3, s[4:7], {sst} offen sc1", [sreg+i for i in range(4)]))
            D = stub(name, L)
            D['inl'] = OPT.get('inl', 1)
            if D['inl']: stubs.pop()
            I = [iss(D, s, f"{name}{s//2}") for s in range(16)]
            if sst: I.insert(6, iss(D, 16, "sts"))
            n = LA + (1 if sst else 0)
            D['rest'] = I[n:]
            return I[:n], D
        def first_check(name, D):
            k.waitvm(f"{name}0")
            for x in maxl([ACT, ACT+4]): k(x)
            br(D, [0, 1])()
        def mstage(name, D, e0, AC, zero, has_st, early, late, fin=()):
            M = [M16(vr(AC+4*(i%4)), buf(e0+i), vr(ACT+4*(i//4)), 0 if (zero and i < 4) else vr(AC+4*(i%4))) for i in range(64)]
            G = {i: [] for i in range(64)}
            used = set()
            for i in range(64):
                if i % 2 == 1 and i < 63: G[i].append(lambda i=i: k.waitlg(f"r{e0+i+2}"))
                p = i//8
                if p < 7 and i % 8 == 4: G[i].append(lambda p=p: k.waitvm(f"{name}{p+1}"))
                if p < 7 and i % 8 == 6: G[i].append(br(D, ([16] if has_st and p == 3 else []) + [2*p+2, 2*p+3]))
                G[i] += refill(e0+i)
            for j, x in enumerate(D['rest']):
                gi = 8*(j//2) + (0, 7)[j % 2]; G[gi].append(x); used.add(gi)
            for p in range(7):
                regs = [ACT+8*p+8, ACT+8*p+12]
                if has_st and p == 3: regs = [STR, STR+1, STR+2, STR+3] + regs
                L = maxl(regs)
                for j, x in enumerate(L):
                    gi = 8*p+5-(len(L)-1-j); G[gi].append(x); used.add(gi)
            for j, x in enumerate(fin): G[56+j].append(x); used.add(56+j)
            spread(G, list(early), [i for i in range(0, 32) if i not in used])
            spread(G, list(late), [i for i in range(31, 64) if i not in used])
            st(f"{name}_w")
            first_check(name, D)
            k.waitlg(f"r{e0+1}")
            st(f"{name}_m")
            stream(M, G)
            st(f"{name}_e")
        def packstore(AC, so):
            for p in range(2):
                for r in range(4): k(f"v_cvt_pk_bf16_f32 v{PK+4*p+r}, v{AC+8*p+2*r}, v{AC+8*p+2*r+1}")
                k(f"v_min_u32 v{PK+4*p}, {sM2}, v{PK+4*p}")
                k(f"buffer_store_dwordx4 {vr(PK+4*p)}, v3, s[4:7], {so} offen offset:{1024*p}{sc}", tag="st")
        SV=9
        def pstats(so, a):
            k(f"v_dot2_f32_bf16 v{a}, v{PK}, {sONE}, 0\nv_dot2_f32_bf16 v{a+1}, v{PK}, v{PK}, 0")
            for r in range(1,8): k(f"v_dot2_f32_bf16 v{a}, v{PK+r}, {sONE}, v{a}\nv_dot2_f32_bf16 v{a+1}, v{PK+r}, v{PK+r}, v{a+1}")
            k(f"v_permlane16_swap_b32 v{a}, v{a+1}\nv_add_f32 v{a}, v{a}, v{a+1}")
            xhalf_add(k, a, a+1)
            k(f"v_min_u32 v{a}, {sM2}, v{a}")
            k(f"buffer_store_dword v{a}, v{SV}, s[4:7], {so} offen{sc}", tag="st")
        def cs3(t): return [M16(ar(160+4*t), w3reg(t, s), "a[172:175]", 0 if s == 0 else ar(160+4*t)) for s in range(16)]
        def statlist(a, NMU, RS, t):
            L = [f"v_add_f32 v{a}, v{a}, v{a+2}", f"v_add_f32 v{a+1}, v{a+1}, v{a+3}"]
            for op in ("v_permlane16_swap_b32", "v_permlane32_swap_b32"):
                L += [f"v_mov_b32 v{a+2}, v{a}", f"v_mov_b32 v{a+3}, v{a+1}", f"{op} v{a}, v{a+2}", f"{op} v{a+1}, v{a+3}",
                      f"v_add_f32 v{a}, v{a}, v{a+2}", f"v_add_f32 v{a+1}, v{a+1}, v{a+3}"]
            L += [f"v_mul_f32 v{NMU}, {fhex(-1/512)}, v{a}", f"v_mul_f32 v{a+1}, {fhex(1/512)}, v{a+1}", f"v_fma_f32 v{a+1}, -v{NMU}, v{NMU}, v{a+1}",
                  f"v_max_f32 v{a+1}, 0, v{a+1}", f"v_add_f32 v{t}, {fhex(EPS)}, v{a+1}", f"v_rsq_f32 v{RS}, v{t}"]
            return L
        def gconsts(R, IRS, A, B):
            return [f"v_rcp_f32 v{IRS}, v{R}", f"v_mul_f32 v{A}, v{R}, v{R}", f"v_mul_f32 v{B}, {fhex(GB)}, v{R}", f"v_mul_f32 v{A}, v{A}, v{R}", f"v_mul_f32 v{A}, {fhex(GA)}, v{A}"]
        def window(M, loads, pre, extra):
            G = {}
            n = len(M)
            spread(G, loads, list(range(pre, n)))
            for gi, x in extra: G.setdefault(gi, []).append(x)
            stream(M, G)
        PRB = OPT.get('prb', 1)
        def probe(name, so, I, work):
            nsp = OPT.get(name+'sp', OPT.get('spec', 0))
            k(f"v_lshlrev_b32 v{ACT+63}, 8, v1")
            if OPT.get('dbgst'):
                st(f"{name}_a"); k("s_waitcnt vmcnt(1)"); st(f"{name}_b"); k("s_waitcnt vmcnt(0)"); st(f"{name}_c")
            pl = [f"buffer_load_dword v0, v{ACT+63}, s[4:7], {so} offen sc1"]
            for x in pl: k(x, tag="prb")
            n0 = len(k.L)
            for x in I[:nsp]: em(x)
            rep = [x.strip() for x in k.L[n0:]]
            work()
            k.waitvm("prb")
            st(f"{name}_p")
            P_ = k.newlabel("P"); OK = k.newlabel("Q")
            k(f"v_cmp_eq_u32 vcc, -1, v0\ns_cbranch_vccz {OK}")
            k.label(P_)
            n0 = len(k.vmq)
            for x in pl + rep: k(x)
            del k.vmq[n0:]
            k(f"s_add_u32 {sCNT}, {sCNT}, 1\ns_cmp_gt_u32 {sCNT}, {BOUND}\ns_waitcnt vmcnt({nsp})\nv_cmp_eq_u32 vcc, -1, v0\ns_cbranch_scc1 {OK}\ns_cbranch_vccnz {P_}")
            k.label(OK)
            st(f"{name}_q")
            return I[nsp:]
        def pwindow(name, so, M, I, extra):
            a = OPT.get(name+'wa', OPT.get('wa', 0))
            G = {}
            for gi, x in extra: G.setdefault(gi, []).append(x)
            R = probe(name, so, I, lambda: stream(M[:a], G))
            n1 = OPT.get('l0', 2)
            for x in R[:n1]: em(x)
            G = {g-a: v for g, v in G.items() if g >= a}
            if a < len(M):
                G2 = {}
                spread(G2, R[n1:], list(range(0, min(len(M)-a, OPT.get('lsp', 4)))))
                for g in G2: G[g] = G2[g] + G.get(g, [])
                stream(M[a:], G)
            else:
                for x in R[n1:]: em(x)
        k(f"buffer_store_dwordx4 {vr(P[0])}, v2, s[4:7], {sOs[0]} offen{sc}", tag="st")
        for e in range(6): em(rd(e))
        norm(1)
        k(f"buffer_store_dwordx4 {vr(P[1])}, v2, s[4:7], {sOs[1]} offen{sc}", tag="st")
        st("m_ost")
        I, labO = actl("o", [3,4,5,6], sOl, None)
        M = [M16("a[168:171]", buf(e), "a[172:175]", 0 if e == 0 else "a[168:171]") for e in range(16)]
        def b0work():
            k("s_barrier")
            for i in range(6): k(f"ds_write_b128 v15, {ar(4*i)} offset:{1024*i}")
            for r in range(8): k(f"v_accvgpr_read_b32 v{H+2*r+1}, a{160+r}")
            for r in range(8): k(f"v_lshlrev_b32 v{H+2*r}, 16, v{H+2*r+1}\nv_and_b32 v{H+2*r+1}, 0xffff0000, v{H+2*r+1}")
        if PRB:
            a = OPT.get('owa', 0)
            G = {e: ([lambda e=e: k.waitlg(f"r{e+2}")] if e % 2 == 1 and e < 15 else []) + refill(e) for e in range(16)}
            def w0():
                for e in range(6, 12): em(rd(e))
                k(f"v_add_u32 v8, {WB:#x}, v3")
                b0work()
                k.waitlg("r1")
                stream(M[:a], G)
            R = probe("o", sOl, I, w0)
            n1 = OPT.get('l0', 2) if a < 16 else 99
            for x in R[:n1]: em(x)
            G = {g-a: v for g, v in G.items() if g >= a}
            G2 = {}
            if a < 16: spread(G2, R[n1:], list(range(0, min(16-a, OPT.get('lsp', 4)))))
            for g in G2: G[g] = G2[g] + G[g]
            stream(M[a:], G)
        else:
            for x in I[:2]: em(x)
            for e in range(6, 12): em(rd(e))
            k(f"v_add_u32 v8, {WB:#x}, v3")
            k.waitlg("r1")
            G = {}
            for e in range(16):
                G[e] = ([lambda e=e: k.waitlg(f"r{e+2}")] if e % 2 == 1 and e < 15 else []) + refill(e) + (I[2+e//2:3+e//2] if e % 2 == 0 else [])
            stream(M, G)
            b0work()
        k("ds_write_b128 v11, a[168:171]")
        GV = [2, 10, 11, 15]
        E = [f"v_lshrrev_b32 v{SV}, 5, v1", f"v_lshlrev_b32 v{SV}, 31, v{SV}", f"v_lshl_add_u32 v{SV}, v12, 4, v{SV}", f"v_lshl_add_u32 v{SV}, v13, 2, v{SV}", f"v_add_u32 v{SV}, {sSV}, v{SV}",
             "v_mov_b32 v14, 0x4000"]
        for gi, sh in enumerate((-1, 1, -2, 2)):
            v = GV[gi]
            E += [f"v_add_u32 v{v}, {sh}, v12", f"v_bfe_i32 v{v}, v{v}, 4, 1", f"v_bfi_b32 v{v}, v{v}, {sDP if sh < 0 else sDN}, v14", f"v_add3_u32 v{v}, v{3+gi}, v{v}, {16*(sh+2)}"]
        E += ["v_add_u32 v14, 2, v12", "v_and_b32 v14, 12, v14", "v_sub_u32 v14, 0, v14", "v_and_b32 v14, 0x80000000, v14", "v_add_u32 v14, v14, v3"]
        mstage("o", labO, 16, H, False, False, [], E)
        packstore(H, sHs)
        st("m_hst")
        pstats(sSh, TMP)
        I, labH = actl("h", [3,4,5,6], sHl, sSh)
        k(f"v_add_u32 v{TMP}, {sSB}, v3\nv_lshlrev_b32 v{TMP+1}, 4, v13\nv_add_u32 v{TMP+1}, {CSL:#x}, v{TMP+1}")
        NG = OPT.get('w2g', 0)
        w2w = [f"ds_write_b128 v{TMP}, {ar(24+4*i)} offset:{1024*i}" for i in range(10)]
        ex = [(OPT.get('b1g', 3), "s_barrier")] + [(min(15, OPT.get('b1g', 3)+1+i), x) for i, x in enumerate(w2w[:10-NG])]
        exg = [(i, x) for i, x in enumerate(w2w[10-NG:])] + [(15, "s_waitcnt lgkmcnt(0)\ns_barrier" if NG else "s_barrier")]
        if PRB: pwindow("h", sHl, cs3(0), I, ex)
        else: window(cs3(0), I, OPT.get('hpre', 0), ex)
        NMU=TMP+2; IRS=TMP+3; GA_=TMP+4; GB_=TMP+5; R1=TMP+6; KK=TMP+7; TT=TMP+8; RR=TMP+9; EP=TMP+10
        late = statlist(STR, NMU, R1, TT) + [f"v_mul_f32 v{TT}, v{R1}, v{R1}", f"v_fma_f32 v{TT}, v{TT}, v{STR+1}, v{EP}", f"v_rsq_f32 v{TT}, v{TT}",
              f"v_mul_f32 v{KK}, v{NMU}, v{R1}", f"v_mul_f32 v{RR}, v{R1}, v{TT}"] + gconsts(RR, IRS, GA_, GB_)
        CS=ACT; G0=ACT+16
        mstage("h", labH, 80, A2, True, True, [f"v_mov_b32 v{EP}, {fhex(EPS)}"], late, [(f"ds_read_b128 {vr(CS+4*nb)}, v{TMP+1} offset:{64*nb}", "cs") for nb in range(4)])
        k.waitlg("cs")
        k(f"s_cmp_lg_u32 {sMB}, 0")
        for p in range(2):
            R = range(8*p, 8*p+8, 2)
            for r in R: k(f"v_pk_fma_f32 {pr(A2+r)}, {pr(CS+r)}, {pr(NMU)}, {pr(A2+r)} op_sel_hi:[1,0,1]")
            for r in R: k(f"v_pk_mul_f32 {pr(G0+r)}, {pr(A2+r)}, {pr(A2+r)}")
            for r in R: k(f"v_pk_fma_f32 {pr(G0+r)}, {pr(G0+r)}, {pr(GA_)}, {pr(GA_)} op_sel:[0,0,1] op_sel_hi:[1,0,1]")
            for r in R: k(f"v_pk_mul_f32 {pr(G0+r)}, {pr(G0+r)}, {pr(A2+r)}")
            for r in range(8*p, 8*p+8): k(f"v_exp_f32 v{G0+r}, v{G0+r}")
            for r in R: k(f"v_pk_fma_f32 {pr(G0+r)}, {pr(G0+r)}, {pr(NMU)}, {pr(NMU)} op_sel:[0,1,1] op_sel_hi:[1,1,1]")
            for r in range(8*p, 8*p+8): k(f"v_rcp_f32 v{G0+r}, v{G0+r}")
            for r in R: k(f"v_pk_mul_f32 {pr(A2+r)}, {pr(A2+r)}, {pr(G0+r)}")
            for r in range(4): k(f"v_cvt_pk_bf16_f32 v{PK+4*p+r}, v{A2+8*p+2*r}, v{A2+8*p+2*r+1}")
            k(f"v_min_u32 v{PK+4*p}, {sM2}, v{PK+4*p}")
            a = k.newlabel("M"); c = k.newlabel("C")
            k(f"s_cbranch_scc1 {a}"); k.label(c)
            tramp.append([f"{a}:", f"buffer_store_dwordx4 {vr(PK+4*p)}, v14, s[4:7], {sMB} offen offset:{1024*p} sc1", f"s_branch {c}"])
            k(f"buffer_store_dwordx4 {vr(PK+4*p)}, v3, s[4:7], {sGs} offen offset:{1024*p}{sc}", tag="st")
        st("m_gst")
        for r in range(0,16,2): k(f"v_pk_fma_f32 {pr(A2+r)}, {pr(H+r)}, {pr(R1)}, {pr(R1)} op_sel:[0,0,1] op_sel_hi:[1,0,1]")
        I, labG = actl("g", GV, sGl, None)
        if PRB:
            k(f"s_sub_u32 {T}, {sHl}, {HO-GO:#x}")
            pwindow("g", T, cs3(1), I, exg)
        else: window(cs3(1), I, OPT.get('gpre', 4), exg)
        E = ["v_lshl_add_u32 v14, v13, 2, v12", "v_and_b32 v14, 15, v14", "v_lshlrev_b32 v14, 4, v14", "v_lshl_add_u32 v14, v13, 8, v14",
             f"s_lshl_b32 {T}, {W}, 12", f"v_add_u32 v14, {T}, v14", f"v_add_u32 v{KA}, {W14}, v8"]
        mstage("g", labG, 144, A2, False, False, [], E)
        packstore(A2, sXs)
        st("m_x1st")
        pstats(sSx, TMP)
        for r in range(0,16,2): k(f"v_pk_add_f32 {pr(H+r)}, {pr(H+r)}, {pr(A2+r)}")
        for nb in range(4): k(f"ds_write_b128 v14, {vr(H+4*nb)} offset:{1024*nb}")
        ST3=136
        I, labX = actl("x", [3,4,5,6], sXl, sSx, ST3)
        if PRB: pwindow("x", sXl, cs3(2), I, [])
        else: window(cs3(2), I, OPT.get('xpre', 0), [])
        AC=[84,96]; C3=108; GT=120; SP=[132,32,36,32]; UP=136; TT=140; RS=141
        M = [M16(vr(AC[0]+4*t), w3reg(t,s), vr(ACT+4*s), 0 if s == 0 else vr(AC[0]+4*t)) for s in range(16) for t in range(3)]
        G = {i: [] for i in range(48)}; used = set()
        for p in range(8):
            for h in range(2): G[6*p+h].append(f"ds_write_b128 v{KA}, {vr(ACT+8*p+4*h)} offset:{2048*p+1024*h}")
            if p < 7:
                regs = [ACT+8*p+8, ACT+8*p+12]
                if p == 3: regs = [ST3+i for i in range(4)] + regs
                G[6*p+3].append(lambda p=p: k.waitvm(f"x{p+1}"))
                L = maxl(regs)
                for j, x in enumerate(L):
                    gi = 6*p+4-(len(L)-1-j); G[gi].append(x)
                G[6*p+5].append(br(labX, ([16] if p == 3 else []) + [2*p+2, 2*p+3]))
        for j, x in enumerate(labX['rest']): G[3*j+2].append(x)
        early = [f"v_accvgpr_read_b32 v{C3+r}, a{160+r}" for r in range(12)]
        early += [f"s_lshl_b32 {T}, {W}, 8", "v_lshlrev_b32 v15, 4, v12", f"v_add_u32 v15, {STL:#x}, v15", f"v_add_u32 v2, {T}, v15",
                  f"v_add_u32 v10, {sHF}, v3", f"s_cmp_eq_u32 {W}, 3\ns_cselect_b32 {T}, {OOB:#x}, 0", f"v_add_u32 v11, {T}, v5",
                  f"s_lshr_b32 {T}, {T}, 21", f"v_subrev_u32 v12, {T}, v5"]
        spread(G, early, list(range(2, 24)))
        late = statlist(ST3, SP[0], RS, TT) + gconsts(RS, SP[0]+1, SP[0]+2, SP[0]+3) + [f"ds_write_b128 v2, {vr(SP[0])}"]
        TB=[None,80,81,82]; SB=[None,83,142,143]
        for q in range(1,4): late += [f"s_lshl_b32 {T}, {sTid[q]}, 14", f"v_add_u32 v{TB[q]}, {T}, v8", f"s_lshl_b32 {T}, {sTid[q]}, 8", f"v_add_u32 v{SB[q]}, {T}, v15"]
        spread(G, late, list(range(24, 48)))
        st("x_w")
        first_check("x", labX)
        st("x_m")
        stream(M, G)
        st("x_e")
        k("s_waitcnt lgkmcnt(0)\ns_barrier")
        st("m_B3")
        def gelu_list(a, sp, q):
            L = []
            for c in range(2):
                R = range(0,8) if c == 0 else range(8,12)
                L += [f"v_fma_f32 v{a+r}, v{sp}, v{C3+r}, v{a+r}" for r in R]
                L += [f"v_mul_f32 v{GT+r}, v{a+r}, v{a+r}" for r in R]
                L += [f"v_fma_f32 v{GT+r}, v{GT+r}, v{sp+2}, v{sp+3}" for r in R]
                L += [f"v_mul_f32 v{GT+r}, v{GT+r}, v{a+r}" for r in R]
                L += [f"v_exp_f32 v{GT+r}, v{GT+r}" for r in R]
                L += [f"v_fma_f32 v{GT+r}, v{GT+r}, v{sp+1}, v{sp+1}" for r in R]
                L += [f"v_rcp_f32 v{GT+r}, v{GT+r}" for r in R]
                L += [f"v_mul_f32 v{a+r}, v{a+r}, v{GT+r}" for r in R]
                L += [f"v_cvt_pk_bf16_f32 v{UP+r//2}, v{a+r}, v{a+r+1}" for r in R if r % 2 == 0]
                if c == 0:
                    L += [f"v_min_u32 v{UP}, {sM2}, v{UP}", f"v_min_u32 v{UP+2}, {sM2}, v{UP+2}",
                          (f"buffer_store_dwordx4 {vr(UP)}, v3, s[4:7], {sUs[q]} offen{sc}", "st")]
                else:
                    L += [f"v_min_u32 v{UP+4}, {sM2}, v{UP+4}", (f"buffer_store_dwordx2 {vr(UP+4,2)}, v10, s[4:7], {sUs[q]} offen{sc}", "st")]
            return L
        cost = lambda x: 8 if isinstance(x, tuple) or x.startswith(TRANS) else 4
        def spreadw(G, items, gaps):
            tot = sum(cost(x) for x in items); acc = 0; g = len(gaps)
            for x in items:
                gi = min(g-1, acc*g//tot); acc += cost(x)
                if isinstance(x, tuple) and gi+1 < g: G.setdefault(('m', gaps[gi+1]), []).append(x)
                else: G.setdefault(gaps[gi], []).append(x)
        def stream2(M, F, G):
            for i, m in enumerate(M):
                k(m)
                for x in F.get(i, []) + G.get(('m', i), []) + G.get(i, []): em(x)
        lateW = [(ldr(w4reg(i//4, i%4), s4[i//16], i%16, "v11" if i >= 40 else None)[0], "w4") for i in range(24, 44)]
        BB=ACT
        def rdB(n):
            q = n//16+1; s = n % 16
            return (f"ds_read_b128 {vr(BB+4*(n%4))}, v{TB[q]} offset:{1024*s}", f"b{n}")
        UB=[40,144,188,40]
        UV=[80,80,80,80]
        def uld(t): return [f"buffer_load_dwordx4 {vr(UB[t]+4*ks)}, v{12 if ks == 10 else 3+ks//4}, s[4:7], {sUl[t]} offen offset:{1024*(ks%4)} sc1" for ks in range(11)]
        DU = dict(L=[(x, [UB[t]+4*ks, UB[t]+4*ks+2]) for t in range(4) for ks, x in enumerate(uld(t))], iss=set(), inl=OPT.get('uinl', 2), nst=1)
        def uiss(t): return [iss(DU, 11*t+ks, f"u{t}_{ks//2}") for ks in range(11)]
        LK = OPT.get('lk', 44)
        UPOS = {}
        for t in range(1, 4):
            for ks, x in enumerate(uiss(t)): UPOS.setdefault(max(OPT.get(f'u{t}at', 0) + 44*(t-1), 44*t + 4*ks - LK), []).append(x)
        for n in range(4): em(rdB(n))
        for q in range(1,4):
            M = []; F = {}; G = {}
            for s in range(16):
                n = 16*(q-1)+s
                for t in range(3): M.append(M16(vr(AC[q%2]+4*t), w3reg(t,s), vr(BB+4*(n%4)), 0 if s == 0 else vr(AC[q%2]+4*t)))
                F[3*s+2] = ([lambda n=n: k.waitlg(f"b{n+1}")] if n < 47 else []) + ([rdB(n+4)] if n+4 < 48 else [])
            F.setdefault(30, []).append((f"ds_read_b128 {vr(SP[q])}, v{SB[q]}", f"sp{q}"))
            if OPT.get('lw2', 1) and q < 3:
                n1 = OPT.get('lw1', 8)
                mem = lateW[:n1] if q == 1 else lateW[n1:]
                for i, x in enumerate(mem): F.setdefault(3*((i*16+OPT.get('lwo', 8))//len(mem)), []).append(x)
            else:
                mem = lateW if q == 1 else ([] if q == 2 else uiss(0)[:10])
                g0 = 0 if q == 1 else OPT.get('u0at', 6)
                us = OPT.get('u0s', 2)
                for i, x in enumerate(mem): F.setdefault(3*(g0+i//(2 if q == 1 else us)), []).append(x)
            gl = gelu_list(AC[(q-1)%2], SP[q-1], q-1)
            if q == 1:
                for x in gl[:OPT.get('lead1', 20)]: em(x)
                gl = gl[OPT.get('lead1', 20):]
                k.waitlg("b0")
                spreadw(G, gl, list(range(0, 48)))
            else: spreadw(G, gl, list(range(2, 48)))
            stream2(M, F, G)
            st(f"u_slot{q}")
        st("m_w3e")
        em(uiss(0)[10])
        A4=[232,16]
        RD=84
        RA=[8,124]
        red_addr = ["v_lshrrev_b32 v7, 2, v1", "v_and_b32 v8, 3, v1", "v_lshl_add_u32 v9, v8, 2, v7", "v_and_b32 v9, 15, v9", "v_lshlrev_b32 v9, 4, v9", "v_lshl_add_u32 v9, v8, 8, v9",
                    "v_lshlrev_b32 v7, 10, v7", "v_lshl_add_u32 v7, v8, 4, v7",
                    f"s_and_b32 {T}, {W}, 1", f"s_lshl_b32 {T}, {T}, 11", f"v_add_u32 v9, {T}, v9",
                    f"s_mov_b32 {T2}, 16384", f"s_cmp_lt_u32 {W}, 2\ns_cselect_b32 {T}, {RING:#x}, {T2}", f"v_add_u32 v{RA[0]}, {T}, v9",
                    f"s_lshr_b32 {T2}, {W}, 1", f"s_lshl_b32 {T}, {T2}, 14", f"s_add_u32 {T}, {T}, 0x8000", f"v_add_u32 v{RA[1]}, {T}, v9",
                    f"s_lshl_b32 {T}, {T2}, 12", f"v_add_u32 v9, {T}, v9"]
        def red_list(u):
            L = []
            for src in range(4):
                for b in range(2): L.append((f"ds_read_b128 {vr(RD+8*src+4*b)}, v{RA[u]} offset:{4096*src+1024*b}", f"rd{src}"))
            for b in range(2): L.append((f"ds_read_b128 {vr(RD+32+4*b)}, v9 offset:{8192*u+1024*b}", "rd4"))
            add = (lambda d, s: [f"v_add_f32 v{d+r}, v{d+r}, v{s+r}" for r in range(8)]) if u == 0 else (lambda d, s: [f"v_pk_add_f32 {pr(d+r)}, {pr(d+r)}, {pr(s+r)}" for r in range(0,8,2)])
            L.append(lambda: k.waitlg("rd1")); L += add(RD, RD+8)
            L.append(lambda: k.waitlg("rd3")); L += add(RD+16, RD+24)
            L.append(lambda: k.waitlg("rd4")); L += add(RD, RD+32) + add(RD, RD+16)
            L += [f"v_cvt_pk_bf16_f32 v{RD+8+r}, v{RD+2*r}, v{RD+2*r+1}" for r in range(4)]
            L.append((f"buffer_store_dwordx4 {vr(RD+8)}, v7, s[12:15], {sOut[u]} offen{' sc1' if OPT.get('outsc') else ''}", "out"))
            return L
        def ureg(t, c): return [UB[t]+4*ks+d for ks in range(2*c, min(2*c+2, 11)) for d in (0, 2)]
        k(f"v_add_u32 v2, {RING:#x}, v14")
        k.waitvm("u0_0")
        for x in maxl(ureg(0, 0)): k(x)
        br(DU, [0, 1])()
        k.waitlg("sp3")
        for t in range(4):
            a = A4[t%2]
            M = [M16(vr(a+4*nb), w4reg(ks,nb), vr(UB[t]+4*ks), 0 if ks == 0 else vr(a+4*nb)) for ks in range(11) for nb in range(4)]
            F = {}; G = {}; used = set()
            for c in range(1, 7):
                tt, cc, e = (t, c, 8*c) if c < 6 else (t+1, 0, 44)
                if tt > 3: continue
                L = maxl(ureg(tt, cc))
                F.setdefault(e-1-len(L), []).append(lambda tt=tt, cc=cc: k.waitvm(f"u{tt}_{cc}"))
                for j, x in enumerate(L): G.setdefault(e-1-len(L)+j, []).append(x); used.add(e-1-len(L)+j)
                F.setdefault(e-1, []).append(br(DU, [11*tt+i for i in range(2*cc, min(2*cc+2, 11))]))
            if t >= 1:
                pa = A4[(t-1)%2]
                for nb in range(4): F.setdefault(8+nb, []).append(f"ds_write_b128 v2, {vr(pa+4*nb)} offset:{1024*nb}" if t == 1 else f"ds_write_b128 v14, {vr(pa+4*nb)} offset:{16384*(t-1)+1024*nb}")
            for g in range(44):
                for x in UPOS.get(44*t+g, []): F.setdefault(g, []).append(x)
            if t == 0:
                F.setdefault(22, []).insert(0, lambda: k.waitvm("w4"))
                spreadw(G, gelu_list(AC[1], SP[3], 3), list(range(2, OPT.get('g3end', 36))))
            if t == 1: spread(G, red_addr, [i for i in range(14, 44) if i not in used])
            if t == 2:
                F.setdefault(32, []).append("s_waitcnt lgkmcnt(0)"); F.setdefault(32, []).append("s_barrier")
            if t == 3: spread(G, red_list(0), [i for i in range(0, 44) if i not in used])
            stream2(M, F, G)
            st(f"u_t{t}")
        for nb in range(4): k(f"ds_write_b128 v14, {vr(A4[1]+4*nb)} offset:{16384*3+1024*nb}")
        k("s_waitcnt lgkmcnt(0)\ns_barrier")
        st("m_w4e")
        for x in red_list(1): em(x)
        if fast != bool(OPT.get('slowtail')):
            if OPT.get('cnt'): k(f"s_mov_b32 s{k.sb}, {sCNT}")
            stamp_out(k, 1, 16, 18)
        if fast: k.label(done)
        k("s_endpgm")
        for L in tramp + stubs:
            for x in L:
                if x.endswith(":"): k.label(x[:-1])
                else: k(x)
    vq, lq = list(k.vmq), list(k.lgq)
    tail(True)
    hopend(k, 4, "L_code_end")
    k.label("L_code_end")
    k.label("L_tail_sc")
    k.vmq, k.lgq = list(vq), list(lq)
    k("s_nop 7")
    tail(False)
    for L in atr:
        for x in L:
            if x.endswith(":"): k.label(x[:-1])
            else: k(x)
    k.label("L_attn_slow")
    k("s_waitcnt vmcnt(0)")
    M=[C, C+1]; TM=C+2; TX=C+3; AL=C+4
    for X_ in range(2): k(f"v_mov_b32 v{M[X_]}, {fhex(-3.0e38)}")
    for r in range(32): k(f"v_mov_b32 v{O[0]+r}, 0")
    for r in range(8): k(f"v_mov_b32 v{V0+r}, {sONE}")
    k(f"s_lshl_b32 {sKV}, {HD}, 17\ns_add_u32 {sKV}, {sKV}, {KV:#x}\ns_mov_b32 {sRW}, 64\ns_mov_b32 {RET}, 0x0000ffff\ns_mov_b32 s{int(RET[1:])+1}, 0x0000ffff")
    k.label("L_attn_sloop")
    k(f"buffer_load_dwordx4 {vr(KR)}, v3, s[4:7], {sKV} offen")
    k(f"s_mov_b64 exec, {RETP}")
    k(f"buffer_load_dwordx4 {vr(V0)}, v14, s[4:7], {sKV} offen offset:1024")
    k(f"buffer_load_dwordx4 {vr(V1)}, v14, s[4:7], {sKV} offen offset:1536")
    k("s_mov_b64 exec, -1")
    k("s_waitcnt vmcnt(0)")
    for X_ in range(2):
        s = S[X_]; p = P[X_]
        k(M32(vr(s,16), vr(KR), vr([QA,QB][X_]), 0))
        k(f"v_max_f32 v{TM}, v{s}, v{s+1}")
        for r in range(2,16,2): k(f"v_max3_f32 v{TM}, v{TM}, v{s+r}, v{s+r+1}")
        k(f"v_mov_b32 v{TX}, v{TM}\nv_permlane32_swap_b32 v{TM}, v{TX}\nv_max3_f32 v{TM}, v{TM}, v{TX}, v{M[X_]}")
        k(f"v_sub_f32 v{AL}, v{M[X_]}, v{TM}\nv_exp_f32 v{AL}, v{AL}\nv_mov_b32 v{M[X_]}, v{TM}")
        for r in range(16): k(f"v_mul_f32 v{O[X_]+r}, v{O[X_]+r}, v{AL}")
        for r in range(16): k(f"v_sub_f32 v{s+r}, v{s+r}, v{TM}")
        for r in range(16): k(f"v_exp_f32 v{s+r}, v{s+r}")
        for r in range(8): k(f"v_cvt_pk_bf16_f32 v{p+r}, v{s+2*r}, v{s+2*r+1}")
        k(M32(vr(O[X_],16), vr(V0), vr(p), vr(O[X_],16)))
        k(M32(vr(O[X_],16), vr(V1), vr(p+4), vr(O[X_],16)))
    k("s_nop 15")
    k(f"s_add_u32 {sKV}, {sKV}, 2048\ns_sub_u32 {sRW}, {sRW}, 1\ns_cmp_lg_u32 {sRW}, 0\ns_cbranch_scc1 L_attn_sloop")
    k(f"v_rcp_f32 v{T0+4}, v{O[0]+8}\nv_rcp_f32 v{T0+6}, v{O[1]+8}")
    norm(0)
    k("s_nop 3")
    k("s_branch L_attn_fin")
    print("sgprs used up to", S_.n)
    return k

if __name__ == "__main__":
    out = sys.argv[1]
    for a in sys.argv[2:]:
        kk, v = a.split("="); OPT[kk] = int(v) if v.lstrip("-").isdigit() else v
    k2 = gen_k2(); n2 = k2.fix(verbose=bool(OPT.get('v')))
    k1 = gen_k1(); n1 = k1.fix(verbose=bool(OPT.get('v')))
    print("nops inserted", n1, n2, "verify errors", verify(k1), verify(k2))
    emit(out, [("qkv_kernel",256,512,163840),("main_kernel",256,256,163840)], [k1, k2], step=OPT.get('hopstep', 4096))
```

```python
import math, sys
from asmlib2 import *

QF=0x000000; KV=0x200000; OF=0x600000
SETB=0x800000; SETS=0x180000; GO=0; HO=0x40000; XO=0x80000; SO=0xC0000; UO=0xC8000
WOF=0x1400000; W1F=0x1480000; W2F=0x1500000; W3F=0x1580000; W4F=0x1700000
GM=0x18C0000
XT=0x1900000
DBGOFF=0x1E00000
WS_SZ=0x2000000
ONES=0x3F803F80
EPS=1e-5
LOG2E=1.4426950408889634
GA = -2*LOG2E*math.sqrt(2/math.pi)*0.044715
GB = -2*LOG2E*math.sqrt(2/math.pi)
OPT = dict(stamp=False, slow=False, I0=2, pref=True, rot=3, k1sc=1, gram=1, nv=3, cpf=55, hop=6, early=0, fill0=4, lastfill=54, spf=2, spft=54, spfs=2, prb=0, inl=3, la=6, w2g=10, lw1=10, lwo=0, u0s=1, lk=26, spu=58, r1=2, w0=1, ws=8, wl=4, g3end=40, w2s=1, xcg=1, clat=22)

def stamp(k, name):
    if not OPT['stamp']: return
    if not any(name.startswith(p) for p in OPT.get('sts','m').split(',')): return
    i = len(k.stn)
    if i >= k.smax: print("stamp dropped", name); return
    k.stn.append(name)
    if OPT['stamp']==4: k(f"s_mov_b32 s{k.sb+2*i}, {getattr(k,'cnt','0')} ; s_memtime")
    else: k(f"{'s_memtime' if OPT['stamp']==2 else 's_memrealtime'} s[{k.sb+2*i}:{k.sb+1+2*i}]")
    if OPT['stamp']==3 and name != 'end' and i+1 < k.smax:
        k.stn.append(name+"#")
        k(f"s_memtime s[{k.sb+2*i+2}:{k.sb+3+2*i}]")
def stamp_out(k, kidx, vt, sw):
    if not OPT['stamp']: return
    k("s_waitcnt vmcnt(0)")
    k.smax += 1
    OPT['sts'] = OPT.get('sts','m') + ',end'
    stamp(k, "end")
    nst = len(k.stn)-1
    k("s_waitcnt lgkmcnt(0)")
    k(f"s_lshl_b32 s61, s2, 2\ns_add_u32 s60, s{sw}, s61\ns_lshl_b32 s60, s60, 6\ns_add_u32 s60, s60, {DBGOFF+kidx*0x10000:#x}")
    for i in range(16): k(f"v_mov_b32 v{vt+i}, s{k.sb+2*min(i,nst)}")
    k(f"v_mov_b32 v{vt+16}, 0")
    for i in range(4): k(f"buffer_store_dwordx4 v[{vt+4*i}:{vt+4*i+3}], v{vt+16}, s[4:7], s60 offen offset:{16*i}")
    k.L.insert(0, "; STAMPS " + ",".join(k.stn))

def xhalf_add(k, a, t):
    k(f"v_mov_b32 v{t}, v{a}")
    k(f"v_permlane32_swap_b32 v{a}, v{t}")
    k(f"v_add_f32 v{a}, v{a}, v{t}")
def x16_add(k, a, t):
    k(f"v_mov_b32 v{t}, v{a}")
    k(f"v_permlane16_swap_b32 v{a}, v{t}")
    k(f"v_add_f32 v{a}, v{a}, v{t}")
def stats_from_sums(k, s, q, mu, r, t):
    k(f"v_mul_f32 v{mu}, {fhex(1/512)}, v{s}")
    k(f"v_mul_f32 v{q}, {fhex(1/512)}, v{q}")
    k(f"v_fma_f32 v{q}, -v{mu}, v{mu}, v{q}")
    k(f"v_max_f32 v{q}, 0, v{q}")
    k(f"v_add_f32 v{t}, {fhex(EPS)}, v{q}")
    k(f"v_rsq_f32 v{r}, v{t}")
def code_prefetch(k, lab0, lab1, part_sgpr, vt):
    sk = k.newlabel()
    k(f"s_lshl_b32 s64, s{part_sgpr}, 13")
    k(f"s_cmp_ge_u32 s64, {lab1}-{lab0}\ns_cbranch_scc1 {sk}")
    pc = k.newlabel()
    k("s_getpc_b64 s[62:63]")
    k.label(pc)
    k(f"s_add_u32 s62, s62, {lab0}-{pc}\ns_addc_u32 s63, s63, 0" if lab0 != "qkv_kernel" else f"s_sub_u32 s62, s62, {pc}-{lab0}\ns_subb_u32 s63, s63, 0")
    k(f"v_lshlrev_b32 v{vt}, 7, v1\nv_add_u32 v{vt}, s64, v{vt}\nv_min_u32 v{vt}, {lab1}-{lab0}-4, v{vt}\nv_mov_b32 v{vt+1}, s63")
    k(f"v_add_co_u32 v{vt}, vcc, s62, v{vt}\nv_addc_co_u32 v{vt+1}, vcc, 0, v{vt+1}, vcc")
    n0 = len(k.vmq)
    k(f"global_load_dword v{vt+2}, v[{vt}:{vt+1}], off")
    del k.vmq[n0:]
    k.label(sk)

def sj_decode(k, SJ, r):
    S = 48+4*r
    so, dst, fd, st = 84+4*r, 85+4*r, 86+4*r, 87+4*r
    SJ[r] = (S, so, dst, fd, st)
    k(f"s_mov_b32 s{S+3}, 0x00020000")
    end = k.newlabel()
    def pairmode(v, jstride, base):
        k(f"s_lshr_b32 s30, s{v}, 4\ns_and_b32 s31, s{v}, 15")
        k(f"s_lshl_b32 s{so}, s30, 15\ns_lshl_b32 s{fd}, s31, 6\ns_add_u32 s{so}, s{so}, s{fd}")
        k(f"s_lshr_b32 s{dst}, s31, 1\ns_mul_i32 s{dst}, s{dst}, {jstride}\ns_lshl_b32 s30, s30, 12\ns_add_u32 s{dst}, s{dst}, s30")
        k(f"s_and_b32 s31, s31, 1\ns_lshl_b32 s31, s31, 11\ns_add_u32 s{dst}, s{dst}, s31\ns_add_u32 s{dst}, s{dst}, {base}")
        k(f"s_mov_b32 s{fd}, 1024\ns_mov_b32 s{st}, 1024")
    def w4(off):
        k(f"s_mov_b32 s{S}, s46\ns_mov_b32 s{S+1}, s47\ns_mov_b32 s{S+2}, {1376*512*2:#x}")
        k(f"s_add_u32 s65, s29, {off & 0xffffffff:#x}")
        pairmode(65, 43*4096, f"{W4F:#x}")
    def w3(off, src="s29"):
        k(f"s_mov_b32 s{S}, s44\ns_mov_b32 s{S+1}, s45\ns_mov_b32 s{S+2}, {1376*512*2:#x}")
        k(f"s_add_u32 s65, {src}, {off & 0xffffffff:#x}")
        k(f"s_mul_i32 s30, s65, 1525\ns_lshr_b32 s30, s30, 16\ns_mul_i32 s31, s30, 43\ns_sub_u32 s31, s65, s31")
        k(f"s_mul_i32 s{so}, s30, {32*2752}\ns_lshl_b32 s{fd}, s31, 6\ns_add_u32 s{so}, s{so}, s{fd}")
        k(f"s_lshl_b32 s{dst}, s31, 15\ns_lshl_b32 s30, s30, 10\ns_add_u32 s{dst}, s{dst}, s30\ns_add_u32 s{dst}, s{dst}, {W3F:#x}")
        k(f"s_mov_b32 s{fd}, 16384\ns_mov_b32 s{st}, 2752")
    if r == 0:
        l4 = k.newlabel()
        k(f"s_cmp_ge_u32 s29, 768\ns_cbranch_scc1 {l4}")
        k(f"s_lshr_b32 s66, s29, 8")
        k(f"s_cmp_eq_u32 s66, 1\ns_cselect_b32 s{S}, s40, s36\ns_cselect_b32 s{S+1}, s41, s37")
        k(f"s_cmp_eq_u32 s66, 2\ns_cselect_b32 s{S}, s42, s{S}\ns_cselect_b32 s{S+1}, s43, s{S+1}")
        k(f"s_mov_b32 s{S+2}, {512*512*2:#x}")
        k(f"s_and_b32 s65, s29, 255\ns_lshl_b32 s66, s66, 19\ns_add_u32 s66, s66, {WOF:#x}")
        pairmode(65, 65536, "s66")
        k(f"s_branch {end}")
        k.label(l4); w4(-768)
    elif r == 1:
        l3 = k.newlabel()
        k(f"s_cmp_ge_u32 s29, 432\ns_cbranch_scc1 {l3}")
        w4(256); k(f"s_branch {end}")
        k.label(l3); w3(-432)
    else:
        w3(592, "s2")
    k.label(end)

SLOT=28928; XOFF=12288; XW=4160; STG=5*SLOT; MUA=STG+16384
def gen_k1():
    k = Kern("qkv_kernel", vgpr=200, sgpr=102); k.sb = 70; k.stn = []; k.smax = 6
    done = "L_k1_done"
    sc1 = ' sc1' if OPT.get('k1sc') else ''
    def em(x):
        if callable(x): x()
        elif isinstance(x, tuple): k(x[0], tag=x[1])
        else: k(x)
    k(f"s_cmp_ge_u32 s2, 256\ns_cbranch_scc1 {done}")
    stamp(k,"m_start")
    k("s_load_dwordx16 s[32:47], s[0:1], 0")
    k("s_load_dwordx2 s[4:5], s[0:1], 80")
    k("v_lshrrev_b32 v2, 6, v0\nv_and_b32 v1, 63, v0")
    k(f"s_mov_b32 s6, {WS_SZ:#x}\ns_mov_b32 s7, 0x00020000")
    k("s_and_b32 s16, s2, 6\ns_lshl_b32 s16, s16, 1\ns_lshr_b32 s19, s2, 3\ns_and_b32 s18, s19, 3\ns_add_u32 s16, s16, s18")
    k("s_and_b32 s17, s2, 1\ns_lshl_b32 s17, s17, 3\ns_lshr_b32 s18, s19, 2\ns_add_u32 s17, s17, s18")
    k("v_readfirstlane_b32 s23, v2")
    k(f"s_xor_b32 s96, s17, 8\ns_add_u32 s97, s17, 4\ns_and_b32 s97, s97, 15")
    k("v_lshrrev_b32 v9, 2, v1\nv_and_b32 v10, 3, v1\nv_lshlrev_b32 v3, 4, v1")
    k("s_and_b32 s18, s23, 3")
    k("s_lshl_b32 s22, s16, 2\ns_add_u32 s22, s22, s18")
    k(f"s_mul_i32 s26, s18, 3072\ns_mul_i32 s27, s18, {XW}\ns_add_u32 s27, s27, {XOFF}")
    if OPT.get('gwx', 1): k("s_and_b32 s28, s2, 7\ns_lshl_b32 s28, s28, 5\ns_add_u32 s28, s28, s19")
    else: k("s_mov_b32 s28, s2")
    k("s_lshl_b32 s29, s28, 2\ns_add_u32 s29, s29, s18")
    k(f"s_lshl_b32 s99, s18, 8\ns_add_u32 s99, s99, s2\ns_lshl_b32 s67, s18, 12\ns_add_u32 s67, s67, {STG}\ns_add_u32 s68, s67, 2048\ns_mov_b32 s69, {MUA}")
    k("s_cmp_lt_u32 s23, 4\ns_cbranch_scc1 L_k1_comp")
    SEL=112; CP=168; CSX = MUA+1024
    def wtr(d):
        k("v_and_b32 v14, 31, v1\nv_lshrrev_b32 v15, 5, v1")
        k(f"v_and_b32 v{d}, 3, v9\nv_lshl_add_u32 v{d}, v15, 3, v{d}\nv_lshlrev_b32 v{d}, 6, v{d}\nv_and_b32 v28, 16, v1\nv_lshl_add_u32 v{d}, v28, 1, v{d}")
        k(f"v_and_b32 v28, 1, v1\nv_lshl_add_u32 v{d}, v28, 4, v{d}\nv_and_b32 v28, 2, v1\nv_lshl_add_u32 v{d}, v28, 2, v{d}")
        k(f"v_lshrrev_b32 v29, 4, v1\nv_xor_b32 v28, v9, v29\nv_and_b32 v28, 1, v28\nv_add_u32 v28, -1, v28\nv_and_b32 v{SEL}, {ONES:#x}, v28")
        for r in range(1,4): k(f"v_mov_b32 v{SEL+r}, v{SEL}")
    k(f"s_mov_b32 s10, {2048*512*2:#x}\ns_mov_b32 s11, 0x00020000\ns_mov_b32 s14, {512*1536*2:#x}\ns_mov_b32 s15, 0x00020000")
    k("v_mul_u32_u24 v8, 3072, v9\nv_lshl_add_u32 v8, v10, 4, v8")
    k("s_lshl_b32 s98, s96, 6\nv_add_u32 v16, s98, v8\ns_lshl_b32 s98, s97, 6\nv_add_u32 v17, s98, v8\ns_lshl_b32 s98, s17, 6\nv_add_u32 v8, s98, v8")
    k("v_lshrrev_b32 v11, 3, v1\nv_and_b32 v12, 7, v1\nv_and_b32 v13, 2, v11\nv_lshlrev_b32 v13, 1, v13\nv_xor_b32 v12, v12, v13")
    k("v_lshlrev_b32 v4, 10, v11\nv_lshl_add_u32 v4, v12, 4, v4")
    for i in range(1,4): k(f"v_add_u32 v{4+i}, {8192*i:#x}, v4")
    k("s_lshl_b32 s24, s22, 15")
    k(f"s_mul_i32 s25, s18, {16*3072}")
    k("s_lshl_b32 s20, s16, 1\ns_add_u32 s20, s20, s17\ns_and_b32 s20, s20, 7")
    def issue(c):
        sl = c % 5
        if c: k("s_add_u32 s20, s20, 1\ns_and_b32 s20, s20, 7")
        k(f"s_mul_i32 s21, s20, {64*3072}\ns_add_u32 m0, s26, {sl*SLOT}\ns_add_u32 s21, s25, s21")
        if c == 0:
            k("s_waitcnt lgkmcnt(0)")
            k("s_mov_b32 s12, s34\ns_mov_b32 s13, s35\ns_mov_b32 s8, s32\ns_mov_b32 s9, s33")
        for g in range(3): k(f"buffer_load_dwordx4 v{(8,16,17)[g]}, s[12:15], s21 offen offset:{1024*g} lds", tag=f"c{c}")
        k("s_lshl_b32 s21, s20, 7\ns_add_u32 s21, s24, s21")
        for i in range(4):
            k(f"s_add_u32 m0, s27, {sl*SLOT+i*1040}")
            k(f"buffer_load_dwordx4 v{4+i}, s[8:11], s21 offen lds", tag=f"c{c}")
    LA = OPT.get('k1la', 2)
    SJ = {}
    decode = lambda r: sj_decode(k, SJ, r)
    def sj_issue(r, m0expr):
        S, so, dst, fd, st = SJ[r]
        k(f"v_mul_u32_u24 v12, s{st}, v9\nv_lshl_add_u32 v12, v10, 4, v12")
        k(m0expr(0))
        k(f"buffer_load_dwordx4 v12, s[{S}:{S+3}], s{so} offen lds", tag=f"sj{r}")
        k(f"s_lshl_b32 s30, s{st}, 4\ns_add_u32 s30, s30, s{so}")
        k(m0expr(1024))
        k(f"buffer_load_dwordx4 v12, s[{S}:{S+3}], s30 offen lds", tag=f"sj{r}")
    def sj_rd(r, sbase, T):
        k(f"v_add_u32 v12, s{sbase}, v13")
        for b in range(2):
            for a in range(2): k(f"ds_read_b64_tr_b16 {vr(T+4*b+2*a,2)}, v12 offset:{256*a+8*b}")
    def sj_st(r, T, vo=3):
        S, so, dst, fd, st = SJ[r]
        k(f"s_add_u32 s30, s{dst}, s{fd}")
        if r == 2: k("s_cmp_ge_u32 s99, 96\ns_cselect_b32 s31, 0x80000000, 0\nv_add_u32 v12, s31, v3")
        k(f"buffer_store_dwordx4 {vr(T)}, v{vo}, s[4:7], s{dst} offen{sc1}", tag="st")
        k(f"buffer_store_dwordx4 {vr(T+4)}, v{vo}, s[4:7], s30 offen{sc1}", tag="st")
    def only96(f):
        sk = k.newlabel()
        k(f"s_cmp_ge_u32 s99, 96\ns_cbranch_scc1 {sk}")
        n0 = len(k.vmq)
        f()
        del k.vmq[n0:]
        k.label(sk)
    def clears():
        T = 192
        k(f"s_lshl_b32 s24, s29, 11\ns_add_u32 s24, s24, {OF:#x}")
        for r in range(4): k(f"v_mov_b32 v{T+r}, -1")
        k(f"s_cmp_gt_u32 s29, 287\ns_cselect_b32 s25, 0x80000000, 0\nv_add_u32 v12, s25, v3")
        k(f"s_lshl_b32 s25, s29, 10\ns_add_u32 s25, s25, {GM:#x}")
        return [f"buffer_store_dwordx4 {vr(T)}, v12, s[4:7], s25 offen sc1"] + [f"buffer_store_dwordx4 {vr(T)}, v3, s[4:7], s24 offen offset:{1024*i} sc1" for i in range(2)]
    assert XT == GM + 0x40000
    def sj012():
        sj_issue(2, lambda o: f"s_add_u32 m0, s69, {o}")
        sj_issue(0, lambda o: f"s_add_u32 m0, s67, {o}"); sj_issue(1, lambda o: f"s_add_u32 m0, s68, {o}")
    SJB = OPT.get('sjb', 3)
    sch = str(OPT.get('sch', '01.23.4.5.6.7' if OPT.get('sjk2') else '01.23.4s..5.67')).split('.')
    sch += ['']*(9-len(sch))
    for j in sch[0]: issue(int(j))
    if OPT.get('sjk2'): OPT['nosj'] = 1
    for r in range(3):
        if not OPT.get('sjk2'): decode(r)
    if not OPT.get('sjk2'): k("s_cmp_ge_u32 s99, 96\ns_cselect_b32 s58, 0, s58\ns_cselect_b32 s69, s67, s69")
    if OPT.get('sjfake'):
        for r in range(3): k(f"s_mov_b32 s{48+4*r}, s34\ns_mov_b32 s{49+4*r}, s35")
    sched = {c: sch[c+1] for c in range(8)}
    for c in range(8):
        for j in sched[c]: assert j == 's' or c < int(j) <= c+4
    SJA = int("".join(sch).split('s')[0][-1])
    k("v_lshrrev_b32 v13, 4, v1\nv_lshlrev_b32 v13, 3, v13\nv_and_b32 v14, 3, v9\nv_add_u32 v13, v13, v14\nv_lshlrev_b32 v13, 6, v13\nv_lshl_add_u32 v13, v10, 4, v13")
    wtr(20)
    k(f"v_add_u32 v20, s26, v20\nv_add_u32 v21, {2*SLOT:#x}, v20\nv_add_u32 v22, {4*SLOT:#x}, v20")
    k(f"s_lshl_b32 s30, s18, 2\ns_add_u32 s30, s30, {CSX}\nv_lshlrev_b32 v28, 4, v14\nv_add_u32 v28, s30, v28")
    last = max(c for c in sched if sched[c])
    for c in range(8):
        k.waitvm(f"c{c}")
        k("s_barrier")
        sl = c % 5; st = sl//2; imm = (sl-2*st)*SLOT
        for g in range(3):
            for a in range(2): k(f"ds_read_b64_tr_b16 {vr(32+4*g+2*a,2)}, v{20+st} offset:{imm+g*1024+a*256}")
        for j in sched[c]:
            if j == 's':
                if not OPT.get('nosj'): sj012()
            else: issue(int(j))
        if c == max(SJA+1, last) and not OPT.get('nosj'):
            sj_rd(0, 67, 44); sj_rd(1, 68, 52); sj_rd(2, 69, 68)
        k("s_waitcnt lgkmcnt(0)")
        for b in range(3): k(f"v_mfma_f32_16x16x32_bf16 {vr(CP+4*b)}, {vr(SEL)}, {vr(32+4*b)}, {0 if c == 0 else vr(CP+4*b)}")
        if c == max(SJA+1, last) and OPT.get('nosj', 0) != 1:
            sj_st(0, 44); sj_st(1, 52); sj_st(2, 68, 12)
    for b in range(3): k(f"ds_write_b32 v28, v{CP+4*b} offset:{512*b}")
    k("s_waitcnt lgkmcnt(0)\ns_barrier")
    if OPT.get('hop', 1) & 2: hopentry(k, "s18", "main_kernel", 4)
    k("s_endpgm")
    k.label("L_k1_comp")
    k.vmq = []; k.lgq = []
    if OPT['pref']:
        k("s_lshl_b32 s28, s19, 2\ns_add_u32 s28, s28, s18")
        code_prefetch(k, "qkv_kernel", "L_code_end", 28, 196)
    if OPT.get('hop', 1) & 4: hopentry(k, "s18", k.name, 4, 1)
    XA0=16; XA1=19; WA=22
    wtr(WA)
    k(f"v_lshrrev_b32 v25, 3, v14\nv_mul_u32_u24 v25, 1040, v25\nv_and_b32 v26, 7, v14\nv_lshl_add_u32 v25, v26, 7, v25\nv_lshl_add_u32 v25, v15, 4, v25\nv_add_u32 v25, s27, v25")
    k(f"v_and_b32 v26, 2, v14\nv_lshlrev_b32 v26, 5, v26\nv_add_u32 v{XA0}, v25, v26\nv_xor_b32 v26, 64, v26\nv_add_u32 v{XA1}, v25, v26")
    for b in (XA0, XA1, WA):
        k(f"v_add_u32 v{b+1}, {2*SLOT:#x}, v{b}\nv_add_u32 v{b+2}, {4*SLOT:#x}, v{b}")
    ACC=32; CSA=80; XB=[116,120,124]; WB=[128,140,152]; SUM=164; SQ=180; CV=188
    k(f"v_lshlrev_b32 v29, 4, v14\nv_add_u32 v29, {CSX}, v29")
    k(f"s_lshl_b32 s30, s18, 8\ns_add_u32 s30, s30, {MUA}")
    k("v_lshlrev_b32 v30, 2, v14\nv_add_u32 v30, s30, v30\nv_lshlrev_b32 v31, 4, v15\nv_add_u32 v31, s30, v31")
    k(f"s_lshl_b32 s31, s17, 17\ns_lshl_b32 s30, s22, 10\ns_add_u32 s31, s31, s30\ns_add_u32 s65, s31, 0x10000")
    k(f"s_lshl_b32 s30, s30, 1\ns_add_u32 s30, s30, {KV:#x}\ns_lshl_b32 s66, s96, 18\ns_add_u32 s66, s66, s30\ns_add_u32 s67, s66, 0x20000\ns_lshl_b32 s68, s97, 18\ns_add_u32 s68, s68, s30")
    k("v_lshrrev_b32 v26, 4, v14\nv_lshlrev_b32 v26, 17, v26\nv_and_b32 v27, 15, v14\nv_lshl_add_u32 v26, v27, 4, v26\nv_lshl_add_u32 v26, v15, 8, v26")
    k("v_cmp_eq_u32 s[40:41], 1, v10\nv_cmp_eq_u32 s[42:43], 2, v10\nv_cmp_eq_u32 s[44:45], 3, v10" if 0 else "")
    def reads(n):
        c, ks = n//4, n%4; sl = c%5; st = sl//2; imm = (sl-2*st)*SLOT
        L = [f"ds_read_b128 {vr(XB[n%3])}, v{(XA0 if ks<2 else XA1)+st} offset:{imm+32*(ks&1)}"]
        for g in range(3):
            for a in range(2): L.append(f"ds_read_b64_tr_b16 {vr(WB[n%3]+4*g+2*a,2)}, v{WA+st} offset:{imm+ks*3072+g*1024+a*256}")
        return [(x, f"r{n}") for x in L]
    XG = {}
    def put(n, g, L): XG.setdefault((n, g), []).extend(L)
    for i, x in enumerate(clears()):
        if not OPT.get('noclr') or i == 0: put(OPT.get('clat', 0)+i, 2, [x])
    if OPT.get('k1u'):
        n = OPT['k1u']
        k(f"s_lshr_b32 s26, s29, 7\ns_mul_i32 s26, s26, {SETS:#x}\ns_and_b32 s27, s29, 127\ns_mul_i32 s27, s27, {n*1024}\ns_add_u32 s26, s26, s27\ns_add_u32 s26, s26, {SETB+SETS-n*131072:#x}")
        k("v_add_u32 v13, 0x1000, v3\nv_add_u32 v11, 0x2000, v3")
        for i in range(n): put(OPT.get('k1ut', 3)+OPT.get('k1us', 1)*i, 2, [f"buffer_store_dwordx4 v[192:195], v{(3,13,11)[i//4]}, s[4:7], s26 offen offset:{1024*(i%4)} sc1"])
    put(29, 0, ["s_barrier"] + [(f"ds_read_b128 {vr(CP+4*b)}, v29 offset:{512*b}", "cx") for b in range(3)])
    put(30, 0, [lambda: k.waitlg("cx")] + [f"v_add_f32 v{CP+4*b+r}, v{CP+4*b+r}, v{CP+4*b+r+1}" for b in range(2) for r in (0, 2)])
    put(30, 1, [f"v_add_f32 v{CP+4*b}, v{CP+4*b}, v{CP+4*b+2}" for b in range(2)] + [f"v_add_f32 v{CP+8+r}, v{CP+8+r}, v{CP+8+r+1}" for r in (0, 2)])
    put(30, 2, [f"ds_write_b32 v30, v{CP+4*b} offset:{128*b}" for b in range(2)] + [f"v_add_f32 v{CV}, v{CP+8}, v{CP+10}"])
    put(31, 0, [(f"ds_read_b128 {vr(CSA+16+4*a)}, v31 offset:{128+32*a}", "cb") for a in range(4)])
    put(31, 1, [(f"ds_read_b128 {vr(CSA+4*a)}, v31 offset:{32*a}", "ca") for a in range(4)])
    k("s_waitcnt lgkmcnt(0)")
    k("v_cmp_eq_u32 s[40:41], 1, v10\nv_cmp_eq_u32 s[42:43], 2, v10\nv_cmp_eq_u32 s[44:45], 3, v10")
    stamp(k,"m_pre")
    k("s_barrier")
    stamp(k,"m_c0")
    for x in reads(0) + reads(1): em(x)
    for n in range(32):
        c = n//4; x = XB[n%3]; w = WB[n%3]
        z = lambda a, q=16: 0 if n == 0 else vr(a, q)
        S3 = [f"v_mfma_f32_16x16x32_bf16 {vr(SUM)}, {vr(SEL)}, {vr(x)}, {z(SUM,4)}",
              f"v_mfma_f32_4x4x4_16b_bf16 {vr(SQ)}, {vr(x,2)}, {vr(x,2)}, {z(SQ,4)}",
              f"v_mfma_f32_4x4x4_16b_bf16 {vr(SQ+4)}, {vr(x+2,2)}, {vr(x+2,2)}, {z(SQ+4,4)}"]
        M = [f"v_mfma_f32_32x32x16_bf16 {vr(ACC+16,16)}, {vr(w+4)}, {vr(x)}, {z(ACC+16)}",
             f"v_mfma_f32_32x32x16_bf16 {vr(ACC,16)}, {vr(w)}, {vr(x)}, {z(ACC)}",
             f"v_mfma_f32_32x32x16_bf16 {vr(ACC+32,16)}, {vr(x)}, {vr(w+8)}, {z(ACC+32)}"]
        G = {i: [] for i in range(len(M))}
        if n % 4 == 2 and n < 28:
            G[0] += (["s_waitcnt lgkmcnt(0)"] if c <= 3 else []) + ["s_barrier", lambda c=c: stamp(k, f"{'a' if c<3 else 'b'}_c{c+1}")]
        R = reads(n+2) if n < 30 else []
        G[0] += R[0:3]; G[1] += R[3:5]; G[2] += R[5:7]
        for g in range(3): G[g] += XG.get((n, g), [])
        k.waitlg(f"r{n}")
        for y in S3: k(y)
        for i, m in enumerate(M):
            k(m)
            for y in G[i]: em(y)
            if n == 31 and i == 1:
                MU=16; RS=18; QS=20
                for r in range(4): k(f"v_add_f32 v{SQ+r}, v{SQ+r}, v{SQ+4+r}")
                for r in range(1,4): k(f"v_cndmask_b32 v{SQ}, v{SQ}, v{SQ+r}, s[{38+2*r}:{39+2*r}]")
                xhalf_add(k, SQ, 25)
    stamp(k,"m_loop")
    pr = lambda b: vr(b, 2)
    stats_from_sums(k, SUM, SQ, MU, RS, 25)
    k.waitlg("ca")
    k(f"ds_write_b32 v30, v{MU}\nds_write_b32 v30, v{RS} offset:128")
    k(f"v_mul_f32 v{QS}, {fhex(0.25*LOG2E)}, v{RS}")
    TM=128
    for a in range(4): k(f"ds_read_b128 {vr(TM+4*a)}, v31 offset:{32*a}\nds_read_b128 {vr(TM+16+4*a)}, v31 offset:{128+32*a}")
    P=164
    def qk(b):
        for hf in range(2):
            R = range(8*hf, 8*hf+8, 2)
            for r in R: k(f"v_pk_fma_f32 {pr(ACC+16*b+r)}, {pr(MU)}, {pr(CSA+16*b+r)}, {pr(ACC+16*b+r)} op_sel_hi:[0,1,1] neg_lo:[1,0,0] neg_hi:[1,0,0]")
            for r in R: k(f"v_pk_mul_f32 {pr(ACC+16*b+r)}, {pr(QS if b==0 else RS)}, {pr(ACC+16*b+r)} op_sel_hi:[0,1]")
            for r in R: k(f"v_cvt_pk_bf16_f32 v{P+8*b+r//2}, v{ACC+16*b+r}, v{ACC+16*b+r+1}")
            k(f"buffer_store_dwordx4 {vr(P+8*b+4*hf)}, v3, s[4:7], s{[[31,65],[66,67]][b][hf]} offen{sc1}")
    qk(1)
    k("s_waitcnt lgkmcnt(0)")
    for hf in range(2):
        R = range(8*hf, 8*hf+8, 2)
        for r in R: k(f"v_pk_fma_f32 {pr(ACC+32+r)}, {pr(TM+r)}, {pr(CV)}, {pr(ACC+32+r)} op_sel_hi:[1,0,1] neg_lo:[1,0,0] neg_hi:[1,0,0]")
        for r in R: k(f"v_pk_mul_f32 {pr(ACC+32+r)}, {pr(TM+16+r)}, {pr(ACC+32+r)}")
        for r in R: k(f"v_cvt_pk_bf16_f32 v{P+16+r//2}, v{ACC+32+r}, v{ACC+32+r+1}")
        k(f"buffer_store_dwordx4 {vr(P+16+4*hf)}, v26, s[4:7], s68 offen offset:{1024+512*hf}{sc1}")
    qk(0)
    stamp(k,"m_epi")
    stamp_out(k, 0, 32, 18)
    k.label(done)
    k("s_endpgm")
    hopend(k, 4, "L_k1_end")
    k.label("L_k1_end")
    return k
```

```python
from gen3 import *

WA=0; WB=0x10000; RING=0x20000; RP=2064; NR=13; MISC=0x26900; CSL=MISC; STL=MISC+256
UT=43*1024
BOUND=20000
OOB=0x80000000
def M16(d, a, b, c): return f"v_mfma_f32_16x16x32_bf16 {d}, {a}, {b}, {c}"
def M32(d, a, b, c): return f"v_mfma_f32_32x32x16_bf16 {d}, {a}, {b}, {c}"
def w3reg(t, s):
    n = 16*t+s
    return vr(144+4*n) if n < 28 else ar(176+4*(n-28))
def w4reg(ks, nb):
    b = 64+16*ks if ks < 7 else 16*(ks-7)
    return ar(b+4*nb)
pr = lambda b: vr(b,2)

class SA:
    def __init__(s, lo, hi): s.n = lo; s.hi = hi; s.m = {}
    def __call__(s, name, align=1, cnt=1):
        if name in s.m: return s.m[name]
        while s.n % align: s.n += 1
        r = s.n; s.n += cnt
        assert s.n <= s.hi, "out of sgprs"
        s.m[name] = f"s{r}"; return s.m[name]

def gen_k2():
    k = Kern("main_kernel", vgpr=512, sgpr=102, accum=256); k.sb = 80; k.stn = []; k.smax = 10
    k.label("L_code_begin")
    done = "L_k2_done"
    S_ = SA(19, 80)
    X, HD, W, T = "s16", "s17", "s18", S_("T")
    S_("RET", 2, 2); T2 = S_("T2")
    def em(x):
        if callable(x): x()
        elif isinstance(x, tuple): k(x[0], tag=x[1])
        else: k(x)
    k(f"s_cmp_ge_u32 s2, 256\ns_cbranch_scc1 {done}")
    stamp(k,"m_start")
    k("s_load_dwordx2 s[4:5], s[0:1], 80\ns_load_dwordx2 s[8:9], s[0:1], 0\ns_load_dwordx2 s[12:13], s[0:1], 64")
    SJK = OPT.get('sjk2', 0)
    if SJK: k("s_load_dwordx16 s[32:47], s[0:1], 0")
    if OPT.get('dbo'): k("s_load_dwordx2 s[100:101], s[0:1], 72")
    k(f"s_mov_b32 s6, {WS_SZ:#x}\ns_mov_b32 s7, 0x00020000\ns_mov_b32 s10, 0x200000\ns_mov_b32 s11, 0x00020000\ns_mov_b32 s14, 0x200000\ns_mov_b32 s15, 0x00020000")
    k("v_lshrrev_b32 v2, 6, v0\nv_and_b32 v1, 63, v0")
    k("s_and_b32 s16, s2, 7\ns_lshr_b32 s17, s2, 3")
    k("v_readfirstlane_b32 s18, v2")
    k("v_lshlrev_b32 v3, 4, v1")
    for q in range(1,4): k(f"v_add_u32 v{3+q}, {4096*q:#x}, v3")
    sKV, sRW = S_("KV"), S_("RW")
    k(f"s_lshl_b32 {T2}, {HD}, 16\ns_lshl_b32 {T}, {X}, 13\ns_add_u32 {T2}, {T2}, {T}\ns_lshl_b32 {T}, {W}, 11\ns_add_u32 {T2}, {T2}, {T}")
    k(f"s_lshl_b32 {sKV}, {HD}, 17\ns_add_u32 {sKV}, {sKV}, {T}\ns_add_u32 {sKV}, {sKV}, {KV:#x}")
    k(f"s_mul_i32 {sRW}, {W}, {RP}\ns_add_u32 {sRW}, {sRW}, {RING:#x}")
    QA=16; QB=20; C=24; S=[40,56]; P=[72,80]; O=[88,104]; KR=120; V0=124; V1=128
    KA=7; VA0=8; VA1=9; XV=132; XTV=133
    k(f"s_mov_b32 m0, {sRW}")
    k("s_waitcnt lgkmcnt(0)")
    stamp(k,"k_karg")
    k(f"buffer_load_dwordx4 v3, s[4:7], {sKV} offen lds", tag="g0")
    k(f"buffer_load_dwordx4 {vr(QA)}, v3, s[4:7], {T2} offen", tag="g0")
    k(f"buffer_load_dwordx4 {vr(QB)}, v3, s[4:7], {T2} offen offset:1024", tag="g0")
    k(f"buffer_load_dwordx4 v3, s[4:7], {sKV} offen offset:1024 lds", tag="g0")
    def kvm0(n):
        a = 4*n % NR
        return f"s_add_u32 m0, {sRW}, {a*RP}" if a+3 < NR else f"s_mov_b32 m0, {S_('WR%d'%a)}"
    kvso = f"s_add_u32 {sKV}, {sKV}, 16384"
    def kvld(n): return [(f"buffer_load_dwordx4 v{5 if n & 1 else 3}, s[4:7], {sKV} offen offset:{o} lds", f"g{n}") for o in (0, 1024)]
    for x in [kvm0(1)] + kvld(1) + [kvm0(2), kvso] + kvld(2): em(x)
    SJT = 200; SJD = 224; SJR = 230; SJF = 231
    if SJK:
        SJ = {}
        k(f"s_lshl_b32 s29, {X}, 7\ns_lshl_b32 s28, {HD}, 2\ns_add_u32 s29, s29, s28\ns_add_u32 s29, s29, {W}\ns_lshl_b32 s99, {W}, 8\ns_add_u32 s99, s99, s2\ns_lshl_b32 s28, {W}, 14")
        k(f"v_lshrrev_b32 v{SJT}, 2, v1\nv_and_b32 v{SJT+1}, 3, v1\nv_lshlrev_b32 v{SJT+1}, 4, v{SJT+1}")
        for r in (0, 1, 2):
            sj_decode(k, SJ, r)
            S0, so, dst, fd, st = SJ[r]
            if r == 2: k(f"s_cmp_ge_u32 s99, 96\ns_cselect_b32 s{S0+2}, 0, s{S0+2}\ns_cselect_b32 s{dst}, {OOB:#x}, s{dst}")
            k(f"v_mad_u32_u24 v{SJT+2}, s{st}, v{SJT}, v{SJT+1}")
            k(f"s_add_u32 m0, s28, {WA+2048*r}\ns_lshl_b32 s30, s{st}, 4\ns_add_u32 s30, s30, s{so}")
            k(f"buffer_load_dwordx4 v{SJT+2}, s[{S0}:{S0+3}], s{so} offen lds", tag="sj")
            k(f"s_add_u32 m0, s28, {WA+2048*r+1024}")
            k(f"v_add_u32 v{SJD+2*r}, s{dst}, v3")
            k(f"buffer_load_dwordx4 v{SJT+2}, s[{S0}:{S0+3}], s30 offen lds", tag="sj")
            k(f"v_add_u32 v{SJD+2*r+1}, s{fd}, v{SJD+2*r}")
        k(f"v_lshrrev_b32 v{SJR}, 4, v1\nv_lshlrev_b32 v{SJR}, 3, v{SJR}\nv_and_b32 v{SJT}, 3, v{SJT}\nv_add_u32 v{SJR}, v{SJR}, v{SJT}\nv_lshl_add_u32 v{SJR}, v{SJR}, 6, v{SJT+1}\nv_add_u32 v{SJR}, s28, v{SJR}")
    MG = "s3"; J, MTB, MT, JW, W14, T14 = [S_(n) for n in "J MTB MT JW W14 T14".split()]
    k(f"s_lshr_b32 {MG}, {HD}, 3\ns_and_b32 {J}, {HD}, 7")
    k(f"s_lshl_b32 {MTB}, {X}, 4\ns_lshl_b32 {T}, {MG}, 2\ns_add_u32 {MTB}, {MTB}, {T}\ns_add_u32 {MT}, {MTB}, {W}")
    k(f"s_lshl_b32 {JW}, {J}, 2\ns_add_u32 {JW}, {JW}, {W}\ns_lshl_b32 {W14}, {W}, 14\ns_lshl_b32 {T14}, {MT}, 14")
    sONE, sM2, sCNT, sXC = S_("ONE"), S_("M2"), S_("CNT"), S_("XC")
    RET = S_("RET", 2, 2); RETP = f"s[{RET[1:]}:{int(RET[1:])+1}]"
    k(f"s_mov_b32 {sONE}, {ONES:#x}\ns_mov_b32 {sM2}, -2\ns_mov_b32 {sCNT}, 0")
    k.cnt = sCNT
    k(f"s_getreg_b32 {sXC}, hwreg(HW_REG_XCC_ID, 0, 4)")
    for r in range(4): k(f"v_accvgpr_write_b32 a{168+r}, -1")
    k("v_and_b32 v10, 31, v1\nv_lshrrev_b32 v11, 5, v1\nv_and_b32 v12, 15, v1\nv_lshrrev_b32 v13, 4, v1")
    sXT = S_("XT")
    k(f"s_lshl_b32 {sXT}, {X}, 12\ns_add_u32 {sXT}, {sXT}, {XT:#x}\ns_lshl_b32 {T}, {HD}, 7\ns_add_u32 {T}, {T}, {sXT}")
    k(f"v_sub_u32 v14, 0, v0\nv_and_b32 v14, {OOB:#x}, v14\nv_mov_b32 v15, {sXC}")
    if SJK:
        k(f"v_add_u32 v{SJF}, {T}, v14\nv_mov_b32 v{SJF+1}, {sXC}\ns_lshl_b32 {T}, {W}, 13\ns_add_u32 {T}, {T}, {XT:#x}\nv_lshlrev_b32 v{SJF+2}, 7, v1\nv_add_u32 v{SJF+2}, {T}, v{SJF+2}")
    else: k(f"buffer_store_dword v15, v14, s[4:7], {T} offen sc1", tag="clr")
    NCL = 12-OPT.get('k1u', 0)
    sCL, sSet, sXT_, sW2a, sW2b = S_("CL"), S_("Set"), S_("XTl"), S_("W2a"), S_("W2b")
    k(f"s_mul_i32 {sSet}, {X}, {SETS:#x}\ns_add_u32 {sSet}, {sSet}, {SETB:#x}")
    k(f"s_lshl_b32 {T}, {HD}, 2\ns_add_u32 {T}, {T}, {W}\ns_mul_i32 {T}, {T}, {1024*NCL}\ns_add_u32 {sCL}, {sSet}, {T}")
    CL = [f"buffer_store_dwordx4 a[168:171], v{3+i//4}, s[4:7], {sCL} offen offset:{1024*(i%4)}" for i in range(NCL)]
    atr = []
    def clpair(i):
        def f():
            a = k.newlabel("Z"); c = k.newlabel("C")
            k(f"s_cbranch_scc1 {a}")
            for x in CL[i:i+2]: k(x + ('', ' sc0', ' nt', ' sc0 nt')[OPT.get('clm', 0)], tag="clr")
            k.label(c)
            atr.append([f"{a}:"] + [x + " sc1" for x in CL[i:i+2]] + [f"s_branch {c}"])
        return f
    k(f"v_lshlrev_b32 v{XV}, 10, v12\nv_lshl_add_u32 v{XV}, v13, 4, v{XV}")
    k(f"s_lshl_b32 {sXT_}, {J}, 7\ns_add_u32 {sXT_}, {sXT_}, {T14}")
    EL = [(f"buffer_load_dwordx4 a[160:163], v{XV}, s[8:11], {sXT_} offen", "w"), (f"buffer_load_dwordx4 a[164:167], v{XV}, s[8:11], {sXT_} offen offset:64", "w")]
    sSh, sSx = S_("Sh"), S_("Sx")
    k(f"s_and_b32 {T}, {MT}, 15\ns_lshl_b32 {T}, {T}, 10\ns_add_u32 {sSh}, {sSet}, {T}\ns_add_u32 {sSh}, {sSh}, {SO:#x}\ns_add_u32 {sSx}, {sSh}, 0x4000")
    sWO, sW1, sSA, sSB = S_("WO"), S_("W1"), RET, S_("SB")
    k(f"s_lshl_b32 {T2}, {J}, 16\ns_add_u32 {sWO}, {T2}, {W14}\ns_add_u32 {sW1}, {sWO}, {W1F:#x}\ns_add_u32 {sWO}, {sWO}, {WOF:#x}")
    k(f"s_mul_i32 {sSA}, {W}, 6144\ns_mul_i32 {sSB}, {W}, 10240\ns_add_u32 {sSB}, {sSB}, 24576\ns_add_u32 {T2}, {T2}, {W2F:#x}")
    def ldr(dst, so, i, vo=None): return (f"buffer_load_dwordx4 {dst}, {vo or 'v%d' % (3+i//4)}, s[4:7], {so} offen offset:{1024*(i%4)}", "w")
    k(f"s_add_u32 {sW2a}, {T2}, {sSA}\ns_add_u32 {sW2b}, {T2}, {sSB}")
    EL += [ldr(ar(4*i), sW2a, i) for i in range(6)] + [ldr(ar(24+4*i), sW2b, i) for i in range(10)]
    if OPT.get('xlate'): EL = EL[2:] + EL[:2]
    ne = OPT.get('early', 6)
    for x in EL[:ne]: em(x)
    EL = EL[ne:]
    for a in (10, 11, 12):
        r = S_(f"WR{a}")
        k(f"s_cmp_ge_u32 {W}, {NR-a}\ns_cselect_b32 {T}, {NR*RP}, 0\ns_sub_u32 {r}, {sRW}, {T}\ns_add_u32 {r}, {r}, {a*RP}")
    s3 = [S_("3a"), S_("3b"), S_("3c")]; s4 = [S_("4a"), S_("4b"), S_("4c")]
    k(f"s_lshl_b32 {s3[0]}, {JW}, 15\ns_add_u32 {s3[0]}, {s3[0]}, {W3F:#x}\ns_add_u32 {s3[1]}, {s3[0]}, 16384")
    k(f"s_add_u32 {s3[2]}, {JW}, 64\ns_min_u32 {s3[2]}, {s3[2]}, 85\ns_lshl_b32 {s3[2]}, {s3[2]}, 14\ns_add_u32 {s3[2]}, {s3[2]}, {W3F:#x}")
    k(f"s_mul_i32 {s4[0]}, {J}, 43\ns_mul_i32 {T}, {W}, 11\ns_add_u32 {s4[0]}, {s4[0]}, {T}\ns_lshl_b32 {s4[0]}, {s4[0]}, 12\ns_add_u32 {s4[0]}, {s4[0]}, {W4F:#x}")
    k(f"s_add_u32 {s4[1]}, {s4[0]}, 16384\ns_add_u32 {s4[2]}, {s4[0]}, 32768")
    sOs = [S_("Os0"), S_("Os1")]
    k(f"s_lshl_b32 {sOs[0]}, {X}, 18\ns_lshl_b32 {T}, {W}, 16\ns_add_u32 {sOs[0]}, {sOs[0]}, {T}\ns_lshl_b32 {T}, {HD}, 9\ns_add_u32 {sOs[0]}, {sOs[0]}, {T}\ns_add_u32 {sOs[0]}, {sOs[0]}, {OF:#x}\ns_add_u32 {sOs[1]}, {sOs[0]}, 0x8000")
    sOl, sHl, sHs, sGl, sGs, sXl, sXs, sDP, sDN, sMB, sSV = [S_(n) for n in "Ol Hl Hs Gl Gs Xl Xs DP DN MB SV".split()]
    k(f"s_add_u32 {sOl}, {T14}, {OF:#x}\ns_and_b32 {T14}, {T14}, 0x3ffff\ns_add_u32 {T14}, {T14}, {sSet}")
    GA_L = OPT.get('gal', 1)
    k(f"s_add_u32 {sHl}, {T14}, {HO:#x}\ns_add_u32 {sXl}, {T14}, {XO:#x}\ns_sub_u32 {sGl}, {T14}, {(0 if GA_L else 32)+16384-GO:#x}")
    k(f"s_lshl_b32 {T}, {J}, 11\ns_add_u32 {sHs}, {sHl}, {T}\ns_add_u32 {sXs}, {sXl}, {T}\ns_sub_u32 {sGs}, {sHs}, {HO-GO+(16384 if GA_L else 0):#x}")
    sOt = MTB2 = S_("Ot")
    k(f"s_add_u32 {sOt}, {sOl}, {T}\nv_lshlrev_b32 v{XV+2}, 5, v1")
    q = 0 if GA_L else 256
    k(f"s_lshl_b32 {T2}, {X}, 15\ns_add_u32 {sMB}, {T2}, {T}\ns_add_u32 {sMB}, {sMB}, {GM:#x}")
    k(f"s_sub_u32 {T2}, {T2}, {T14}\ns_add_u32 {T2}, {T2}, {GM-GO+16384:#x}")
    k(f"s_add_u32 {sDP}, {T2}, {(q-16384) & 0xffffffff:#x}\ns_add_u32 {sDN}, {T2}, {32768-q}")
    k(f"s_cmp_eq_u32 {X}, 0\ns_cselect_b32 {sDP}, {OOB:#x}, {sDP}\ns_cmp_eq_u32 {X}, 7\ns_cselect_b32 {sDN}, {OOB:#x}, {sDN}")
    k(f"s_and_b32 {T}, {MT}, 15\ns_cmp_eq_u32 {T}, 0\ns_cselect_b32 {sDP}, {sDP}, {16384 if GA_L else 256}\ns_cmp_eq_u32 {T}, 15\ns_cselect_b32 {sDN}, {sDN}, {16384 if GA_L else 32768-256}")
    k(f"s_cselect_b32 {T2}, 16384, 0\ns_add_u32 {sMB}, {sMB}, {T2}")
    if GA_L:
        sNS, sOT = S_("NS"), S_("OT")
        k(f"s_lshr_b32 {sNS}, {J}, 2\ns_add_u32 {sNS}, {sNS}, 1\ns_sub_u32 {T2}, 0, {sNS}\ns_mov_b32 {sOT}, 256")
        k(f"s_bitcmp1_b32 {J}, 1\ns_cselect_b32 {sNS}, {T2}, {sNS}\ns_cselect_b32 {sOT}, {sOT}, {32768-256}\ns_cselect_b32 {T2}, {sOT}, {-256 & 0xffffffff:#x}")
        k(f"s_add_u32 {sMB}, {sMB}, {T2}\ns_lshl_b32 {T2}, {sNS}, 4\ns_add_u32 {sMB}, {sMB}, {T2}\ns_add_u32 {sGs}, {sGs}, {T2}")
    k(f"s_bitcmp1_b32 {J}, 1\ns_cselect_b32 {T2}, 0, 15\ns_cmp_eq_u32 {T}, {T2}\ns_cselect_b32 {sMB}, {sMB}, 0")
    if GA_L: k(f"s_cselect_b32 {sOT}, {OOB:#x}, {sOT}")
    k(f"s_lshr_b32 {sSV}, {J}, 1\ns_lshl_b32 {sSV}, {sSV}, 8\ns_and_b32 {T}, {J}, 1\ns_lshl_b32 {T}, {T}, 3\ns_add_u32 {sSV}, {sSV}, {T}")
    sTid = [W] + [S_(f"Tid{q}") for q in range(1,4)]
    sUs = [S_(f"Us{q}") for q in range(4)]; sUl = [sSet, T14] + [S_(f"Ul{q}") for q in range(2,4)]; sHF, sOut = MG, [JW, MT]
    for q in range(1,4): k(f"s_cmp_le_u32 {W}, {q-1}\ns_cselect_b32 {sTid[q]}, {q}, {q-1}")
    k(f"s_mul_i32 {T2}, {MG}, {4*UT}\ns_add_u32 {sSet}, {sSet}, {T2}\ns_add_u32 {sSet}, {sSet}, {UO:#x}")
    k(f"s_lshl_b32 {T}, {JW}, 10\ns_add_u32 {T}, {T}, {sSet}")
    for q in range(4): k(f"s_mul_i32 {sUs[q]}, {sTid[q]}, {UT}\ns_add_u32 {sUs[q]}, {sUs[q]}, {T}")
    k(f"s_lshr_b32 {T}, {JW}, 1\ns_add_u32 {T}, {T}, 32\ns_sub_u32 {T}, {T}, {JW}\ns_lshl_b32 {T}, {T}, 10\ns_and_b32 {T2}, {JW}, 1\ns_lshl_b32 {T2}, {T2}, 3\ns_add_u32 {T}, {T}, {T2}")
    k(f"s_cmp_lt_u32 {JW}, 22\ns_cselect_b32 {sHF}, {T}, {OOB:#x}")
    k(f"s_mul_i32 {T}, {W}, {11*1024}\ns_add_u32 {sUl[0]}, {sSet}, {T}")
    for t in range(1,4): k(f"s_add_u32 {sUl[t]}, {sUl[0]}, {t*UT}")
    k(f"s_lshr_b32 {T}, {W}, 1\ns_add_u32 {T}, {T}, {MTB}\ns_lshl_b32 {sOut[0]}, {T}, 14\ns_lshl_b32 {T}, {J}, 7\ns_add_u32 {sOut[0]}, {sOut[0]}, {T}")
    k(f"s_and_b32 {T}, {W}, 1\ns_lshl_b32 {T}, {T}, 6\ns_add_u32 {sOut[0]}, {sOut[0]}, {T}\ns_add_u32 {sOut[1]}, {sOut[0]}, 0x8000")
    k(f"v_add_u32 v{KA}, {RING:#x}, v3")
    k(f"v_lshlrev_b32 v14, 4, v12\nv_lshl_add_u32 v14, v11, 8, v14")
    k(f"v_add_u32 v{VA0}, {RING+1024:#x}, v14\nv_add_u32 v{VA1}, {RING+1536:#x}, v14\nv_mov_b32 v15, {RING+2048:#x}")
    k(f"v_cmp_gt_u32 vcc, 16, v10\nv_cndmask_b32 v{VA0}, v15, v{VA0}, vcc\nv_cndmask_b32 v{VA1}, v15, v{VA1}, vcc")
    k("v_lshrrev_b32 v2, 4, v10\nv_lshl_add_u32 v2, v2, 14, v14")
    k(f"v_lshlrev_b32 v{XTV}, 7, v10")
    k(f"v_min_u32 v15, {NR-1}, v1\nv_mul_u32_u24 v15, {RP}, v15\nv_add_u32 v15, {RING+2048:#x}, v15")
    for r in range(4): k(f"v_mov_b32 v{V0+r}, {sONE}")
    k(f"ds_write_b128 v15, {vr(V0)}")
    for r in range(4): k(f"v_accvgpr_write_b32 a{172+r}, v{V0}")
    for r in range(32): k(f"v_mov_b32 v{O[0]+r}, 0")
    for r in range(4,8): k(f"v_mov_b32 v{P[1]+r}, 0")
    for r in range(4): k(f"v_mov_b32 v{V1+r}, 0")
    k(f"s_lshl_b32 {T}, {W}, 10\ns_add_u32 {T}, {T}, {WB:#x}\nv_add_u32 v10, {T}, v3")
    k(f"s_lshl_b32 {T}, {W}, 6\ns_add_u32 {T}, {T}, {CSL:#x}\nv_lshlrev_b32 v11, 4, v13\nv_add_u32 v11, {T}, v11")
    k(f"v_add_u32 v15, {sSA}, v{KA}")
    if OPT.get('cpf'):
        pc = k.newlabel()
        k(f"s_getpc_b64 {RETP}"); k.label(pc)
        k(f"s_add_u32 {RET}, {RET}, L_attn_fin-{pc}\ns_addc_u32 s{int(RET[1:])+1}, s{int(RET[1:])+1}, 0\ns_lshl_b32 {T}, {W}, 13")
        if OPT.get('cpf2', 1): k(f"s_lshl_b32 {T}, {HD}, 2\ns_add_u32 {T}, {T}, {W}\ns_lshl_b32 {T}, {T}, 8")
        k(f"v_lshlrev_b32 v136, {'6, v13' if OPT.get('cpf2', 1) else '7, v1'}\nv_add_u32 v136, {T}, v136\nv_min_u32 v136, L_code_end-L_attn_fin-4, v136\nv_mov_b32 v137, s{int(RET[1:])+1}")
        k(f"v_add_co_u32 v136, vcc, {RET}, v136\nv_addc_co_u32 v137, vcc, 0, v137, vcc")
    DM = []
    for so, lb in ((sWO, WA), (sW1, WB)):
        for q in range(4): DM.append((f"s_add_u32 m0, {W14}, {lb+4096*q:#x}", [(f"buffer_load_dwordx4 v{3+q}, s[4:7], {so} offen offset:{1024*i} lds", "w") for i in range(4)]))
    RL = [ldr(w3reg(t, s), s3[t], s) for t in range(3) for s in range(16)] + [ldr(w4reg(i//4, i%4), s4[i//16], i%16) for i in range(24)]
    if OPT.get('nofill'): DM = []
    if OPT.get('fakeld'):
        import re as _re
        fk = lambda x: (_re.sub(r"s\[4:7\], s\d+ ", "s[4:7], 0 ", x[0]), x[1])
        DM = [(m, [fk(x) for x in L]) for m, L in DM]; RL = [fk(x) for x in RL]; EL = [fk(x) for x in EL]
    spot = {}
    def put(t, sp, x): spot.setdefault((t, sp), []).append(x)
    for n in range(1, 14):
        put(4*n-2, 'Bpv_s', kvm0(n+2))
        if not (n+2) & 1: put(4*n-2, 'Bmid_s', kvso)
        for x in kvld(n+2): put(4*n-1, 'Apv', x)
    free = []
    F0 = OPT.get('fill0', 0)
    if SJK:
        s0 = OPT.get('sj0', 4); sb = OPT.get('sjb2', 11); F0 = OPT.get('sjf', 16)
        assert sb % 4 == 3 and F0 % 4 == 0 and F0 > sb+1
        put(s0, 'Bpre', lambda: k.waitvm("sj"))
        for r in range(3):
            for b in range(2):
                for a in range(2): put(s0+r, 'Bpre' if b == 0 else 'Bmid', f"ds_read_b64_tr_b16 {vr(SJT+8*r+4*b+2*a,2)}, v{SJR} offset:{2048*r+256*a+8*b}")
                put(s0+r+1, 'Apv', (f"buffer_store_dwordx4 {vr(SJT+8*r+4*b)}, v{SJD+2*r+b}, s[4:7], 0 offen sc1", "sjs"))
        put(sb, 'Abar', lambda: k.waitvm("sjs"))
        put(sb, 'Bpre', (f"buffer_store_dword v{SJF+1}, v{SJF}, s[4:7], 0 offen sc1", "clr"))
        pl = f"buffer_load_dword v{SJF+1}, v{SJF+2}, s[4:7], 0 offen sc1"
        put(F0-1-OPT.get('sjp', 1), 'Bmid', (pl, "pol"))
        def polchk():
            a = k.newlabel("Y"); c = k.newlabel("C")
            k.waitvm("pol")
            k(f"v_cmp_eq_u32 vcc, -1, v{SJF+1}\ns_cbranch_vccnz {a}"); k.label(c)
            atr.append([f"{a}:", pl, f"s_add_u32 {sCNT}, {sCNT}, 1", f"s_cmp_gt_u32 {sCNT}, {BOUND}", "s_waitcnt vmcnt(0)", f"v_cmp_eq_u32 vcc, -1, v{SJF+1}",
                        f"s_cbranch_scc1 {c}", f"s_cbranch_vccnz {a}", f"s_branch {c}"])
        put(F0-1, 'Abar', polchk)
        for x in EL[:2]: put(sb-2, 'Apv', x)
        EL = EL[2:]
    for t in range(F0, 64):
        g = (t+1-F0)//4
        if t % 4 in (0, 1) and g < len(DM):
            for x in DM[g][1][2*(t%4):2*(t%4)+2]: put(t, 'Apv', x)
            if t % 4 == 0:
                if t: put(t-1, 'Bmid_s', DM[g][0])
                else: k(DM[g][0])
        elif t % 4 == 3 and t < 55: free.append((t, 'Bpre'))
        else: free.append((t, 'Apv'))
    LT = OPT.get('lastfill', 56)
    free = [f for f in free if f[0] < LT]
    RL = EL + RL
    if OPT.get('nofill'): RL = []; CL = []
    FL = [RL[i:i+2] for i in range(0, len(RL), 2)]
    C0 = OPT.get('clr0', 36); ctl = [t for t in range(C0, 64) if t % 4 in (0, 1)][:len(CL)//2]
    assert not ctl or ctl[-1] < 51
    for i, t in enumerate(ctl):
        put(t-1, 'Bpv_s', "s_cmp_lg_u64 s[0:1], 0"); put(t, 'Bmid', clpair(2*i))
    put(C0-13, 'Bmid', (f"buffer_load_dword v{XTV}, v{XTV}, s[4:7], {sXT} offen sc1", "xt"))
    put(C0-2, 'Bpre', lambda: (k.waitvm("xt"), k(f"v_cmp_ne_u32 s[0:1], {sXC}, v{XTV}" if not OPT.get('slowtail') else "s_mov_b64 s[0:1], -1")))
    if OPT.get('cpf'): put(OPT['cpf'], 'Bmid', ("global_load_dword v0, v[136:137], off", "cpf"))
    if OPT.get('spf', 8):
        n = OPT.get('spf', 8); L = -(-50//n); h = n//2
        k(f"s_mul_i32 {T}, {X}, {SETS:#x}\ns_lshl_b32 {T2}, {HD}, 2\ns_add_u32 {T2}, {T2}, {W}\ns_mul_i32 {T2}, {T2}, 6400\ns_add_u32 {T}, {T}, {T2}\ns_add_u32 {T}, {T}, {SETB:#x}")
        k(f"v_sub_u32 v139, {L-1}, v1\nv_and_b32 v139, {OOB:#x}, v139\nv_lshl_add_u32 v138, v1, 7, v139\nv_add_u32 v138, {T}, v138\nv_add_u32 v139, {128*L*h}, v138")
        t0 = OPT.get('spft', 30); ts = OPT.get('spfs', 4)
        for i in range(n): put(t0+ts*i, 'Bmid', (f"buffer_load_dword v0, v{138+i//h}, s[4:7], 0 offen offset:{128*L*(i%h)} sc1", "spf"))
        if OPT.get('spu'):
            k(f"s_mul_i32 {T2}, {T2}, 43\ns_mul_i32 {T}, {X}, {SETS:#x}\ns_add_u32 {T}, {T}, {SETB+UO:#x}")
            k(f"s_lshl_b32 {T2}, {HD}, 2\ns_add_u32 {T2}, {T2}, {W}\ns_mul_i32 {T2}, {T2}, {43*128}\ns_add_u32 {T}, {T}, {T2}")
            k(f"v_sub_u32 v140, 42, v1\nv_and_b32 v140, {OOB:#x}, v140\nv_lshl_add_u32 v140, v1, 7, v140\nv_add_u32 v140, {T}, v140")
            put(OPT['spu'], 'Bmid', (f"buffer_load_dword v0, v140, s[4:7], 0 offen sc1", "spf"))
            if OPT.get('wrs'):
                for i in range(3): put(OPT.get('wrm', 1)+OPT['wrs']*i, 'Bmid', (f"buffer_load_dword v0, v{140-i}, s[4:7], 0 offen{('', ' nt', ' sc1')[OPT.get('wrk', 0)]}", "spf"))
    put(51, 'Bmid', (f"buffer_load_dword v0, v{XV+2}, s[4:7], {sOt} offen sc1", "ot"))
    need = len(FL) - len(free)
    cand = [t for t in range(F0, LT) if t % 4 != 3 and t not in ctl]
    for i in range(max(0, need)): free.append((cand[i*len(cand)//need], 'Bmid'))
    free.sort()
    for f, xs in zip(free, FL):
        for x in xs: put(*f, x)
    assert RET == "s20"
    if OPT.get('hop', 1) & 1: hopentry(k, W, k.name, 4, 1)
    stamp(k,"k_pre")
    k.waitvm("g0", "lgkmcnt(0)")
    k("s_barrier")
    stamp(k,"m_g0")
    k(f"ds_read_b128 {vr(KR)}, v{KA}\nds_read_b128 {vr(V0)}, v{VA0}")
    k("s_waitcnt lgkmcnt(1)")
    k(M32(vr(S[0],16), vr(KR), vr(QA), 0)); k(M32(vr(S[1],16), vr(KR), vr(QB), 0))
    k(f"v_max_f32 v{C}, v{S[0]}, v{S[0]+1}")
    for r in range(2,32,2): k(f"v_max3_f32 v{C}, v{C}, v{S[0]+r}, v{S[0]+r+1}")
    k(f"v_mov_b32 v{C+1}, v{C}\nv_permlane32_swap_b32 v{C}, v{C+1}\nv_max_f32 v{C}, v{C}, v{C+1}")
    k(f"v_sub_f32 v{C}, 0, v{C}")
    for r in range(1,16): k(f"v_mov_b32 v{C+r}, v{C}")
    for r in range(0,16,2): k(f"v_pk_add_f32 {pr(S[0]+r)}, {pr(S[0]+r)}, {pr(C)}")
    k(f"v_mov_b32 v{S[1]+14}, 0\nv_mov_b32 v{S[1]+15}, 0")
    stamp(k,"k_att0")
    MIDJ = OPT.get('midj', 1); PVJ = OPT.get('pvj', 5)
    def half(X_, t):
        s = S[X_]; p = P[X_]; Y = 1-X_; last = t == 63
        pos = lambda tt: (tt % NR)*RP
        g = lambda sp: spot.get((t, sp), [])
        if X_ == 0:
            a = []
            if (t+1) % 4 == 0 and not last: a = [lambda: k.waitvm(f"g{(t+1)//4}")] + g('Abar') + ["s_barrier"]
            if not last: a.append(f"ds_read_b128 {vr(KR)}, v{KA} offset:{pos(t+1)}")
            pre = [M32(vr(S[1],16), vr(KR), vr(QB), vr(C,16))] + a
            mid = [f"s_waitcnt lgkmcnt({0 if last else 1})", f"ds_read_b128 {vr(V1)}, v{VA1} offset:{pos(t)}"]
            pv = ([] if last else ["s_waitcnt lgkmcnt(1)"]) + g('Apv')
        else:
            pre = ([] if last else [M32(vr(S[0],16), vr(KR), vr(QA), vr(C,16))]) + ["s_waitcnt lgkmcnt(0)"] + g('Bpre')
            mid = g('Bmid_s') + g('Bmid')
            pv = g('Bpv_s') + ([] if last else [f"ds_read_b128 {vr(V0)}, v{VA0} offset:{pos(t+1)}"])
        for j in range(8):
            k(f"v_exp_f32 v{s+2*j}, v{s+2*j}")
            if j == 0:
                k(f"v_cvt_pk_bf16_f32 v{P[Y]+7}, v{S[Y]+14}, v{S[Y]+15}")
                for x in pre: em(x)
            k(f"v_exp_f32 v{s+2*j+1}, v{s+2*j+1}")
            if j >= 1: k(f"v_cvt_pk_bf16_f32 v{p+j-1}, v{s+2*j-2}, v{s+2*j-1}")
            if j == MIDJ:
                k(M32(vr(O[Y],16), vr(V1), vr(P[Y]+4), vr(O[Y],16)))
                for x in mid: em(x)
            if j == PVJ:
                k(M32(vr(O[X_],16), vr(V0), vr(p), vr(O[X_],16)))
                for x in pv: em(x)
    for t in range(64):
        half(0, t); half(1, t)
        if t == 31: stamp(k,"m_att32")
        stamp(k, f"t{t%4}_{t:02d}")
    k(f"v_cvt_pk_bf16_f32 v{P[1]+7}, v{S[1]+14}, v{S[1]+15}")
    T0 = S[0]
    k(f"v_rcp_f32 v{T0+4}, v{O[0]+8}")
    k(M32(vr(O[1],16), vr(V1), vr(P[1]+4), vr(O[1],16)))
    stamp(k,"m_att64")
    def norm(X_):
        for r in range(0,8,2): k(f"v_pk_mul_f32 {pr(O[X_]+r)}, {pr(O[X_]+r)}, {pr(T0+4+2*X_)} op_sel_hi:[1,0]")
        for r in range(4): k(f"v_cvt_pk_bf16_f32 v{P[X_]+r}, v{O[X_]+2*r}, v{O[X_]+2*r+1}")
        k(f"v_min_u32 v{P[X_]}, {sM2}, v{P[X_]}")
    k(f"v_pk_mul_f32 {pr(T0)}, {pr(O[0]+8)}, 0 op_sel_hi:[1,0]")
    for r in range(0,8,2): k(f"v_pk_fma_f32 {pr(T0)}, {pr(O[0]+r)}, 0, {pr(T0)} op_sel_hi:[1,0,1]")
    norm(0)
    k(f"s_mov_b32 {T}, {fhex(2.0**-30)}\ns_mov_b32 {T2}, {fhex(2.0**30)}")
    k(f"v_rcp_f32 v{T0+6}, v{O[1]+8}")
    for r in range(0,10,2): k(f"v_pk_fma_f32 {pr(T0)}, {pr(O[1]+r)}, 0, {pr(T0)} op_sel_hi:[1,0,1]")
    k(f"v_min_f32 v{T0+2}, v{O[0]+8}, v{O[1]+8}\nv_max_f32 v{T0+3}, v{O[0]+8}, v{O[1]+8}")
    k(f"v_cmp_u_f32 vcc, v{T0}, v{T0+1}")
    k(f"v_cmp_gt_f32 {RETP}, {T}, v{T0+2}")
    k(f"s_or_b64 vcc, vcc, {RETP}")
    k(f"v_cmp_lt_f32 {RETP}, {T2}, v{T0+3}")
    k(f"s_or_b64 vcc, vcc, {RETP}")
    if OPT['slow']: k("s_branch L_attn_slow")
    if not OPT.get('noslow'): k("s_cbranch_vccnz L_attn_slow")
    k.label("L_attn_fin")
    k("s_cmp_lg_u64 s[0:1], 0")
    k("s_cbranch_scc1 L_tail_sc")

    def tail(fast):
        sc = "" if fast else " sc1"
        stubs = []; tramp = []
        st = (lambda n: stamp(k, n)) if fast != bool(OPT.get('slowtail')) else (lambda n: None)
        ACT=16; H=80; STR=96; A2=100; TMP=132; PK=ACT+32
        WV = [120,124,128,132,136,140,96,100,116,104,108,112]
        R10 = [ar(4*i) for i in range(6)] + [vr(116+4*i) for i in range(4)]
        def buf(e): return vr(WV[e % 12]) if e < 80 else R10[(e-80) % 10]
        def rd(e):
            if e < 16: a = f"v10 offset:{4096*e}"
            elif e < 80: a = f"v3 offset:{1024*(e-16)}"
            elif e < 144: a = f"v8 offset:{1024*(e-80)}"
            elif e < 168: a = f"v{KA} offset:{1024*(e-144)}"
            else: a = f"v3 offset:{1024*(e-144)}"
            if OPT.get('abl') == 2 and e >= 92: return (f"ds_read_b32 v0, {a}", f"r{e}")
            return (f"ds_read_b128 {buf(e)}, {a}", f"r{e}")
        def refill(e):
            n = e+12 if e < 78 else (e+10 if e >= 80 else None)
            return [rd(n)] if n is not None and n < 208 else []
        def stub(name, L):
            lab = k.newlabel("S"+name)
            o = [f"{lab}:"]
            for x, regs in L:
                sk = k.newlabel("K")
                o += maxl(regs) + [f"s_cbranch_vccz {sk}", x, f"{sk}:"]
            o += ["s_waitcnt vmcnt(0)", f"s_setpc_b64 {RETP}"]
            stubs.append(o); return dict(lab=lab, L=L, iss=set())
        def maxl(regs):
            r = list(regs); o = []
            if len(r) == 1: return [f"v_cmp_eq_u32 vcc, -1, v{r[0]}"]
            if len(r) % 2 == 0: o.append(f"v_max_u32 v0, v{r[0]}, v{r[1]}"); r = r[2:]
            else: o.append(f"v_max3_u32 v0, v{r[0]}, v{r[1]}, v{r[2]}"); r = r[3:]
            while r: o.append(f"v_max3_u32 v0, v0, v{r[0]}, v{r[1]}"); r = r[2:]
            return o + ["v_cmp_eq_u32 vcc, -1, v0"]
        def br(D, own):
            def f():
                a = k.newlabel("R"); c = k.newlabel("C")
                if D.get('inl'):
                    assert all(i in D['iss'] for i in own), (own, D['iss'])
                    D['iss'] -= set(own)
                    od = D['ord']; p0 = min(j for j, (i, q) in enumerate(od) if i in own and (i < 16 or D.get('nst')))
                    p1 = max(j for j, (i, q) in enumerate(od) if i in own)
                    for j in range(p1+1, len(od)):
                        if len(k.vmq) - od[j][1] != len(od) - j: p1 = j
                    re_ = [i for j, (i, q) in enumerate(od) if j >= p0 or i in own]
                    o = []; cur = None
                    for i in re_:
                        if D.get('m0', {}).get(i, cur) != cur: cur = D['m0'][i]; o.append(cur)
                        o.append(D['L'][i][0])
                    assert cur in (None, D.get('m0cur'))
                    o = o + [f"s_add_u32 {sCNT}, {sCNT}, {len(re_) if OPT.get('cntw') else 1}", f"s_cmp_gt_u32 {sCNT}, {BOUND}", f"s_waitcnt vmcnt({len(od)-1-p1})"]
                    rr = [D['rd'][i] for i in own if i in D.get('rd', {})]
                    if rr:
                        assert 0 not in own
                        o += rr + ["s_waitcnt lgkmcnt(0)"]
                    o += maxl([r for i in own for r in D['L'][i][1]]) + [f"s_cbranch_scc1 {c}", f"s_cbranch_vccnz {a}"]
                    if D['inl'] == 1 or (D['inl'] == 3 and 0 in own):
                        k(f"s_cbranch_vccz {c}"); k.label(a)
                        n0 = len(k.vmq)
                        for x in o: k(x)
                        del k.vmq[n0:]
                        k.label(c)
                    elif OPT.get('abl') == 4: pass
                    elif OPT.get('abl') == 5: k("s_nop 0")
                    elif OPT.get('abl') == 6:
                        k(f"s_cbranch_execz {a}"); k.label(c)
                        tramp.append([f"{a}:"] + o + [f"s_branch {c}"])
                    else:
                        k(f"s_cbranch_vccnz {a}"); k.label(c)
                        tramp.append([f"{a}:"] + o + [f"s_branch {c}"])
                    return
                k(f"s_cbranch_vccnz {a}"); k.label(c)
                assert all(i in D['iss'] for i in own), (own, D['iss'])
                D['iss'] -= set(own)
                o = [f"{a}:"] + [D['L'][i][0] for i in own]
                o += [f"s_add_u32 {sCNT}, {sCNT}, 1", f"s_cmp_gt_u32 {sCNT}, {BOUND}", "s_waitcnt vmcnt(0)", f"s_cbranch_scc1 {c}"]
                o += maxl([r for i in own for r in D['L'][i][1]]) + [f"s_cbranch_vccnz {a}"]
                if D['iss']:
                    o += maxl([r for i in sorted(D['iss']) for r in D['L'][i][1]]) + [f"s_cbranch_vccz {c}", f"s_call_b64 {RETP}, {D['lab']}"]
                tramp.append(o + [f"s_branch {c}"])
            return f
        def iss(D, i, tag):
            def f():
                D.setdefault('ord', []).append((i, len(k.vmq)))
                if D.get('m0', {}).get(i, D.get('m0cur')) != D.get('m0cur'):
                    D['m0cur'] = D['m0'][i]; k(D['m0cur'])
                k(D['L'][i][0].replace(' sc1', (' sc1', '', ' sc0', ' nt', ' sc1 nt')[OPT.get('ldm', 0) if fast else 0]), tag=tag); D['iss'].add(i)
            return f
        def stream(M, G):
            for i, m in enumerate(M):
                k(m)
                for x in G.get(i, []): em(x)
        def spread(G, items, gaps):
            n = len(items); g = len(gaps)
            for i, x in enumerate(items): G.setdefault(gaps[i*g//n], []).append(x)
        def fcost(x):
            if callable(x): return OPT.get('cw', 4)
            t = x[0] if isinstance(x, tuple) else x
            if t.startswith("buffer_"): return OPT.get('cl', 6)
            if t.startswith("ds_write"): return OPT.get('cd', 8)
            return 8 if t.startswith(TRANS) else 4*(1+t.count("\n"))
        def spreadb(G, items, gaps, F):
            fx = {g: sum(fcost(x) for x in F.get(g, []) + G.get(g, [])) for g in gaps}
            tot = sum(fx.values()) + sum(fcost(x) for x in items); acc = 0; j = 0; n = len(gaps)
            for i, g in enumerate(gaps):
                acc += fx[g]
                while j < len(items) and ((2*acc + fcost(items[j])) * n <= 2 * tot * (i+1) or i == n-1):
                    G.setdefault(g, []).append(items[j]); acc += fcost(items[j]); j += 1
        LA = OPT.get('la', 8)
        def actl(name, vo, so, sst, sreg=STR, dma=16):
            L = [(f"buffer_load_dwordx4 {vr(ACT+4*s)}, v{vo[s//4]}, s[4:7], {so} offen offset:{1024*(s%4)} sc1", [ACT+4*s]) for s in range(16)]
            for s in range(dma, 16): L[s] = (f"buffer_load_dwordx4 v{vo[s//4]}, s[4:7], {so} offen offset:{1024*(s%4)} sc1 lds", [ACT+4*s])
            if sst: L.append((f"buffer_load_dwordx4 {vr(sreg)}, v3, s[4:7], {sst} offen sc1", [sreg+i for i in range(4)]))
            D = stub(name, L)
            D['m0'] = {s: f"s_add_u32 m0, {W14}, {WB+4096*(s//4):#x}" for s in range(dma, 16)}
            D['rd'] = {s: f"ds_read_b128 {vr(ACT+4*s)}, v{KA} offset:{1024*s}" for s in range(dma, 16)}
            D['m0cur'] = None
            D['inl'] = OPT.get('inl', 1)
            if D['inl']: stubs.pop()
            I = [iss(D, s, f"{name}{s//2}") for s in range(16)]
            if sst: I.insert(6, iss(D, 16, "sts"))
            n = OPT.get(name+'la', LA) + (1 if sst else 0)
            D['rest'] = I[n:]
            return I[:n], D
        def first_check(name, D):
            k.waitvm(f"{name}0")
            for x in maxl([ACT, ACT+4]): k(x)
            br(D, [0, 1])()
        def mstage(name, D, e0, AC, zero, has_st, early, late, fin=(), fix=()):
            M = [M16(vr(AC+4*(i%4)), buf(e0+i), vr(ACT+4*(i//4)), 0 if (zero and i < 4) else vr(AC+4*(i%4))) for i in range(64)]
            G = {i: [] for i in range(64)}
            used = set(); HSP = OPT.get('hsp', 3) if has_st else OPT.get(name+'lt', 3)
            for i in range(64):
                WL = OPT.get('wl', 2)
                if i % WL == (OPT.get('wlo', 1) % WL) and i < 63: G[i].append(lambda i=i: k.waitlg(f"r{e0+min(63, i+WL)}"))
                p = i//8
                if p < 7 and i % 8 == 4-OPT.get('bdm', 0): G[i].append(lambda p=p: k.waitvm(f"{name}{p+1}"))
                if p < 7 and i % 8 == 6+OPT.get('bd', 1): G[i].append(br(D, ([16] if has_st and p == HSP else []) + [2*p+2, 2*p+3]))
                if i % 8 == 6 and f"{name}_s" in OPT.get('sts', ''): G[i].append(lambda p=p: st(f"{name}_s{p}"))
                G[i] += refill(e0+i)
            for j, x in enumerate(D['rest']):
                rs = OPT.get(name+'rs', OPT.get('rs', 0))
                gi = rs*j if rs else 8*(j//2) + (OPT.get('r0', 0), OPT.get('r1', 7-OPT.get('bd', 1)))[j % 2]; G[gi].append(x); used.add(gi)
            for p in range(7):
                regs = [ACT+8*p+8, ACT+8*p+12]
                if has_st and p == HSP: regs = [STR, STR+1, STR+2, STR+3] + regs
                L = maxl(regs)
                for j, x in enumerate(L):
                    gi = 8*p+5-OPT.get('bdm', 0)-(len(L)-1-j); G[gi].append(x); used.add(gi)
            for j, x in enumerate(fin): G[56+j].append(x); used.add(56+j)
            for gi, x in fix: G[gi].append(x); used.add(gi)
            if OPT.get('mbal'):
                if has_st: spreadb(G, list(early), list(range(0, 8*HSP+8)), {}); spreadb(G, list(late), list(range(8*HSP+8, 64)), {})
                else: spreadb(G, list(late), list(range(0, 64)), {})
            else:
                spread(G, list(early), [i for i in range(0, 8*HSP+8) if i not in used])
                spread(G, list(late), [i for i in range(8*HSP+7, 64) if i not in used])
            st(f"{name}_w")
            first_check(name, D)
            k.waitlg(f"r{e0+OPT.get('wlo', 1) % OPT.get('wl', 2)}")
            st(f"{name}_m")
            stream(M, G)
            st(f"{name}_e")
        def packstore(AC, so):
            for p in range(2):
                for r in range(4): k(f"v_cvt_pk_bf16_f32 v{PK+4*p+r}, v{AC+8*p+2*r}, v{AC+8*p+2*r+1}")
                k(f"v_min_u32 v{PK+4*p}, {sM2}, v{PK+4*p}")
                k(f"buffer_store_dwordx4 {vr(PK+4*p)}, v3, s[4:7], {so} offen offset:{1024*p}{sc}", tag="st")
        SV=9
        def pstats(so, a):
            k(f"v_dot2_f32_bf16 v{a}, v{PK}, {sONE}, 0\nv_dot2_f32_bf16 v{a+1}, v{PK}, v{PK}, 0")
            for r in range(1,8): k(f"v_dot2_f32_bf16 v{a}, v{PK+r}, {sONE}, v{a}\nv_dot2_f32_bf16 v{a+1}, v{PK+r}, v{PK+r}, v{a+1}")
            k(f"v_permlane16_swap_b32 v{a}, v{a+1}\nv_add_f32 v{a}, v{a}, v{a+1}")
            xhalf_add(k, a, a+1)
            k(f"v_min_u32 v{a}, {sM2}, v{a}")
            k(f"buffer_store_dword v{a}, v{SV}, s[4:7], {so} offen{sc}", tag="st")
        def cs3(t): return [M16(ar(160+4*t), w3reg(t, s), "a[172:175]", 0 if s == 0 else ar(160+4*t)) for s in range(16)]
        def statlist(a, NMU, RS, t):
            L = [f"v_add_f32 v{a}, v{a}, v{a+2}", f"v_add_f32 v{a+1}, v{a+1}, v{a+3}"]
            for op in ("v_permlane16_swap_b32", "v_permlane32_swap_b32"):
                L += [f"v_mov_b32 v{a+2}, v{a}", f"v_mov_b32 v{a+3}, v{a+1}", f"{op} v{a}, v{a+2}", f"{op} v{a+1}, v{a+3}",
                      f"v_add_f32 v{a}, v{a}, v{a+2}", f"v_add_f32 v{a+1}, v{a+1}, v{a+3}"]
            L += [f"v_mul_f32 v{NMU}, {fhex(-1/512)}, v{a}", f"v_mul_f32 v{a+1}, {fhex(1/512)}, v{a+1}", f"v_fma_f32 v{a+1}, -v{NMU}, v{NMU}, v{a+1}",
                  f"v_max_f32 v{a+1}, 0, v{a+1}", f"v_add_f32 v{t}, {fhex(EPS)}, v{a+1}", f"v_rsq_f32 v{RS}, v{t}"]
            return L
        def gconsts(R, IRS, A, B):
            return [f"v_rcp_f32 v{IRS}, v{R}", f"v_mul_f32 v{A}, v{R}, v{R}", f"v_mul_f32 v{B}, {fhex(GB)}, v{R}", f"v_mul_f32 v{A}, v{A}, v{R}", f"v_mul_f32 v{A}, {fhex(GA)}, v{A}"]
        def window(M, loads, pre, extra):
            G = {}
            n = len(M)
            spread(G, loads, list(range(pre, n)))
            for gi, x in extra: G.setdefault(gi, []).append(x)
            stream(M, G)
        PRB = OPT.get('prb', 1)
        def probe(name, so, I, work):
            nsp = OPT.get(name+'sp', OPT.get('spec', 0))
            k(f"v_lshlrev_b32 v{ACT+63}, 8, v1")
            if OPT.get('dbgst'):
                st(f"{name}_a"); k("s_waitcnt vmcnt(1)"); st(f"{name}_b"); k("s_waitcnt vmcnt(0)"); st(f"{name}_c")
            pl = [f"buffer_load_dword v0, v{ACT+63}, s[4:7], {so} offen sc1"]
            for x in pl: k(x, tag="prb")
            n0 = len(k.L)
            for x in I[:nsp]: em(x)
            rep = [x.strip() for x in k.L[n0:]]
            work()
            k.waitvm("prb")
            st(f"{name}_p")
            P_ = k.newlabel("P"); OK = k.newlabel("Q")
            k(f"v_cmp_eq_u32 vcc, -1, v0\ns_cbranch_vccz {OK}")
            k.label(P_)
            n0 = len(k.vmq)
            for x in pl + rep: k(x)
            del k.vmq[n0:]
            k(f"s_add_u32 {sCNT}, {sCNT}, 1\ns_cmp_gt_u32 {sCNT}, {BOUND}\ns_waitcnt vmcnt({nsp})\nv_cmp_eq_u32 vcc, -1, v0\ns_cbranch_scc1 {OK}\ns_cbranch_vccnz {P_}")
            k.label(OK)
            st(f"{name}_q")
            return I[nsp:]
        def pwindow(name, so, M, I, extra):
            a = OPT.get(name+'wa', OPT.get('wa', 0))
            G = {}
            for gi, x in extra: G.setdefault(gi, []).append(x)
            R = probe(name, so, I, lambda: stream(M[:a], G))
            n1 = OPT.get('l0', 2)
            for x in R[:n1]: em(x)
            G = {g-a: v for g, v in G.items() if g >= a}
            if a < len(M):
                G2 = {}
                spread(G2, R[n1:], list(range(0, min(len(M)-a, OPT.get('lsp', 4)))))
                for g in G2: G[g] = G2[g] + G.get(g, [])
                stream(M[a:], G)
            else:
                for x in R[n1:]: em(x)
        k(f"buffer_store_dwordx4 {vr(P[0])}, v2, s[4:7], {sOs[0]} offen{sc}", tag="st")
        for e in range(6): em(rd(e))
        norm(1)
        k(f"buffer_store_dwordx4 {vr(P[1])}, v2, s[4:7], {sOs[1]} offen{sc}", tag="st")
        st("m_ost")
        I, labO = actl("o", [3,4,5,6], sOl, None)
        M = [M16("a[168:171]", buf(e), "a[172:175]", 0 if e == 0 else "a[168:171]") for e in range(16)]
        W2S = OPT.get('w2s', 0)
        rw = [f"ds_write_b128 v15, {ar(4*i)} offset:{1024*i}" for i in range(6)]
        xc = [f"v_accvgpr_read_b32 v{H+2*r+1}, a{160+r}" for r in range(8)]
        for r in range(8): xc += [f"v_lshlrev_b32 v{H+2*r}, 16, v{H+2*r+1}", f"v_and_b32 v{H+2*r+1}, 0xffff0000, v{H+2*r+1}"]
        def b0work():
            k("s_barrier")
            if not W2S & 1:
                for x in rw: k(x)
            if not OPT.get('xcg'):
                for x in xc: k(x)
        if PRB:
            a = OPT.get('owa', 0)
            G = {e: ([lambda e=e: k.waitlg(f"r{e+2}")] if e % 2 == 1 and e < 15 else []) + refill(e) for e in range(16)}
            def w0():
                for e in range(6, 12): em(rd(e))
                k(f"v_add_u32 v8, {WB:#x}, v3")
                b0work()
                k.waitlg("r1")
                stream(M[:a], G)
            R = probe("o", sOl, I, w0)
            n1 = OPT.get('l0', 2) if a < 16 else 99
            for x in R[:n1]: em(x)
            G = {g-a: v for g, v in G.items() if g >= a}
            G2 = {}
            if a < 16: spread(G2, R[n1:], list(range(0, min(16-a, OPT.get('lsp', 4)))))
            for g in G2: G[g] = G2[g] + G[g]
            stream(M[a:], G)
        else:
            for x in I[:2]: em(x)
            for e in range(6, 12): em(rd(e))
            k(f"v_add_u32 v8, {WB:#x}, v3")
            k.waitlg("r1")
            G = {}
            for e in range(16):
                G[e] = ([lambda e=e: k.waitlg(f"r{e+2}")] if e % 2 == 1 and e < 15 else []) + refill(e) + (I[2+e//2:3+e//2] if e % 2 == 0 else [])
            if OPT.get('xcg'): spreadb(G, xc, list(range(16)), {})
            stream(M, G)
            b0work()
        k("ds_write_b128 v11, a[168:171]")
        GV = [2, 10, 11, 15]
        E = [f"v_lshrrev_b32 v{SV}, 5, v1", f"v_lshlrev_b32 v{SV}, 31, v{SV}", f"v_lshl_add_u32 v{SV}, v12, 4, v{SV}", f"v_lshl_add_u32 v{SV}, v13, 2, v{SV}", f"v_add_u32 v{SV}, {sSV}, v{SV}",
             "v_mov_b32 v14, 0x4000"]
        for gi, sh in enumerate((-1, 1, -2, 2)):
            v = GV[gi]
            E += [f"v_add_u32 v{v}, {sh}, v12", f"v_bfe_i32 v{v}, v{v}, 4, 1", f"v_bfi_b32 v{v}, v{v}, {sDP if sh < 0 else sDN}, v14", f"v_add_u32 v{v}, v{3+gi}, v{v}" if GA_L else f"v_add3_u32 v{v}, v{3+gi}, v{v}, {16*(sh+2)}"]
        VG = TMP+11 if GA_L else 3
        EH = []
        if GA_L:
            EH = [f"v_add_u32 v{VG}, {sNS}, v12", f"v_bfe_i32 v{VG}, v{VG}, 4, 1", f"v_bfi_b32 v14, v{VG}, {sOT}, v14", f"v_xor_b32 v{VG}, -1, v{VG}", f"v_and_b32 v{VG}, 0x80000000, v{VG}",
                  f"v_add_u32 v{VG}, v{VG}, v3", "v_add_u32 v14, v14, v3"]
        else: E += ["v_add_u32 v14, 2, v12", "v_and_b32 v14, 12, v14", "v_sub_u32 v14, 0, v14", "v_and_b32 v14, 0x80000000, v14", "v_add_u32 v14, v14, v3"]
        VM, VG = (VG, 14) if GA_L else (14, 3)
        mstage("o", labO, 16, H, False, False, [], E, fix=[(OPT.get('ow0', 3)+OPT.get('ows', 8)*i, x) for i, x in enumerate(rw)] if W2S & 1 else [])
        I, labH = actl("h", [3,4,5,6], sHl, sSh)
        def lfirst(I, key):
            n = OPT.get(key, 0)
            for x in I[:n]: em(x)
            return I[n:]
        I = lfirst(I, 'hlf0')
        packstore(H, sHs)
        st("m_hst")
        I = lfirst(I, 'hlf1')
        pstats(sSh, TMP)
        if OPT.get('dbg2'):
            st("d_a"); k("s_waitcnt vmcnt(2)"); st("d_b"); k("s_waitcnt vmcnt(1)"); st("d_c"); k("s_waitcnt vmcnt(0)"); st("d_d")
            k(f"buffer_load_dwordx4 {vr(ACT)}, v3, s[4:7], {sHs} offen sc1\ns_waitcnt vmcnt(0)"); st("d_e")
            k(f"buffer_load_dwordx4 {vr(ACT)}, v3, s[4:7], {sHl} offen sc1\ns_waitcnt vmcnt(0)"); st("d_f")
            k(f"buffer_load_dwordx4 {vr(ACT)}, v6, s[4:7], {sHl} offen sc1\ns_waitcnt vmcnt(0)"); st("d_g")
        k(f"v_add_u32 v{TMP}, {sSB}, v3\nv_lshlrev_b32 v{TMP+1}, 4, v13\nv_add_u32 v{TMP+1}, {CSL:#x}, v{TMP+1}")
        NG = OPT.get('w2g', 0)
        w2w = [f"ds_write_b128 v{TMP}, {ar(24+4*i)} offset:{1024*i}" for i in range(10)]
        hfix = []
        if W2S & 2:
            nh = OPT.get('w2h', 10)
            hg = [int(x) for x in str(OPT.get('hwg', '3.6.11.14.19.22.30.35.43.51')).split('.')]
            hfix = list(zip(hg, w2w[:nh])); w2w = w2w[nh:]; NG = len(w2w); w2w = [None]*(10-NG) + w2w
        ex = [(OPT.get('b1g', 3), "s_waitcnt lgkmcnt(0)\ns_barrier" if W2S & 1 else "s_barrier")] + [(min(15, OPT.get('b1g', 3)+1+i), x) for i, x in enumerate(w2w[:10-NG]) if x]
        exg = [(OPT.get('gws', 1)*i, x) for i, x in enumerate(w2w[10-NG:])] + [(OPT.get('b2g', 15), "s_waitcnt lgkmcnt(0)\ns_barrier" if NG else "s_barrier")]
        if PRB: pwindow("h", sHl, cs3(0), I, ex)
        else: window(cs3(0), I, OPT.get('hpre', 0), ex)
        NMU=TMP+2; IRS=TMP+3; GA_=TMP+4; GB_=TMP+5; R1=TMP+6; KK=TMP+7; TT=TMP+8; RR=TMP+9; EP=TMP+10
        late = statlist(STR, NMU, R1, TT) + [f"v_mul_f32 v{TT}, v{R1}, v{R1}", f"v_fma_f32 v{TT}, v{TT}, v{STR+1}, v{EP}", f"v_rsq_f32 v{TT}, v{TT}",
              f"v_mul_f32 v{KK}, v{NMU}, v{R1}", f"v_mul_f32 v{RR}, v{R1}, v{TT}"] + gconsts(RR, IRS, GA_, GB_)
        CS=ACT; G0=ACT+16
        mstage("h", labH, 80, A2, True, True, [f"v_mov_b32 v{EP}, {fhex(EPS)}"] + EH, late, [(f"ds_read_b128 {vr(CS+4*nb)}, v{TMP+1} offset:{64*nb}", "cs") for nb in range(4)], fix=hfix)
        k.waitlg("cs")
        k(f"s_cmp_lg_u32 {sMB}, 0")
        for p in range(2):
            R = range(8*p, 8*p+8, 2)
            for r in R: k(f"v_pk_fma_f32 {pr(A2+r)}, {pr(CS+r)}, {pr(NMU)}, {pr(A2+r)} op_sel_hi:[1,0,1]")
            for r in R: k(f"v_pk_mul_f32 {pr(G0+r)}, {pr(A2+r)}, {pr(A2+r)}")
            for r in R: k(f"v_pk_fma_f32 {pr(G0+r)}, {pr(G0+r)}, {pr(GA_)}, {pr(GA_)} op_sel:[0,0,1] op_sel_hi:[1,0,1]")
            for r in R: k(f"v_pk_mul_f32 {pr(G0+r)}, {pr(G0+r)}, {pr(A2+r)}")
            for r in range(8*p, 8*p+8): k(f"v_exp_f32 v{G0+r}, v{G0+r}")
            for r in R: k(f"v_pk_fma_f32 {pr(G0+r)}, {pr(G0+r)}, {pr(NMU)}, {pr(NMU)} op_sel:[0,1,1] op_sel_hi:[1,1,1]")
            for r in range(8*p, 8*p+8): k(f"v_rcp_f32 v{G0+r}, v{G0+r}")
            for r in R: k(f"v_pk_mul_f32 {pr(A2+r)}, {pr(A2+r)}, {pr(G0+r)}")
            for r in range(4): k(f"v_cvt_pk_bf16_f32 v{PK+4*p+r}, v{A2+8*p+2*r}, v{A2+8*p+2*r+1}")
            k(f"v_min_u32 v{PK+4*p}, {sM2}, v{PK+4*p}")
            a = k.newlabel("M"); c = k.newlabel("C")
            k(f"s_cbranch_scc1 {a}"); k.label(c)
            tramp.append([f"{a}:", f"buffer_store_dwordx4 {vr(PK+4*p)}, v{VM}, s[4:7], {sMB} offen offset:{1024*p} sc1", f"s_branch {c}"])
            k(f"buffer_store_dwordx4 {vr(PK+4*p)}, v{VG}, s[4:7], {sGs} offen offset:{1024*p}{sc}", tag="st")
        st("m_gst")
        for r in range(0,16,2): k(f"v_pk_fma_f32 {pr(A2+r)}, {pr(H+r)}, {pr(R1)}, {pr(R1)} op_sel:[0,0,1] op_sel_hi:[1,0,1]")
        I, labG = actl("g", GV, sGl, None)
        if PRB:
            k(f"s_sub_u32 {T}, {sHl}, {HO-GO:#x}")
            pwindow("g", T, cs3(1), I, exg)
        else: window(cs3(1), I, OPT.get('gpre', 4), exg)
        E = ["v_lshl_add_u32 v14, v13, 2, v12", "v_and_b32 v14, 15, v14", "v_lshlrev_b32 v14, 4, v14", "v_lshl_add_u32 v14, v13, 8, v14",
             f"s_lshl_b32 {T}, {W}, 12", f"v_add_u32 v14, {T}, v14", f"v_add_u32 v{KA}, {W14}, v8"]
        mstage("g", labG, 144, A2, False, False, [], E)
        ST3=136
        XD = OPT.get('xd', 8)
        I, labX = actl("x", [3,4,5,6], sXl, sSx, ST3, 2*XD)
        I = lfirst(I, 'xlf0')
        packstore(A2, sXs)
        st("m_x1st")
        I = lfirst(I, 'xlf1')
        pstats(sSx, TMP)
        I = lfirst(I, 'xlf2')
        for r in range(0,16,2): k(f"v_pk_add_f32 {pr(H+r)}, {pr(H+r)}, {pr(A2+r)}")
        for nb in range(4): k(f"ds_write_b128 v14, {vr(H+4*nb)} offset:{1024*nb}")
        if PRB: pwindow("x", sXl, cs3(2), I, [])
        AC=[84,96]; C3=108; GT=120; SP=[132,32,36,32]; UP=136; TT=140; RS=141
        TB=[None,80,81,82]; SB=[None,83,142,143]
        early = [f"v_accvgpr_read_b32 v{C3+r}, a{160+r}" for r in range(12)]
        early += [f"s_lshl_b32 {T}, {W}, 8", "v_lshlrev_b32 v15, 4, v12", f"v_add_u32 v15, {STL:#x}, v15", f"v_add_u32 v2, {T}, v15",
                  f"v_add_u32 v10, {sHF}, v3", f"s_cmp_eq_u32 {W}, 3\ns_cselect_b32 {T}, {OOB:#x}, 0", f"v_add_u32 v11, {T}, v5",
                  f"s_lshr_b32 {T}, {T}, 21", f"v_subrev_u32 v12, {T}, v5" if OPT.get('abl') != 3 else "v_mov_b32 v12, 0x80000000"]
        late2 = []
        for q in range(1,4): late2 += [f"s_lshl_b32 {T}, {sTid[q]}, 14", f"v_add_u32 v{TB[q]}, {T}, v8", f"s_lshl_b32 {T}, {sTid[q]}, 8", f"v_add_u32 v{SB[q]}, {T}, v15"]
        exw = []
        if OPT.get('xw', 1):
            wl = early[:8] + early[12:] + late2; early = early[8:12]; late2 = []
            exw = [(i*16//len(wl), x) for i, x in enumerate(wl)]
        if not PRB: window(cs3(2), I, OPT.get('xpre', 0), exw)
        XSP = OPT.get('xsp', 3)
        M = [M16(vr(AC[0]+4*t), w3reg(t,s), vr(ACT+4*s), 0 if s == 0 else vr(AC[0]+4*t)) for s in range(16) for t in range(3)]
        G = {i: [] for i in range(48)}; used = set()
        for p in range(8):
            for h in range(2 if OPT.get('abl') != 1 and p < XD else 0): G[6*p+h*OPT.get('wx', 1)].append(f"ds_write_b128 v{KA}, {vr(ACT+8*p+4*h)} offset:{2048*p+1024*h}")
            if p < 7:
                regs = [ACT+8*p+8, ACT+8*p+12]
                if p == XSP: regs = [ST3+i for i in range(4)] + regs
                L = maxl(regs)
                if p+1 < XD:
                    G[6*p+3-OPT.get('bdx', 1)].append(lambda p=p: k.waitvm(f"x{p+1}"))
                    for j, x in enumerate(L):
                        gi = 6*p+4-OPT.get('bdx', 1)-(len(L)-1-j); G[gi].append(x)
                else:
                    assert p >= 1
                    G[6*p-1] += [lambda p=p: k.waitvm(f"x{p+1}"), (labX['rd'][2*p+2], f"xr{p+1}")]
                    G[6*p-1+OPT.get('xr2', 1)].append((labX['rd'][2*p+3], f"xr{p+1}"))
                    c_ = OPT.get('xc', 3)
                    for j, x in enumerate(L[:-2]): G[6*p+1+j].append(x)
                    G[6*p+c_] += [lambda p=p: k.waitlg(f"xr{p+1}")] + L[-2:]
                G[6*p+5].append(br(labX, ([16] if p == XSP else []) + [2*p+2, 2*p+3]))
                G[6*p+5].append(lambda p=p: st(f"x_s{p}"))
        for j, x in enumerate(labX['rest']): G[OPT['xrs']*j if OPT.get('xrs') else 3*j+2+(OPT.get('xr0', 1), OPT.get('xr1', -1))[j % 2]*OPT.get('bdx', 1)].append(x)
        spread(G, early, list(range(2, 6*XSP+6)))
        late = statlist(ST3, SP[0], RS, TT) + gconsts(RS, SP[0]+1, SP[0]+2, SP[0]+3) + [f"ds_write_b128 v2, {vr(SP[0])}"] + late2
        if OPT.get('xbal', 1):
            gaps = list(range(6*XSP+6, 48)); wt = lambda x: 3 if isinstance(x, str) and x.startswith("ds_write") else 1
            load = {g: sum(wt(x) for x in G[g]) for g in gaps}
            tot = sum(load.values()) + len(late); acc = 0; j = 0
            for n_, g in enumerate(gaps):
                acc += load[g]
                while j < len(late) and (acc + 1) * len(gaps) <= tot * (n_+1) + len(gaps)//2: G[g].append(late[j]); j += 1; acc += 1
            G[47] += late[j:]
        else: spread(G, late, list(range(6*XSP+6, 48)))
        st("x_w")
        first_check("x", labX)
        st("x_m")
        stream(M, G)
        st("x_e")
        k("s_waitcnt lgkmcnt(0)\ns_barrier")
        st("m_B3")
        def gelu_list(a, sp, q):
            L = []
            for c in range(2):
                R = range(0,8) if c == 0 else range(8,12)
                L += [f"v_fma_f32 v{a+r}, v{sp}, v{C3+r}, v{a+r}" for r in R]
                L += [f"v_mul_f32 v{GT+r}, v{a+r}, v{a+r}" for r in R]
                L += [f"v_fma_f32 v{GT+r}, v{GT+r}, v{sp+2}, v{sp+3}" for r in R]
                L += [f"v_mul_f32 v{GT+r}, v{GT+r}, v{a+r}" for r in R]
                L += [f"v_exp_f32 v{GT+r}, v{GT+r}" for r in R]
                L += [f"v_fma_f32 v{GT+r}, v{GT+r}, v{sp+1}, v{sp+1}" for r in R]
                L += [f"v_rcp_f32 v{GT+r}, v{GT+r}" for r in R]
                L += [f"v_mul_f32 v{a+r}, v{a+r}, v{GT+r}" for r in R]
                L += [f"v_cvt_pk_bf16_f32 v{UP+r//2}, v{a+r}, v{a+r+1}" for r in R if r % 2 == 0]
                if c == 0:
                    L += [f"v_min_u32 v{UP}, {sM2}, v{UP}", f"v_min_u32 v{UP+2}, {sM2}, v{UP+2}",
                          (f"buffer_store_dwordx4 {vr(UP)}, v3, s[4:7], {sUs[q]} offen{sc}", "st")]
                else:
                    L += [f"v_min_u32 v{UP+4}, {sM2}, v{UP+4}", (f"buffer_store_dwordx2 {vr(UP+4,2)}, v10, s[4:7], {sUs[q]} offen{sc}", "st")]
            return L
        cost = lambda x: 8 if isinstance(x, tuple) or x.startswith(TRANS) else 4
        def spreadw(G, items, gaps, F=None):
            if OPT.get('sbal', 1): return spreadb(G, items, gaps, F)
            tot = sum(cost(x) for x in items); acc = 0; g = len(gaps)
            for x in items:
                gi = min(g-1, acc*g//tot); acc += cost(x)
                if isinstance(x, tuple) and gi+1 < g: G.setdefault(('m', gaps[gi+1]), []).append(x)
                else: G.setdefault(gaps[gi], []).append(x)
        def stream2(M, F, G):
            for i, m in enumerate(M):
                k(m)
                for x in F.get(i, []) + G.get(('m', i), []) + G.get(i, []): em(x)
        lateW = [(ldr(w4reg(i//4, i%4), s4[i//16], i%16, "v11" if i >= 40 else None)[0], "w4") for i in range(24, 44)]
        BB=ACT
        def rdB(n):
            q = n//16+1; s = n % 16
            return (f"ds_read_b128 {vr(BB+4*(n%4))}, v{TB[q]} offset:{1024*s}", f"b{n}")
        UB=[40,144,188,40]
        UV=[80,80,80,80]
        def uld(t): return [f"buffer_load_dwordx4 {vr(UB[t]+4*ks)}, v{12 if ks == 10 else 3+ks//4}, s[4:7], {sUl[t]} offen offset:{1024*(ks%4)} sc1" for ks in range(11)]
        DU = dict(L=[(x, [UB[t]+4*ks, UB[t]+4*ks+2]) for t in range(4) for ks, x in enumerate(uld(t))], iss=set(), inl=OPT.get('uinl', 2), nst=1)
        def uiss(t): return [iss(DU, 11*t+ks, f"u{t}_{ks//2}") for ks in range(11)]
        LK = OPT.get('lk', 44)
        UPOS = {}
        for t in range(1, 4):
            for ks, x in enumerate(uiss(t)): UPOS.setdefault(max(OPT.get(f'u{t}at', 0) + 44*(t-1) + OPT.get('usp', 0)*ks, 44*t + 4*ks - OPT.get(f'lk{t}', LK)), []).append(x)
        for n in range(4): em(rdB(n))
        for q in range(1,4):
            M = []; F = {}; G = {}
            for s in range(16):
                n = 16*(q-1)+s
                for t in range(3): M.append(M16(vr(AC[q%2]+4*t), w3reg(t,s), vr(BB+4*(n%4)), 0 if s == 0 else vr(AC[q%2]+4*t)))
                if OPT.get('bw2'): F[3*s+2] = ([lambda n=n: k.waitlg(f"b{min(47, n+2)}")] if n % 2 == 0 else []) + ([rdB(n+4)] if n+4 < 48 else [])
                else: F[3*s+2] = ([lambda n=n: k.waitlg(f"b{n+1}")] if n < 47 else []) + ([rdB(n+4)] if n+4 < 48 else [])
            F.setdefault(30, []).append((f"ds_read_b128 {vr(SP[q])}, v{SB[q]}", f"sp{q}"))
            if OPT.get('lw2', 1) and q < 3:
                n1 = OPT.get('lw1', 8)
                mem = lateW[:n1] if q == 1 else lateW[n1:]
                for i, x in enumerate(mem): F.setdefault(3*((i*16+OPT.get('lwo', 8))//len(mem)), []).append(x)
            else:
                mem = lateW if q == 1 else ([] if q == 2 else uiss(0)[:10])
                g0 = 0 if q == 1 else OPT.get('u0at', 6)
                us = OPT.get('u0s', 2)
                for i, x in enumerate(mem): F.setdefault(3*(g0+i//(2 if q == 1 else us)), []).append(x)
            gl = gelu_list(AC[(q-1)%2], SP[q-1], q-1)
            if q == 1:
                for x in gl[:OPT.get('lead1', 20)]: em(x)
                gl = gl[OPT.get('lead1', 20):]
                k.waitlg("b0")
                spreadw(G, gl, list(range(0, 48)), F)
            else: spreadw(G, gl, list(range(OPT.get('sl0', 2), 48)), F)
            stream2(M, F, G)
            st(f"u_slot{q}")
        st("m_w3e")
        em(uiss(0)[10])
        A4=[232,16]
        RD=84
        RA=[8,124]
        red_addr = ["v_lshrrev_b32 v7, 2, v1", "v_and_b32 v8, 3, v1", "v_lshl_add_u32 v9, v8, 2, v7", "v_and_b32 v9, 15, v9", "v_lshlrev_b32 v9, 4, v9", "v_lshl_add_u32 v9, v8, 8, v9",
                    "v_lshlrev_b32 v7, 10, v7", "v_lshl_add_u32 v7, v8, 4, v7",
                    f"s_and_b32 {T}, {W}, 1", f"s_lshl_b32 {T}, {T}, 11", f"v_add_u32 v9, {T}, v9",
                    f"s_mov_b32 {T2}, 16384", f"s_cmp_lt_u32 {W}, 2\ns_cselect_b32 {T}, {RING:#x}, {T2}", f"v_add_u32 v{RA[0]}, {T}, v9",
                    f"s_lshr_b32 {T2}, {W}, 1", f"s_lshl_b32 {T}, {T2}, 14", f"s_add_u32 {T}, {T}, 0x8000", f"v_add_u32 v{RA[1]}, {T}, v9",
                    f"s_lshl_b32 {T}, {T2}, 12", f"v_add_u32 v9, {T}, v9"]
        def red_list(u):
            L = []
            for src in range(4):
                for b in range(2): L.append((f"ds_read_b128 {vr(RD+8*src+4*b)}, v{RA[u]} offset:{4096*src+1024*b}", f"rd{src}"))
            for b in range(2): L.append((f"ds_read_b128 {vr(RD+32+4*b)}, v9 offset:{8192*u+1024*b}", "rd4"))
            add = (lambda d, s: [f"v_add_f32 v{d+r}, v{d+r}, v{s+r}" for r in range(8)]) if u == 0 else (lambda d, s: [f"v_pk_add_f32 {pr(d+r)}, {pr(d+r)}, {pr(s+r)}" for r in range(0,8,2)])
            L.append(lambda: k.waitlg("rd1")); L += add(RD, RD+8)
            L.append(lambda: k.waitlg("rd3")); L += add(RD+16, RD+24)
            L.append(lambda: k.waitlg("rd4")); L += add(RD, RD+32) + add(RD, RD+16)
            L += [f"v_cvt_pk_bf16_f32 v{RD+8+r}, v{RD+2*r}, v{RD+2*r+1}" for r in range(4)]
            L.append((f"buffer_store_dwordx4 {vr(RD+8)}, v7, s[12:15], {sOut[u]} offen{' sc1' if OPT.get('outsc') else ''}", "out"))
            return L
        def ureg(t, c): return [UB[t]+4*ks+d for ks in range(2*c, min(2*c+2, 11)) for d in (0, 2)]
        k(f"v_add_u32 v2, {RING:#x}, v14")
        k.waitvm("u0_0")
        for x in maxl(ureg(0, 0)): k(x)
        br(DU, [0, 1])()
        k.waitlg("sp3")
        for t in range(4):
            a = A4[t%2]
            M = [M16(vr(a+4*nb), w4reg(ks,nb), vr(UB[t]+4*ks), 0 if ks == 0 else vr(a+4*nb)) for ks in range(11) for nb in range(4)]
            F = {}; G = {}; used = set()
            for c in range(1, 7):
                tt, cc, e = (t, c, 8*c) if c < 6 else (t+1, 0, 44)
                if tt > 3: continue
                L = maxl(ureg(tt, cc))
                e1 = e-1-len(L)-OPT.get('bdu', 1)
                F.setdefault(e1, []).append(lambda tt=tt, cc=cc: k.waitvm(f"u{tt}_{cc}"))
                for j, x in enumerate(L): G.setdefault(e1+j, []).append(x); used.add(e1+j)
                F.setdefault(e-1, []).append(br(DU, [11*tt+i for i in range(2*cc, min(2*cc+2, 11))]))
            if t >= 1:
                pa = A4[(t-1)%2]
                for nb in range(4): F.setdefault(OPT.get('w0', 8)+nb*OPT.get('ws', 1), []).append(f"ds_write_b128 v2, {vr(pa+4*nb)} offset:{1024*nb}" if t == 1 else f"ds_write_b128 v14, {vr(pa+4*nb)} offset:{16384*(t-1)+1024*nb}")
            for g in range(44):
                for x in UPOS.get(44*t+g, []): F.setdefault(g, []).append(x)
            if t == 0:
                F.setdefault(22, []).insert(0, lambda: k.waitvm("w4"))
                g3 = gelu_list(AC[1], SP[3], 3); n3 = OPT.get('g3t1', 0)
                assert n3 <= 36
                spreadw(G, g3[:len(g3)-n3], list(range(OPT.get('sl0', 2), OPT.get('g3end', 36))), F)
            if t == 1:
                if n3: spreadb(G, g3[len(g3)-n3:], list(range(0, OPT.get('g3e1', 14))), F)
                spread(G, red_addr, [i for i in range(max(14, OPT.get('g3e1', 14)), 44) if i not in used])
            if t == 2:
                F.setdefault(32, []).append("s_waitcnt lgkmcnt(0)"); F.setdefault(32, []).append("s_barrier")
            if t == 3:
                if OPT.get('rbal', 0): spreadb(G, red_list(0), list(range(0, 44)), F)
                else: spread(G, red_list(0), [i for i in range(0, 44) if i not in used])
            stream2(M, F, G)
            st(f"u_t{t}")
        for nb in range(4): k(f"ds_write_b128 v14, {vr(A4[1]+4*nb)} offset:{16384*3+1024*nb}")
        k("s_waitcnt lgkmcnt(0)\ns_barrier")
        st("m_w4e")
        for x in red_list(1): em(x)
        if fast != bool(OPT.get('slowtail')):
            if OPT.get('cnt'): k(f"s_mov_b32 s{k.sb}, {sCNT}")
            stamp_out(k, 1, 16, 18)
        if fast: k.label(done)
        k("s_endpgm")
        for L in tramp + stubs:
            for x in L:
                if x.endswith(":"): k.label(x[:-1])
                else: k(x)
    vq, lq = list(k.vmq), list(k.lgq)
    tail(True)
    hopend(k, 4, "L_code_end")
    k.label("L_code_end")
    k.label("L_tail_sc")
    k.vmq, k.lgq = list(vq), list(lq)
    k("s_nop 7")
    tail(False)
    for L in atr:
        for x in L:
            if x.endswith(":"): k.label(x[:-1])
            else: k(x)
    k.label("L_attn_slow")
    k("s_waitcnt vmcnt(0)")
    M=[C, C+1]; TM=C+2; TX=C+3; AL=C+4
    for X_ in range(2): k(f"v_mov_b32 v{M[X_]}, {fhex(-3.0e38)}")
    for r in range(32): k(f"v_mov_b32 v{O[0]+r}, 0")
    for r in range(8): k(f"v_mov_b32 v{V0+r}, {sONE}")
    k(f"s_lshl_b32 {sKV}, {HD}, 17\ns_add_u32 {sKV}, {sKV}, {KV:#x}\ns_mov_b32 {sRW}, 64\ns_mov_b32 {RET}, 0x0000ffff\ns_mov_b32 s{int(RET[1:])+1}, 0x0000ffff")
    k.label("L_attn_sloop")
    k(f"buffer_load_dwordx4 {vr(KR)}, v3, s[4:7], {sKV} offen")
    k(f"s_mov_b64 exec, {RETP}")
    k(f"buffer_load_dwordx4 {vr(V0)}, v14, s[4:7], {sKV} offen offset:1024")
    k(f"buffer_load_dwordx4 {vr(V1)}, v14, s[4:7], {sKV} offen offset:1536")
    k("s_mov_b64 exec, -1")
    k("s_waitcnt vmcnt(0)")
    for X_ in range(2):
        s = S[X_]; p = P[X_]
        k(M32(vr(s,16), vr(KR), vr([QA,QB][X_]), 0))
        k(f"v_max_f32 v{TM}, v{s}, v{s+1}")
        for r in range(2,16,2): k(f"v_max3_f32 v{TM}, v{TM}, v{s+r}, v{s+r+1}")
        k(f"v_mov_b32 v{TX}, v{TM}\nv_permlane32_swap_b32 v{TM}, v{TX}\nv_max3_f32 v{TM}, v{TM}, v{TX}, v{M[X_]}")
        k(f"v_sub_f32 v{AL}, v{M[X_]}, v{TM}\nv_exp_f32 v{AL}, v{AL}\nv_mov_b32 v{M[X_]}, v{TM}")
        for r in range(16): k(f"v_mul_f32 v{O[X_]+r}, v{O[X_]+r}, v{AL}")
        for r in range(16): k(f"v_sub_f32 v{s+r}, v{s+r}, v{TM}")
        for r in range(16): k(f"v_exp_f32 v{s+r}, v{s+r}")
        for r in range(8): k(f"v_cvt_pk_bf16_f32 v{p+r}, v{s+2*r}, v{s+2*r+1}")
        k(M32(vr(O[X_],16), vr(V0), vr(p), vr(O[X_],16)))
        k(M32(vr(O[X_],16), vr(V1), vr(p+4), vr(O[X_],16)))
    k("s_nop 15")
    k(f"s_add_u32 {sKV}, {sKV}, 2048\ns_sub_u32 {sRW}, {sRW}, 1\ns_cmp_lg_u32 {sRW}, 0\ns_cbranch_scc1 L_attn_sloop")
    k(f"v_rcp_f32 v{T0+4}, v{O[0]+8}\nv_rcp_f32 v{T0+6}, v{O[1]+8}")
    norm(0)
    k("s_nop 3")
    k("s_branch L_attn_fin")
    print("sgprs used up to", S_.n)
    return k

if __name__ == "__main__":
    out = sys.argv[1]
    for a in sys.argv[2:]:
        kk, v = a.split("="); OPT[kk] = int(v) if v.lstrip("-").isdigit() else v
    k2 = gen_k2(); n2 = k2.fix(verbose=bool(OPT.get('v')))
    k1 = gen_k1(); n1 = k1.fix(verbose=bool(OPT.get('v')))
    print("nops inserted", n1, n2, "verify errors", verify(k1), verify(k2))
    emit(out, [("qkv_kernel",256,512,163840),("main_kernel",256,256,163840)], [k1, k2], step=OPT.get('hopstep', 4096))
```

```python
import math, sys
from asmlib2 import *

QF=0x000000; KV=0x200000; OF=0x600000
SETB=0x800000; SETS=0x180000; GO=0; HO=0x40000; XO=0x80000; SO=0xC0000; UO=0xC8000
WOF=0x1400000; W1F=0x1480000; W2F=0x1500000; W3F=0x1580000; W4F=0x1700000
GM=0x18C0000
XT=0x1900000
DBGOFF=0x1E00000
WS_SZ=0x2000000
ONES=0x3F803F80
EPS=1e-5
LOG2E=1.4426950408889634
GA = -2*LOG2E*math.sqrt(2/math.pi)*0.044715
GB = -2*LOG2E*math.sqrt(2/math.pi)
OPT = dict(stamp=False, slow=False, I0=2, pref=True, rot=3, k1sc=1, gram=1, nv=3, cpf=55, hop=6, early=0, fill0=4, lastfill=54, spf=2, spft=54, spfs=2, prb=0, inl=3, la=6, w2g=10, lw1=10, lwo=0, u0s=1, lk=26, spu=58, r1=2, w0=1, ws=8, wl=4, g3end=40, w2s=1, xcg=1, clat=22)

def stamp(k, name):
    if not OPT['stamp']: return
    if not any(name.startswith(p) for p in OPT.get('sts','m').split(',')): return
    i = len(k.stn)
    if i >= k.smax: print("stamp dropped", name); return
    k.stn.append(name)
    if OPT['stamp']==4: k(f"s_mov_b32 s{k.sb+2*i}, {getattr(k,'cnt','0')} ; s_memtime")
    else: k(f"{'s_memtime' if OPT['stamp']==2 else 's_memrealtime'} s[{k.sb+2*i}:{k.sb+1+2*i}]")
    if OPT['stamp']==3 and name != 'end' and i+1 < k.smax:
        k.stn.append(name+"#")
        k(f"s_memtime s[{k.sb+2*i+2}:{k.sb+3+2*i}]")
def stamp_out(k, kidx, vt, sw):
    if not OPT['stamp']: return
    k("s_waitcnt vmcnt(0)")
    k.smax += 1
    OPT['sts'] = OPT.get('sts','m') + ',end'
    stamp(k, "end")
    nst = len(k.stn)-1
    k("s_waitcnt lgkmcnt(0)")
    k(f"s_lshl_b32 s61, s2, 2\ns_add_u32 s60, s{sw}, s61\ns_lshl_b32 s60, s60, 6\ns_add_u32 s60, s60, {DBGOFF+kidx*0x10000:#x}")
    for i in range(16): k(f"v_mov_b32 v{vt+i}, s{k.sb+2*min(i,nst)}")
    k(f"v_mov_b32 v{vt+16}, 0")
    for i in range(4): k(f"buffer_store_dwordx4 v[{vt+4*i}:{vt+4*i+3}], v{vt+16}, s[4:7], s60 offen offset:{16*i}")
    k.L.insert(0, "; STAMPS " + ",".join(k.stn))
    if OPT.get('dbo'):
        base = 0 if kidx == 0 else 5
        k(f"v_not_b32 v{vt+17}, v{vt}\ns_mov_b64 exec, 1")
        off0 = -512*kidx
        k(f"global_atomic_umax v{vt+16}, v{vt+17}, s[100:101] offset:{off0+4*base}")
        for i in range(min(nst+1, 4 if kidx == 0 else 10)): k(f"global_atomic_umax v{vt+16}, v{vt+i}, s[100:101] offset:{off0+4*(base+1+i)}")

def xhalf_add(k, a, t):
    k(f"v_mov_b32 v{t}, v{a}")
    k(f"v_permlane32_swap_b32 v{a}, v{t}")
    k(f"v_add_f32 v{a}, v{a}, v{t}")
def x16_add(k, a, t):
    k(f"v_mov_b32 v{t}, v{a}")
    k(f"v_permlane16_swap_b32 v{a}, v{t}")
    k(f"v_add_f32 v{a}, v{a}, v{t}")
def stats_from_sums(k, s, q, mu, r, t):
    k(f"v_mul_f32 v{mu}, {fhex(1/512)}, v{s}")
    k(f"v_mul_f32 v{q}, {fhex(1/512)}, v{q}")
    k(f"v_fma_f32 v{q}, -v{mu}, v{mu}, v{q}")
    k(f"v_max_f32 v{q}, 0, v{q}")
    k(f"v_add_f32 v{t}, {fhex(EPS)}, v{q}")
    k(f"v_rsq_f32 v{r}, v{t}")
def code_prefetch(k, lab0, lab1, part_sgpr, vt):
    sk = k.newlabel()
    k(f"s_lshl_b32 s64, s{part_sgpr}, 13")
    k(f"s_cmp_ge_u32 s64, {lab1}-{lab0}\ns_cbranch_scc1 {sk}")
    pc = k.newlabel()
    k("s_getpc_b64 s[62:63]")
    k.label(pc)
    k(f"s_add_u32 s62, s62, {lab0}-{pc}\ns_addc_u32 s63, s63, 0" if lab0 != "qkv_kernel" else f"s_sub_u32 s62, s62, {pc}-{lab0}\ns_subb_u32 s63, s63, 0")
    k(f"v_lshlrev_b32 v{vt}, 7, v1\nv_add_u32 v{vt}, s64, v{vt}\nv_min_u32 v{vt}, {lab1}-{lab0}-4, v{vt}\nv_mov_b32 v{vt+1}, s63")
    k(f"v_add_co_u32 v{vt}, vcc, s62, v{vt}\nv_addc_co_u32 v{vt+1}, vcc, 0, v{vt+1}, vcc")
    n0 = len(k.vmq)
    k(f"global_load_dword v{vt+2}, v[{vt}:{vt+1}], off")
    del k.vmq[n0:]
    k.label(sk)

def sj_decode(k, SJ, r):
    S = 48+4*r
    so, dst, fd, st = 84+4*r, 85+4*r, 86+4*r, 87+4*r
    SJ[r] = (S, so, dst, fd, st)
    k(f"s_mov_b32 s{S+3}, 0x00020000")
    end = k.newlabel()
    def pairmode(v, jstride, base):
        k(f"s_lshr_b32 s30, s{v}, 4\ns_and_b32 s31, s{v}, 15")
        k(f"s_lshl_b32 s{so}, s30, 15\ns_lshl_b32 s{fd}, s31, 6\ns_add_u32 s{so}, s{so}, s{fd}")
        k(f"s_lshr_b32 s{dst}, s31, 1\ns_mul_i32 s{dst}, s{dst}, {jstride}\ns_lshl_b32 s30, s30, 12\ns_add_u32 s{dst}, s{dst}, s30")
        k(f"s_and_b32 s31, s31, 1\ns_lshl_b32 s31, s31, 11\ns_add_u32 s{dst}, s{dst}, s31\ns_add_u32 s{dst}, s{dst}, {base}")
        k(f"s_mov_b32 s{fd}, 1024\ns_mov_b32 s{st}, 1024")
    def w4(off):
        k(f"s_mov_b32 s{S}, s46\ns_mov_b32 s{S+1}, s47\ns_mov_b32 s{S+2}, {1376*512*2:#x}")
        k(f"s_add_u32 s65, s29, {off & 0xffffffff:#x}")
        pairmode(65, 43*4096, f"{W4F:#x}")
    def w3(off, src="s29"):
        k(f"s_mov_b32 s{S}, s44\ns_mov_b32 s{S+1}, s45\ns_mov_b32 s{S+2}, {1376*512*2:#x}")
        k(f"s_add_u32 s65, {src}, {off & 0xffffffff:#x}")
        k(f"s_mul_i32 s30, s65, 1525\ns_lshr_b32 s30, s30, 16\ns_mul_i32 s31, s30, 43\ns_sub_u32 s31, s65, s31")
        k(f"s_mul_i32 s{so}, s30, {32*2752}\ns_lshl_b32 s{fd}, s31, 6\ns_add_u32 s{so}, s{so}, s{fd}")
        k(f"s_lshl_b32 s{dst}, s31, 15\ns_lshl_b32 s30, s30, 10\ns_add_u32 s{dst}, s{dst}, s30\ns_add_u32 s{dst}, s{dst}, {W3F:#x}")
        k(f"s_mov_b32 s{fd}, 16384\ns_mov_b32 s{st}, 2752")
    if r == 0:
        l4 = k.newlabel()
        k(f"s_cmp_ge_u32 s29, 768\ns_cbranch_scc1 {l4}")
        k(f"s_lshr_b32 s66, s29, 8")
        k(f"s_cmp_eq_u32 s66, 1\ns_cselect_b32 s{S}, s40, s36\ns_cselect_b32 s{S+1}, s41, s37")
        k(f"s_cmp_eq_u32 s66, 2\ns_cselect_b32 s{S}, s42, s{S}\ns_cselect_b32 s{S+1}, s43, s{S+1}")
        k(f"s_mov_b32 s{S+2}, {512*512*2:#x}")
        k(f"s_and_b32 s65, s29, 255\ns_lshl_b32 s66, s66, 19\ns_add_u32 s66, s66, {WOF:#x}")
        pairmode(65, 65536, "s66")
        k(f"s_branch {end}")
        k.label(l4); w4(-768)
    elif r == 1:
        l3 = k.newlabel()
        k(f"s_cmp_ge_u32 s29, 432\ns_cbranch_scc1 {l3}")
        w4(256); k(f"s_branch {end}")
        k.label(l3); w3(-432)
    else:
        w3(592, "s2")
    k.label(end)

SLOT=28928; XOFF=12288; XW=4160; STG=5*SLOT; MUA=STG+16384
def gen_k1():
    k = Kern("qkv_kernel", vgpr=200, sgpr=102); k.sb = 70; k.stn = []; k.smax = 6
    done = "L_k1_done"
    sc1 = ' sc1' if OPT.get('k1sc') else ''
    def em(x):
        if callable(x): x()
        elif isinstance(x, tuple): k(x[0], tag=x[1])
        else: k(x)
    k(f"s_cmp_ge_u32 s2, 256\ns_cbranch_scc1 {done}")
    stamp(k,"m_start")
    k("s_load_dwordx16 s[32:47], s[0:1], 0")
    k("s_load_dwordx2 s[4:5], s[0:1], 80")
    if OPT.get('dbo'): k("s_load_dwordx2 s[100:101], s[0:1], 72")
    k("v_lshrrev_b32 v2, 6, v0\nv_and_b32 v1, 63, v0")
    k(f"s_mov_b32 s6, {WS_SZ:#x}\ns_mov_b32 s7, 0x00020000")
    k("s_and_b32 s16, s2, 6\ns_lshl_b32 s16, s16, 1\ns_lshr_b32 s19, s2, 3\ns_and_b32 s18, s19, 3\ns_add_u32 s16, s16, s18")
    k("s_and_b32 s17, s2, 1\ns_lshl_b32 s17, s17, 3\ns_lshr_b32 s18, s19, 2\ns_add_u32 s17, s17, s18")
    k("v_readfirstlane_b32 s23, v2")
    k(f"s_xor_b32 s96, s17, 8\ns_add_u32 s97, s17, 4\ns_and_b32 s97, s97, 15")
    k("v_lshrrev_b32 v9, 2, v1\nv_and_b32 v10, 3, v1\nv_lshlrev_b32 v3, 4, v1")
    k("s_and_b32 s18, s23, 3")
    k("s_lshl_b32 s22, s16, 2\ns_add_u32 s22, s22, s18")
    k(f"s_mul_i32 s26, s18, 3072\ns_mul_i32 s27, s18, {XW}\ns_add_u32 s27, s27, {XOFF}")
    if OPT.get('gwx', 1): k("s_and_b32 s28, s2, 7\ns_lshl_b32 s28, s28, 5\ns_add_u32 s28, s28, s19")
    else: k("s_mov_b32 s28, s2")
    k("s_lshl_b32 s29, s28, 2\ns_add_u32 s29, s29, s18")
    k(f"s_lshl_b32 s99, s18, 8\ns_add_u32 s99, s99, s2\ns_lshl_b32 s67, s18, 12\ns_add_u32 s67, s67, {STG}\ns_add_u32 s68, s67, 2048\ns_mov_b32 s69, {MUA}")
    k("s_cmp_lt_u32 s23, 4\ns_cbranch_scc1 L_k1_comp")
    SEL=112; CP=168; CSX = MUA+1024
    def wtr(d):
        k("v_and_b32 v14, 31, v1\nv_lshrrev_b32 v15, 5, v1")
        k(f"v_and_b32 v{d}, 3, v9\nv_lshl_add_u32 v{d}, v15, 3, v{d}\nv_lshlrev_b32 v{d}, 6, v{d}\nv_and_b32 v28, 16, v1\nv_lshl_add_u32 v{d}, v28, 1, v{d}")
        k(f"v_and_b32 v28, 1, v1\nv_lshl_add_u32 v{d}, v28, 4, v{d}\nv_and_b32 v28, 2, v1\nv_lshl_add_u32 v{d}, v28, 2, v{d}")
        k(f"v_lshrrev_b32 v29, 4, v1\nv_xor_b32 v28, v9, v29\nv_and_b32 v28, 1, v28\nv_add_u32 v28, -1, v28\nv_and_b32 v{SEL}, {ONES:#x}, v28")
        for r in range(1,4): k(f"v_mov_b32 v{SEL+r}, v{SEL}")
    k(f"s_mov_b32 s10, {2048*512*2:#x}\ns_mov_b32 s11, 0x00020000\ns_mov_b32 s14, {512*1536*2:#x}\ns_mov_b32 s15, 0x00020000")
    k("v_mul_u32_u24 v8, 3072, v9\nv_lshl_add_u32 v8, v10, 4, v8")
    k("s_lshl_b32 s98, s96, 6\nv_add_u32 v16, s98, v8\ns_lshl_b32 s98, s97, 6\nv_add_u32 v17, s98, v8\ns_lshl_b32 s98, s17, 6\nv_add_u32 v8, s98, v8")
    k("v_lshrrev_b32 v11, 3, v1\nv_and_b32 v12, 7, v1\nv_and_b32 v13, 2, v11\nv_lshlrev_b32 v13, 1, v13\nv_xor_b32 v12, v12, v13")
    k("v_lshlrev_b32 v4, 10, v11\nv_lshl_add_u32 v4, v12, 4, v4")
    for i in range(1,4): k(f"v_add_u32 v{4+i}, {8192*i:#x}, v4")
    k("s_lshl_b32 s24, s22, 15")
    k(f"s_mul_i32 s25, s18, {16*3072}")
    k("s_lshl_b32 s20, s16, 1\ns_add_u32 s20, s20, s17\ns_and_b32 s20, s20, 7")
    def issue(c):
        sl = c % 5
        if c: k("s_add_u32 s20, s20, 1\ns_and_b32 s20, s20, 7")
        k(f"s_mul_i32 s21, s20, {64*3072}\ns_add_u32 m0, s26, {sl*SLOT}\ns_add_u32 s21, s25, s21")
        if c == 0:
            k("s_waitcnt lgkmcnt(0)")
            k("s_mov_b32 s12, s34\ns_mov_b32 s13, s35\ns_mov_b32 s8, s32\ns_mov_b32 s9, s33")
        for g in range(3): k(f"buffer_load_dwordx4 v{(8,16,17)[g]}, s[12:15], s21 offen offset:{1024*g} lds", tag=f"c{c}")
        k("s_lshl_b32 s21, s20, 7\ns_add_u32 s21, s24, s21")
        for i in range(4):
            k(f"s_add_u32 m0, s27, {sl*SLOT+i*1040}")
            k(f"buffer_load_dwordx4 v{4+i}, s[8:11], s21 offen lds", tag=f"c{c}")
    LA = OPT.get('k1la', 2)
    SJ = {}
    decode = lambda r: sj_decode(k, SJ, r)
    def sj_issue(r, m0expr):
        S, so, dst, fd, st = SJ[r]
        k(f"v_mul_u32_u24 v12, s{st}, v9\nv_lshl_add_u32 v12, v10, 4, v12")
        k(m0expr(0))
        k(f"buffer_load_dwordx4 v12, s[{S}:{S+3}], s{so} offen lds", tag=f"sj{r}")
        k(f"s_lshl_b32 s30, s{st}, 4\ns_add_u32 s30, s30, s{so}")
        k(m0expr(1024))
        k(f"buffer_load_dwordx4 v12, s[{S}:{S+3}], s30 offen lds", tag=f"sj{r}")
    def sj_rd(r, sbase, T):
        k(f"v_add_u32 v12, s{sbase}, v13")
        for b in range(2):
            for a in range(2): k(f"ds_read_b64_tr_b16 {vr(T+4*b+2*a,2)}, v12 offset:{256*a+8*b}")
    def sj_st(r, T, vo=3):
        S, so, dst, fd, st = SJ[r]
        k(f"s_add_u32 s30, s{dst}, s{fd}")
        if r == 2: k("s_cmp_ge_u32 s99, 96\ns_cselect_b32 s31, 0x80000000, 0\nv_add_u32 v12, s31, v3")
        k(f"buffer_store_dwordx4 {vr(T)}, v{vo}, s[4:7], s{dst} offen{sc1}", tag="st")
        k(f"buffer_store_dwordx4 {vr(T+4)}, v{vo}, s[4:7], s30 offen{sc1}", tag="st")
    def only96(f):
        sk = k.newlabel()
        k(f"s_cmp_ge_u32 s99, 96\ns_cbranch_scc1 {sk}")
        n0 = len(k.vmq)
        f()
        del k.vmq[n0:]
        k.label(sk)
    def clears():
        T = 192
        k(f"s_lshl_b32 s24, s29, 11\ns_add_u32 s24, s24, {OF:#x}")
        for r in range(4): k(f"v_mov_b32 v{T+r}, -1")
        k(f"s_cmp_gt_u32 s29, 287\ns_cselect_b32 s25, 0x80000000, 0\nv_add_u32 v12, s25, v3")
        k(f"s_lshl_b32 s25, s29, 10\ns_add_u32 s25, s25, {GM:#x}")
        return [f"buffer_store_dwordx4 {vr(T)}, v12, s[4:7], s25 offen sc1"] + [f"buffer_store_dwordx4 {vr(T)}, v3, s[4:7], s24 offen offset:{1024*i} sc1" for i in range(2)]
    assert XT == GM + 0x40000
    def sj012():
        sj_issue(2, lambda o: f"s_add_u32 m0, s69, {o}")
        sj_issue(0, lambda o: f"s_add_u32 m0, s67, {o}"); sj_issue(1, lambda o: f"s_add_u32 m0, s68, {o}")
    SJB = OPT.get('sjb', 3)
    sch = str(OPT.get('sch', '01.23.4.5.6.7' if OPT.get('sjk2') else '01.23.4s..5.67')).split('.')
    sch += ['']*(9-len(sch))
    for j in sch[0]: issue(int(j))
    if OPT.get('sjk2'): OPT['nosj'] = 1
    for r in range(3):
        if not OPT.get('sjk2'): decode(r)
    if not OPT.get('sjk2'): k("s_cmp_ge_u32 s99, 96\ns_cselect_b32 s58, 0, s58\ns_cselect_b32 s69, s67, s69")
    if OPT.get('sjfake'):
        for r in range(3): k(f"s_mov_b32 s{48+4*r}, s34\ns_mov_b32 s{49+4*r}, s35")
    sched = {c: sch[c+1] for c in range(8)}
    for c in range(8):
        for j in sched[c]: assert j == 's' or c < int(j) <= c+4
    SJA = int("".join(sch).split('s')[0][-1])
    k("v_lshrrev_b32 v13, 4, v1\nv_lshlrev_b32 v13, 3, v13\nv_and_b32 v14, 3, v9\nv_add_u32 v13, v13, v14\nv_lshlrev_b32 v13, 6, v13\nv_lshl_add_u32 v13, v10, 4, v13")
    wtr(20)
    k(f"v_add_u32 v20, s26, v20\nv_add_u32 v21, {2*SLOT:#x}, v20\nv_add_u32 v22, {4*SLOT:#x}, v20")
    k(f"s_lshl_b32 s30, s18, 2\ns_add_u32 s30, s30, {CSX}\nv_lshlrev_b32 v28, 4, v14\nv_add_u32 v28, s30, v28")
    last = max(c for c in sched if sched[c])
    for c in range(8):
        k.waitvm(f"c{c}")
        k("s_barrier")
        sl = c % 5; st = sl//2; imm = (sl-2*st)*SLOT
        for g in range(3):
            for a in range(2): k(f"ds_read_b64_tr_b16 {vr(32+4*g+2*a,2)}, v{20+st} offset:{imm+g*1024+a*256}")
        for j in sched[c]:
            if j == 's':
                if not OPT.get('nosj'): sj012()
            else: issue(int(j))
        if c == max(SJA+1, last) and not OPT.get('nosj'):
            sj_rd(0, 67, 44); sj_rd(1, 68, 52); sj_rd(2, 69, 68)
        k("s_waitcnt lgkmcnt(0)")
        for b in range(3): k(f"v_mfma_f32_16x16x32_bf16 {vr(CP+4*b)}, {vr(SEL)}, {vr(32+4*b)}, {0 if c == 0 else vr(CP+4*b)}")
        if c == max(SJA+1, last) and OPT.get('nosj', 0) != 1:
            sj_st(0, 44); sj_st(1, 52); sj_st(2, 68, 12)
    for b in range(3): k(f"ds_write_b32 v28, v{CP+4*b} offset:{512*b}")
    k("s_waitcnt lgkmcnt(0)\ns_barrier")
    if OPT.get('hop', 1) & 2: hopentry(k, "s18", "main_kernel", 4)
    k("s_endpgm")
    k.label("L_k1_comp")
    k.vmq = []; k.lgq = []
    if OPT['pref']:
        k("s_lshl_b32 s28, s19, 2\ns_add_u32 s28, s28, s18")
        code_prefetch(k, "qkv_kernel", "L_code_end", 28, 196)
    if OPT.get('hop', 1) & 4: hopentry(k, "s18", k.name, 4, 1)
    XA0=16; XA1=19; WA=22
    wtr(WA)
    k(f"v_lshrrev_b32 v25, 3, v14\nv_mul_u32_u24 v25, 1040, v25\nv_and_b32 v26, 7, v14\nv_lshl_add_u32 v25, v26, 7, v25\nv_lshl_add_u32 v25, v15, 4, v25\nv_add_u32 v25, s27, v25")
    k(f"v_and_b32 v26, 2, v14\nv_lshlrev_b32 v26, 5, v26\nv_add_u32 v{XA0}, v25, v26\nv_xor_b32 v26, 64, v26\nv_add_u32 v{XA1}, v25, v26")
    for b in (XA0, XA1, WA):
        k(f"v_add_u32 v{b+1}, {2*SLOT:#x}, v{b}\nv_add_u32 v{b+2}, {4*SLOT:#x}, v{b}")
    ACC=32; CSA=80; XB=[116,120,124]; WB=[128,140,152]; SUM=164; SQ=180; CV=188
    k(f"v_lshlrev_b32 v29, 4, v14\nv_add_u32 v29, {CSX}, v29")
    k(f"s_lshl_b32 s30, s18, 8\ns_add_u32 s30, s30, {MUA}")
    k("v_lshlrev_b32 v30, 2, v14\nv_add_u32 v30, s30, v30\nv_lshlrev_b32 v31, 4, v15\nv_add_u32 v31, s30, v31")
    k(f"s_lshl_b32 s31, s17, 17\ns_lshl_b32 s30, s22, 10\ns_add_u32 s31, s31, s30\ns_add_u32 s65, s31, 0x10000")
    k(f"s_lshl_b32 s30, s30, 1\ns_add_u32 s30, s30, {KV:#x}\ns_lshl_b32 s66, s96, 18\ns_add_u32 s66, s66, s30\ns_add_u32 s67, s66, 0x20000\ns_lshl_b32 s68, s97, 18\ns_add_u32 s68, s68, s30")
    k("v_lshrrev_b32 v26, 4, v14\nv_lshlrev_b32 v26, 17, v26\nv_and_b32 v27, 15, v14\nv_lshl_add_u32 v26, v27, 4, v26\nv_lshl_add_u32 v26, v15, 8, v26")
    k("v_cmp_eq_u32 s[40:41], 1, v10\nv_cmp_eq_u32 s[42:43], 2, v10\nv_cmp_eq_u32 s[44:45], 3, v10" if 0 else "")
    def reads(n):
        c, ks = n//4, n%4; sl = c%5; st = sl//2; imm = (sl-2*st)*SLOT
        L = [f"ds_read_b128 {vr(XB[n%3])}, v{(XA0 if ks<2 else XA1)+st} offset:{imm+32*(ks&1)}"]
        for g in range(3):
            for a in range(2): L.append(f"ds_read_b64_tr_b16 {vr(WB[n%3]+4*g+2*a,2)}, v{WA+st} offset:{imm+ks*3072+g*1024+a*256}")
        return [(x, f"r{n}") for x in L]
    XG = {}
    def put(n, g, L): XG.setdefault((n, g), []).extend(L)
    for i, x in enumerate(clears()):
        if not OPT.get('noclr') or i == 0: put(OPT.get('clat', 0)+i, 2, [x])
    if OPT.get('k1u'):
        n = OPT['k1u']
        k(f"s_lshr_b32 s26, s29, 7\ns_mul_i32 s26, s26, {SETS:#x}\ns_and_b32 s27, s29, 127\ns_mul_i32 s27, s27, {n*1024}\ns_add_u32 s26, s26, s27\ns_add_u32 s26, s26, {SETB+SETS-n*131072:#x}")
        k("v_add_u32 v13, 0x1000, v3\nv_add_u32 v11, 0x2000, v3")
        for i in range(n): put(OPT.get('k1ut', 3)+OPT.get('k1us', 1)*i, 2, [f"buffer_store_dwordx4 v[192:195], v{(3,13,11)[i//4]}, s[4:7], s26 offen offset:{1024*(i%4)} sc1"])
    put(29, 0, ["s_barrier"] + [(f"ds_read_b128 {vr(CP+4*b)}, v29 offset:{512*b}", "cx") for b in range(3)])
    put(30, 0, [lambda: k.waitlg("cx")] + [f"v_add_f32 v{CP+4*b+r}, v{CP+4*b+r}, v{CP+4*b+r+1}" for b in range(2) for r in (0, 2)])
    put(30, 1, [f"v_add_f32 v{CP+4*b}, v{CP+4*b}, v{CP+4*b+2}" for b in range(2)] + [f"v_add_f32 v{CP+8+r}, v{CP+8+r}, v{CP+8+r+1}" for r in (0, 2)])
    put(30, 2, [f"ds_write_b32 v30, v{CP+4*b} offset:{128*b}" for b in range(2)] + [f"v_add_f32 v{CV}, v{CP+8}, v{CP+10}"])
    put(31, 0, [(f"ds_read_b128 {vr(CSA+16+4*a)}, v31 offset:{128+32*a}", "cb") for a in range(4)])
    put(31, 1, [(f"ds_read_b128 {vr(CSA+4*a)}, v31 offset:{32*a}", "ca") for a in range(4)])
    k("s_waitcnt lgkmcnt(0)")
    k("v_cmp_eq_u32 s[40:41], 1, v10\nv_cmp_eq_u32 s[42:43], 2, v10\nv_cmp_eq_u32 s[44:45], 3, v10")
    stamp(k,"m_pre")
    k("s_barrier")
    stamp(k,"m_c0")
    for x in reads(0) + reads(1): em(x)
    for n in range(32):
        c = n//4; x = XB[n%3]; w = WB[n%3]
        z = lambda a, q=16: 0 if n == 0 else vr(a, q)
        S3 = [f"v_mfma_f32_16x16x32_bf16 {vr(SUM)}, {vr(SEL)}, {vr(x)}, {z(SUM,4)}",
              f"v_mfma_f32_4x4x4_16b_bf16 {vr(SQ)}, {vr(x,2)}, {vr(x,2)}, {z(SQ,4)}",
              f"v_mfma_f32_4x4x4_16b_bf16 {vr(SQ+4)}, {vr(x+2,2)}, {vr(x+2,2)}, {z(SQ+4,4)}"]
        M = [f"v_mfma_f32_32x32x16_bf16 {vr(ACC+16,16)}, {vr(w+4)}, {vr(x)}, {z(ACC+16)}",
             f"v_mfma_f32_32x32x16_bf16 {vr(ACC,16)}, {vr(w)}, {vr(x)}, {z(ACC)}",
             f"v_mfma_f32_32x32x16_bf16 {vr(ACC+32,16)}, {vr(x)}, {vr(w+8)}, {z(ACC+32)}"]
        G = {i: [] for i in range(len(M))}
        if n % 4 == 2 and n < 28:
            G[0] += (["s_waitcnt lgkmcnt(0)"] if c <= 3 else []) + ["s_barrier", lambda c=c: stamp(k, f"{'a' if c<3 else 'b'}_c{c+1}")]
        R = reads(n+2) if n < 30 else []
        G[0] += R[0:3]; G[1] += R[3:5]; G[2] += R[5:7]
        for g in range(3): G[g] += XG.get((n, g), [])
        k.waitlg(f"r{n}")
        for y in S3: k(y)
        for i, m in enumerate(M):
            k(m)
            for y in G[i]: em(y)
            if n == 31 and i == 1:
                MU=16; RS=18; QS=20
                for r in range(4): k(f"v_add_f32 v{SQ+r}, v{SQ+r}, v{SQ+4+r}")
                for r in range(1,4): k(f"v_cndmask_b32 v{SQ}, v{SQ}, v{SQ+r}, s[{38+2*r}:{39+2*r}]")
                xhalf_add(k, SQ, 25)
    stamp(k,"m_loop")
    pr = lambda b: vr(b, 2)
    stats_from_sums(k, SUM, SQ, MU, RS, 25)
    k.waitlg("ca")
    k(f"ds_write_b32 v30, v{MU}\nds_write_b32 v30, v{RS} offset:128")
    k(f"v_mul_f32 v{QS}, {fhex(0.25*LOG2E)}, v{RS}")
    TM=128
    for a in range(4): k(f"ds_read_b128 {vr(TM+4*a)}, v31 offset:{32*a}\nds_read_b128 {vr(TM+16+4*a)}, v31 offset:{128+32*a}")
    P=164
    def qk(b):
        for hf in range(2):
            R = range(8*hf, 8*hf+8, 2)
            for r in R: k(f"v_pk_fma_f32 {pr(ACC+16*b+r)}, {pr(MU)}, {pr(CSA+16*b+r)}, {pr(ACC+16*b+r)} op_sel_hi:[0,1,1] neg_lo:[1,0,0] neg_hi:[1,0,0]")
            for r in R: k(f"v_pk_mul_f32 {pr(ACC+16*b+r)}, {pr(QS if b==0 else RS)}, {pr(ACC+16*b+r)} op_sel_hi:[0,1]")
            for r in R: k(f"v_cvt_pk_bf16_f32 v{P+8*b+r//2}, v{ACC+16*b+r}, v{ACC+16*b+r+1}")
            k(f"buffer_store_dwordx4 {vr(P+8*b+4*hf)}, v3, s[4:7], s{[[31,65],[66,67]][b][hf]} offen{sc1}")
    qk(1)
    k("s_waitcnt lgkmcnt(0)")
    for hf in range(2):
        R = range(8*hf, 8*hf+8, 2)
        for r in R: k(f"v_pk_fma_f32 {pr(ACC+32+r)}, {pr(TM+r)}, {pr(CV)}, {pr(ACC+32+r)} op_sel_hi:[1,0,1] neg_lo:[1,0,0] neg_hi:[1,0,0]")
        for r in R: k(f"v_pk_mul_f32 {pr(ACC+32+r)}, {pr(TM+16+r)}, {pr(ACC+32+r)}")
        for r in R: k(f"v_cvt_pk_bf16_f32 v{P+16+r//2}, v{ACC+32+r}, v{ACC+32+r+1}")
        k(f"buffer_store_dwordx4 {vr(P+16+4*hf)}, v26, s[4:7], s68 offen offset:{1024+512*hf}{sc1}")
    qk(0)
    stamp(k,"m_epi")
    stamp_out(k, 0, 32, 18)
    k.label(done)
    k("s_endpgm")
    hopend(k, 4, "L_k1_end")
    k.label("L_k1_end")
    return k
```

```python
import math, sys
from asmlib2 import *

QF=0x000000; KV=0x200000; OF=0x600000
SETB=0x800000; SETS=0x180000; GO=0; HO=0x40000; XO=0x80000; SO=0xC0000; UO=0xC8000
WOF=0x1400000; W1F=0x1480000; W2F=0x1500000; W3F=0x1580000; W4F=0x1700000
GM=0x18C0000
XT=0x1900000
DBGOFF=0x1E00000
WS_SZ=0x2000000
ONES=0x3F803F80
EPS=1e-5
LOG2E=1.4426950408889634
GA = -2*LOG2E*math.sqrt(2/math.pi)*0.044715
GB = -2*LOG2E*math.sqrt(2/math.pi)
OPT = dict(stamp=False, slow=False, I0=2, pref=True, rot=3, k1sc=1, gram=1, nv=3, cpf=55, hop=6, early=0, fill0=4, lastfill=54, spf=2, spft=54, spfs=2, prb=0, inl=3, la=6, w2g=10, lw1=10, lwo=0, u0s=1, lk=26, spu=58, r1=2, w0=1, ws=8, wl=4, g3end=40, w2s=1, xcg=1, clat=22)

def stamp(k, name):
    if not OPT['stamp']: return
    if not any(name.startswith(p) for p in OPT.get('sts','m').split(',')): return
    i = len(k.stn)
    if i >= k.smax: print("stamp dropped", name); return
    k.stn.append(name)
    if OPT['stamp']==4: k(f"s_mov_b32 s{k.sb+2*i}, {getattr(k,'cnt','0')} ; s_memtime")
    else: k(f"{'s_memtime' if OPT['stamp']==2 else 's_memrealtime'} s[{k.sb+2*i}:{k.sb+1+2*i}]")
    if OPT['stamp']==3 and name != 'end' and i+1 < k.smax:
        k.stn.append(name+"#")
        k(f"s_memtime s[{k.sb+2*i+2}:{k.sb+3+2*i}]")
def stamp_out(k, kidx, vt, sw):
    if not OPT['stamp']: return
    k("s_waitcnt vmcnt(0)")
    k.smax += 1
    OPT['sts'] = OPT.get('sts','m') + ',end'
    stamp(k, "end")
    nst = len(k.stn)-1
    k("s_waitcnt lgkmcnt(0)")
    k(f"s_lshl_b32 s61, s2, 2\ns_add_u32 s60, s{sw}, s61\ns_lshl_b32 s60, s60, 6\ns_add_u32 s60, s60, {DBGOFF+kidx*0x10000:#x}")
    for i in range(16): k(f"v_mov_b32 v{vt+i}, s{k.sb+2*min(i,nst)}")
    k(f"v_mov_b32 v{vt+16}, 0")
    for i in range(4): k(f"buffer_store_dwordx4 v[{vt+4*i}:{vt+4*i+3}], v{vt+16}, s[4:7], s60 offen offset:{16*i}")
    k.L.insert(0, "; STAMPS " + ",".join(k.stn))
    if OPT.get('dbo') and kidx == 1:
        k(f"s_sub_u32 s60, s60, 0x10000\nbuffer_load_dwordx4 v[{vt+20}:{vt+23}], v{vt+16}, s[4:7], s60 offen sc1\ns_waitcnt vmcnt(0)")
        k(f"v_not_b32 v{vt+17}, v{vt}\nv_not_b32 v{vt+19}, v{vt+20}\ns_mov_b64 exec, 1")
        for i in range(5): k(f"global_atomic_umax v{vt+16}, v{vt+19+i}, s[100:101] offset:{4*i}")
        k(f"global_atomic_umax v{vt+16}, v{vt+17}, s[100:101] offset:20")
        for i in range(min(nst+1, 10)): k(f"global_atomic_umax v{vt+16}, v{vt+i}, s[100:101] offset:{4*(6+i)}")

def xhalf_add(k, a, t):
    k(f"v_mov_b32 v{t}, v{a}")
    k(f"v_permlane32_swap_b32 v{a}, v{t}")
    k(f"v_add_f32 v{a}, v{a}, v{t}")
def x16_add(k, a, t):
    k(f"v_mov_b32 v{t}, v{a}")
    k(f"v_permlane16_swap_b32 v{a}, v{t}")
    k(f"v_add_f32 v{a}, v{a}, v{t}")
def stats_from_sums(k, s, q, mu, r, t):
    k(f"v_mul_f32 v{mu}, {fhex(1/512)}, v{s}")
    k(f"v_mul_f32 v{q}, {fhex(1/512)}, v{q}")
    k(f"v_fma_f32 v{q}, -v{mu}, v{mu}, v{q}")
    k(f"v_max_f32 v{q}, 0, v{q}")
    k(f"v_add_f32 v{t}, {fhex(EPS)}, v{q}")
    k(f"v_rsq_f32 v{r}, v{t}")
def code_prefetch(k, lab0, lab1, part_sgpr, vt):
    sk = k.newlabel()
    k(f"s_lshl_b32 s64, s{part_sgpr}, 13")
    k(f"s_cmp_ge_u32 s64, {lab1}-{lab0}\ns_cbranch_scc1 {sk}")
    pc = k.newlabel()
    k("s_getpc_b64 s[62:63]")
    k.label(pc)
    k(f"s_add_u32 s62, s62, {lab0}-{pc}\ns_addc_u32 s63, s63, 0" if lab0 != "qkv_kernel" else f"s_sub_u32 s62, s62, {pc}-{lab0}\ns_subb_u32 s63, s63, 0")
    k(f"v_lshlrev_b32 v{vt}, 7, v1\nv_add_u32 v{vt}, s64, v{vt}\nv_min_u32 v{vt}, {lab1}-{lab0}-4, v{vt}\nv_mov_b32 v{vt+1}, s63")
    k(f"v_add_co_u32 v{vt}, vcc, s62, v{vt}\nv_addc_co_u32 v{vt+1}, vcc, 0, v{vt+1}, vcc")
    n0 = len(k.vmq)
    k(f"global_load_dword v{vt+2}, v[{vt}:{vt+1}], off")
    del k.vmq[n0:]
    k.label(sk)

def sj_decode(k, SJ, r):
    S = 48+4*r
    so, dst, fd, st = 84+4*r, 85+4*r, 86+4*r, 87+4*r
    SJ[r] = (S, so, dst, fd, st)
    k(f"s_mov_b32 s{S+3}, 0x00020000")
    end = k.newlabel()
    def pairmode(v, jstride, base):
        k(f"s_lshr_b32 s30, s{v}, 4\ns_and_b32 s31, s{v}, 15")
        k(f"s_lshl_b32 s{so}, s30, 15\ns_lshl_b32 s{fd}, s31, 6\ns_add_u32 s{so}, s{so}, s{fd}")
        k(f"s_lshr_b32 s{dst}, s31, 1\ns_mul_i32 s{dst}, s{dst}, {jstride}\ns_lshl_b32 s30, s30, 12\ns_add_u32 s{dst}, s{dst}, s30")
        k(f"s_and_b32 s31, s31, 1\ns_lshl_b32 s31, s31, 11\ns_add_u32 s{dst}, s{dst}, s31\ns_add_u32 s{dst}, s{dst}, {base}")
        k(f"s_mov_b32 s{fd}, 1024\ns_mov_b32 s{st}, 1024")
    def w4(off):
        k(f"s_mov_b32 s{S}, s46\ns_mov_b32 s{S+1}, s47\ns_mov_b32 s{S+2}, {1376*512*2:#x}")
        k(f"s_add_u32 s65, s29, {off & 0xffffffff:#x}")
        pairmode(65, 43*4096, f"{W4F:#x}")
    def w3(off, src="s29"):
        k(f"s_mov_b32 s{S}, s44\ns_mov_b32 s{S+1}, s45\ns_mov_b32 s{S+2}, {1376*512*2:#x}")
        k(f"s_add_u32 s65, {src}, {off & 0xffffffff:#x}")
        k(f"s_mul_i32 s30, s65, 1525\ns_lshr_b32 s30, s30, 16\ns_mul_i32 s31, s30, 43\ns_sub_u32 s31, s65, s31")
        k(f"s_mul_i32 s{so}, s30, {32*2752}\ns_lshl_b32 s{fd}, s31, 6\ns_add_u32 s{so}, s{so}, s{fd}")
        k(f"s_lshl_b32 s{dst}, s31, 15\ns_lshl_b32 s30, s30, 10\ns_add_u32 s{dst}, s{dst}, s30\ns_add_u32 s{dst}, s{dst}, {W3F:#x}")
        k(f"s_mov_b32 s{fd}, 16384\ns_mov_b32 s{st}, 2752")
    if r == 0:
        l4 = k.newlabel()
        k(f"s_cmp_ge_u32 s29, 768\ns_cbranch_scc1 {l4}")
        k(f"s_lshr_b32 s66, s29, 8")
        k(f"s_cmp_eq_u32 s66, 1\ns_cselect_b32 s{S}, s40, s36\ns_cselect_b32 s{S+1}, s41, s37")
        k(f"s_cmp_eq_u32 s66, 2\ns_cselect_b32 s{S}, s42, s{S}\ns_cselect_b32 s{S+1}, s43, s{S+1}")
        k(f"s_mov_b32 s{S+2}, {512*512*2:#x}")
        k(f"s_and_b32 s65, s29, 255\ns_lshl_b32 s66, s66, 19\ns_add_u32 s66, s66, {WOF:#x}")
        pairmode(65, 65536, "s66")
        k(f"s_branch {end}")
        k.label(l4); w4(-768)
    elif r == 1:
        l3 = k.newlabel()
        k(f"s_cmp_ge_u32 s29, 432\ns_cbranch_scc1 {l3}")
        w4(256); k(f"s_branch {end}")
        k.label(l3); w3(-432)
    else:
        w3(592, "s2")
    k.label(end)

SLOT=28928; XOFF=12288; XW=4160; STG=5*SLOT; MUA=STG+16384
def gen_k1():
    k = Kern("qkv_kernel", vgpr=200, sgpr=102); k.sb = 70; k.stn = []; k.smax = 6
    done = "L_k1_done"
    sc1 = ' sc1' if OPT.get('k1sc') else ''
    def em(x):
        if callable(x): x()
        elif isinstance(x, tuple): k(x[0], tag=x[1])
        else: k(x)
    k(f"s_cmp_ge_u32 s2, 256\ns_cbranch_scc1 {done}")
    stamp(k,"m_start")
    k("s_load_dwordx16 s[32:47], s[0:1], 0")
    k("s_load_dwordx2 s[4:5], s[0:1], 80")
    if OPT.get('dbo'): k("s_load_dwordx2 s[100:101], s[0:1], 72")
    k("v_lshrrev_b32 v2, 6, v0\nv_and_b32 v1, 63, v0")
    k(f"s_mov_b32 s6, {WS_SZ:#x}\ns_mov_b32 s7, 0x00020000")
    k("s_and_b32 s16, s2, 6\ns_lshl_b32 s16, s16, 1\ns_lshr_b32 s19, s2, 3\ns_and_b32 s18, s19, 3\ns_add_u32 s16, s16, s18")
    k("s_and_b32 s17, s2, 1\ns_lshl_b32 s17, s17, 3\ns_lshr_b32 s18, s19, 2\ns_add_u32 s17, s17, s18")
    k("v_readfirstlane_b32 s23, v2")
    k(f"s_xor_b32 s96, s17, 8\ns_add_u32 s97, s17, 4\ns_and_b32 s97, s97, 15")
    k("v_lshrrev_b32 v9, 2, v1\nv_and_b32 v10, 3, v1\nv_lshlrev_b32 v3, 4, v1")
    k("s_and_b32 s18, s23, 3")
    k("s_lshl_b32 s22, s16, 2\ns_add_u32 s22, s22, s18")
    k(f"s_mul_i32 s26, s18, 3072\ns_mul_i32 s27, s18, {XW}\ns_add_u32 s27, s27, {XOFF}")
    if OPT.get('gwx', 1): k("s_and_b32 s28, s2, 7\ns_lshl_b32 s28, s28, 5\ns_add_u32 s28, s28, s19")
    else: k("s_mov_b32 s28, s2")
    k("s_lshl_b32 s29, s28, 2\ns_add_u32 s29, s29, s18")
    k(f"s_lshl_b32 s99, s18, 8\ns_add_u32 s99, s99, s2\ns_lshl_b32 s67, s18, 12\ns_add_u32 s67, s67, {STG}\ns_add_u32 s68, s67, 2048\ns_mov_b32 s69, {MUA}")
    k("s_cmp_lt_u32 s23, 4\ns_cbranch_scc1 L_k1_comp")
    SEL=112; CP=168; CSX = MUA+1024
    def wtr(d):
        k("v_and_b32 v14, 31, v1\nv_lshrrev_b32 v15, 5, v1")
        k(f"v_and_b32 v{d}, 3, v9\nv_lshl_add_u32 v{d}, v15, 3, v{d}\nv_lshlrev_b32 v{d}, 6, v{d}\nv_and_b32 v28, 16, v1\nv_lshl_add_u32 v{d}, v28, 1, v{d}")
        k(f"v_and_b32 v28, 1, v1\nv_lshl_add_u32 v{d}, v28, 4, v{d}\nv_and_b32 v28, 2, v1\nv_lshl_add_u32 v{d}, v28, 2, v{d}")
        k(f"v_lshrrev_b32 v29, 4, v1\nv_xor_b32 v28, v9, v29\nv_and_b32 v28, 1, v28\nv_add_u32 v28, -1, v28\nv_and_b32 v{SEL}, {ONES:#x}, v28")
        for r in range(1,4): k(f"v_mov_b32 v{SEL+r}, v{SEL}")
    k(f"s_mov_b32 s10, {2048*512*2:#x}\ns_mov_b32 s11, 0x00020000\ns_mov_b32 s14, {512*1536*2:#x}\ns_mov_b32 s15, 0x00020000")
    k("v_mul_u32_u24 v8, 3072, v9\nv_lshl_add_u32 v8, v10, 4, v8")
    k("s_lshl_b32 s98, s96, 6\nv_add_u32 v16, s98, v8\ns_lshl_b32 s98, s97, 6\nv_add_u32 v17, s98, v8\ns_lshl_b32 s98, s17, 6\nv_add_u32 v8, s98, v8")
    k("v_lshrrev_b32 v11, 3, v1\nv_and_b32 v12, 7, v1\nv_and_b32 v13, 2, v11\nv_lshlrev_b32 v13, 1, v13\nv_xor_b32 v12, v12, v13")
    k("v_lshlrev_b32 v4, 10, v11\nv_lshl_add_u32 v4, v12, 4, v4")
    for i in range(1,4): k(f"v_add_u32 v{4+i}, {8192*i:#x}, v4")
    k("s_lshl_b32 s24, s22, 15")
    k(f"s_mul_i32 s25, s18, {16*3072}")
    k("s_lshl_b32 s20, s16, 1\ns_add_u32 s20, s20, s17\ns_and_b32 s20, s20, 7")
    def issue(c):
        sl = c % 5
        if c: k("s_add_u32 s20, s20, 1\ns_and_b32 s20, s20, 7")
        k(f"s_mul_i32 s21, s20, {64*3072}\ns_add_u32 m0, s26, {sl*SLOT}\ns_add_u32 s21, s25, s21")
        if c == 0:
            k("s_waitcnt lgkmcnt(0)")
            k("s_mov_b32 s12, s34\ns_mov_b32 s13, s35\ns_mov_b32 s8, s32\ns_mov_b32 s9, s33")
        for g in range(3): k(f"buffer_load_dwordx4 v{(8,16,17)[g]}, s[12:15], s21 offen offset:{1024*g} lds", tag=f"c{c}")
        k("s_lshl_b32 s21, s20, 7\ns_add_u32 s21, s24, s21")
        for i in range(4):
            k(f"s_add_u32 m0, s27, {sl*SLOT+i*1040}")
            k(f"buffer_load_dwordx4 v{4+i}, s[8:11], s21 offen lds", tag=f"c{c}")
    LA = OPT.get('k1la', 2)
    SJ = {}
    decode = lambda r: sj_decode(k, SJ, r)
    def sj_issue(r, m0expr):
        S, so, dst, fd, st = SJ[r]
        k(f"v_mul_u32_u24 v12, s{st}, v9\nv_lshl_add_u32 v12, v10, 4, v12")
        k(m0expr(0))
        k(f"buffer_load_dwordx4 v12, s[{S}:{S+3}], s{so} offen lds", tag=f"sj{r}")
        k(f"s_lshl_b32 s30, s{st}, 4\ns_add_u32 s30, s30, s{so}")
        k(m0expr(1024))
        k(f"buffer_load_dwordx4 v12, s[{S}:{S+3}], s30 offen lds", tag=f"sj{r}")
    def sj_rd(r, sbase, T):
        k(f"v_add_u32 v12, s{sbase}, v13")
        for b in range(2):
            for a in range(2): k(f"ds_read_b64_tr_b16 {vr(T+4*b+2*a,2)}, v12 offset:{256*a+8*b}")
    def sj_st(r, T, vo=3):
        S, so, dst, fd, st = SJ[r]
        k(f"s_add_u32 s30, s{dst}, s{fd}")
        if r == 2: k("s_cmp_ge_u32 s99, 96\ns_cselect_b32 s31, 0x80000000, 0\nv_add_u32 v12, s31, v3")
        k(f"buffer_store_dwordx4 {vr(T)}, v{vo}, s[4:7], s{dst} offen{sc1}", tag="st")
        k(f"buffer_store_dwordx4 {vr(T+4)}, v{vo}, s[4:7], s30 offen{sc1}", tag="st")
    def only96(f):
        sk = k.newlabel()
        k(f"s_cmp_ge_u32 s99, 96\ns_cbranch_scc1 {sk}")
        n0 = len(k.vmq)
        f()
        del k.vmq[n0:]
        k.label(sk)
    def clears():
        T = 192
        k(f"s_lshl_b32 s24, s29, 11\ns_add_u32 s24, s24, {OF:#x}")
        for r in range(4): k(f"v_mov_b32 v{T+r}, -1")
        k(f"s_cmp_gt_u32 s29, 287\ns_cselect_b32 s25, 0x80000000, 0\nv_add_u32 v12, s25, v3")
        k(f"s_lshl_b32 s25, s29, 10\ns_add_u32 s25, s25, {GM:#x}")
        return [f"buffer_store_dwordx4 {vr(T)}, v12, s[4:7], s25 offen sc1"] + [f"buffer_store_dwordx4 {vr(T)}, v3, s[4:7], s24 offen offset:{1024*i} sc1" for i in range(2)]
    assert XT == GM + 0x40000
    def sj012():
        sj_issue(2, lambda o: f"s_add_u32 m0, s69, {o}")
        sj_issue(0, lambda o: f"s_add_u32 m0, s67, {o}"); sj_issue(1, lambda o: f"s_add_u32 m0, s68, {o}")
    SJB = OPT.get('sjb', 3)
    sch = str(OPT.get('sch', '01.23.4.5.6.7' if OPT.get('sjk2') else '01.23.4s..5.67')).split('.')
    sch += ['']*(9-len(sch))
    for j in sch[0]: issue(int(j))
    if OPT.get('sjk2'): OPT['nosj'] = 1
    for r in range(3):
        if not OPT.get('sjk2'): decode(r)
    if not OPT.get('sjk2'): k("s_cmp_ge_u32 s99, 96\ns_cselect_b32 s58, 0, s58\ns_cselect_b32 s69, s67, s69")
    if OPT.get('sjfake'):
        for r in range(3): k(f"s_mov_b32 s{48+4*r}, s34\ns_mov_b32 s{49+4*r}, s35")
    sched = {c: sch[c+1] for c in range(8)}
    for c in range(8):
        for j in sched[c]: assert j == 's' or c < int(j) <= c+4
    SJA = int("".join(sch).split('s')[0][-1])
    k("v_lshrrev_b32 v13, 4, v1\nv_lshlrev_b32 v13, 3, v13\nv_and_b32 v14, 3, v9\nv_add_u32 v13, v13, v14\nv_lshlrev_b32 v13, 6, v13\nv_lshl_add_u32 v13, v10, 4, v13")
    wtr(20)
    k(f"v_add_u32 v20, s26, v20\nv_add_u32 v21, {2*SLOT:#x}, v20\nv_add_u32 v22, {4*SLOT:#x}, v20")
    k(f"s_lshl_b32 s30, s18, 2\ns_add_u32 s30, s30, {CSX}\nv_lshlrev_b32 v28, 4, v14\nv_add_u32 v28, s30, v28")
    last = max(c for c in sched if sched[c])
    for c in range(8):
        k.waitvm(f"c{c}")
        k("s_barrier")
        sl = c % 5; st = sl//2; imm = (sl-2*st)*SLOT
        for g in range(3):
            for a in range(2): k(f"ds_read_b64_tr_b16 {vr(32+4*g+2*a,2)}, v{20+st} offset:{imm+g*1024+a*256}")
        for j in sched[c]:
            if j == 's':
                if not OPT.get('nosj'): sj012()
            else: issue(int(j))
        if c == max(SJA+1, last) and not OPT.get('nosj'):
            sj_rd(0, 67, 44); sj_rd(1, 68, 52); sj_rd(2, 69, 68)
        k("s_waitcnt lgkmcnt(0)")
        for b in range(3): k(f"v_mfma_f32_16x16x32_bf16 {vr(CP+4*b)}, {vr(SEL)}, {vr(32+4*b)}, {0 if c == 0 else vr(CP+4*b)}")
        if c == max(SJA+1, last) and OPT.get('nosj', 0) != 1:
            sj_st(0, 44); sj_st(1, 52); sj_st(2, 68, 12)
    for b in range(3): k(f"ds_write_b32 v28, v{CP+4*b} offset:{512*b}")
    k("s_waitcnt lgkmcnt(0)\ns_barrier")
    if OPT.get('hop', 1) & 2: hopentry(k, "s18", "main_kernel", 4)
    k("s_endpgm")
    k.label("L_k1_comp")
    k.vmq = []; k.lgq = []
    if OPT['pref']:
        k("s_lshl_b32 s28, s19, 2\ns_add_u32 s28, s28, s18")
        code_prefetch(k, "qkv_kernel", "L_code_end", 28, 196)
    if OPT.get('hop', 1) & 4: hopentry(k, "s18", k.name, 4, 1)
    XA0=16; XA1=19; WA=22
    wtr(WA)
    k(f"v_lshrrev_b32 v25, 3, v14\nv_mul_u32_u24 v25, 1040, v25\nv_and_b32 v26, 7, v14\nv_lshl_add_u32 v25, v26, 7, v25\nv_lshl_add_u32 v25, v15, 4, v25\nv_add_u32 v25, s27, v25")
    k(f"v_and_b32 v26, 2, v14\nv_lshlrev_b32 v26, 5, v26\nv_add_u32 v{XA0}, v25, v26\nv_xor_b32 v26, 64, v26\nv_add_u32 v{XA1}, v25, v26")
    for b in (XA0, XA1, WA):
        k(f"v_add_u32 v{b+1}, {2*SLOT:#x}, v{b}\nv_add_u32 v{b+2}, {4*SLOT:#x}, v{b}")
    ACC=32; CSA=80; XB=[116,120,124]; WB=[128,140,152]; SUM=164; SQ=180; CV=188
    k(f"v_lshlrev_b32 v29, 4, v14\nv_add_u32 v29, {CSX}, v29")
    k(f"s_lshl_b32 s30, s18, 8\ns_add_u32 s30, s30, {MUA}")
    k("v_lshlrev_b32 v30, 2, v14\nv_add_u32 v30, s30, v30\nv_lshlrev_b32 v31, 4, v15\nv_add_u32 v31, s30, v31")
    k(f"s_lshl_b32 s31, s17, 17\ns_lshl_b32 s30, s22, 10\ns_add_u32 s31, s31, s30\ns_add_u32 s65, s31, 0x10000")
    k(f"s_lshl_b32 s30, s30, 1\ns_add_u32 s30, s30, {KV:#x}\ns_lshl_b32 s66, s96, 18\ns_add_u32 s66, s66, s30\ns_add_u32 s67, s66, 0x20000\ns_lshl_b32 s68, s97, 18\ns_add_u32 s68, s68, s30")
    k("v_lshrrev_b32 v26, 4, v14\nv_lshlrev_b32 v26, 17, v26\nv_and_b32 v27, 15, v14\nv_lshl_add_u32 v26, v27, 4, v26\nv_lshl_add_u32 v26, v15, 8, v26")
    k("v_cmp_eq_u32 s[40:41], 1, v10\nv_cmp_eq_u32 s[42:43], 2, v10\nv_cmp_eq_u32 s[44:45], 3, v10" if 0 else "")
    def reads(n):
        c, ks = n//4, n%4; sl = c%5; st = sl//2; imm = (sl-2*st)*SLOT
        L = [f"ds_read_b128 {vr(XB[n%3])}, v{(XA0 if ks<2 else XA1)+st} offset:{imm+32*(ks&1)}"]
        for g in range(3):
            for a in range(2): L.append(f"ds_read_b64_tr_b16 {vr(WB[n%3]+4*g+2*a,2)}, v{WA+st} offset:{imm+ks*3072+g*1024+a*256}")
        return [(x, f"r{n}") for x in L]
    XG = {}
    def put(n, g, L): XG.setdefault((n, g), []).extend(L)
    for i, x in enumerate(clears()):
        if not OPT.get('noclr') or i == 0: put(OPT.get('clat', 0)+i, 2, [x])
    if OPT.get('k1u'):
        n = OPT['k1u']
        k(f"s_lshr_b32 s26, s29, 7\ns_mul_i32 s26, s26, {SETS:#x}\ns_and_b32 s27, s29, 127\ns_mul_i32 s27, s27, {n*1024}\ns_add_u32 s26, s26, s27\ns_add_u32 s26, s26, {SETB+SETS-n*131072:#x}")
        k("v_add_u32 v13, 0x1000, v3\nv_add_u32 v11, 0x2000, v3")
        for i in range(n): put(OPT.get('k1ut', 3)+OPT.get('k1us', 1)*i, 2, [f"buffer_store_dwordx4 v[192:195], v{(3,13,11)[i//4]}, s[4:7], s26 offen offset:{1024*(i%4)} sc1"])
    put(29, 0, ["s_barrier"] + [(f"ds_read_b128 {vr(CP+4*b)}, v29 offset:{512*b}", "cx") for b in range(3)])
    put(30, 0, [lambda: k.waitlg("cx")] + [f"v_add_f32 v{CP+4*b+r}, v{CP+4*b+r}, v{CP+4*b+r+1}" for b in range(2) for r in (0, 2)])
    put(30, 1, [f"v_add_f32 v{CP+4*b}, v{CP+4*b}, v{CP+4*b+2}" for b in range(2)] + [f"v_add_f32 v{CP+8+r}, v{CP+8+r}, v{CP+8+r+1}" for r in (0, 2)])
    put(30, 2, [f"ds_write_b32 v30, v{CP+4*b} offset:{128*b}" for b in range(2)] + [f"v_add_f32 v{CV}, v{CP+8}, v{CP+10}"])
    put(31, 0, [(f"ds_read_b128 {vr(CSA+16+4*a)}, v31 offset:{128+32*a}", "cb") for a in range(4)])
    put(31, 1, [(f"ds_read_b128 {vr(CSA+4*a)}, v31 offset:{32*a}", "ca") for a in range(4)])
    k("s_waitcnt lgkmcnt(0)")
    k("v_cmp_eq_u32 s[40:41], 1, v10\nv_cmp_eq_u32 s[42:43], 2, v10\nv_cmp_eq_u32 s[44:45], 3, v10")
    stamp(k,"m_pre")
    k("s_barrier")
    stamp(k,"m_c0")
    for x in reads(0) + reads(1): em(x)
    for n in range(32):
        c = n//4; x = XB[n%3]; w = WB[n%3]
        z = lambda a, q=16: 0 if n == 0 else vr(a, q)
        S3 = [f"v_mfma_f32_16x16x32_bf16 {vr(SUM)}, {vr(SEL)}, {vr(x)}, {z(SUM,4)}",
              f"v_mfma_f32_4x4x4_16b_bf16 {vr(SQ)}, {vr(x,2)}, {vr(x,2)}, {z(SQ,4)}",
              f"v_mfma_f32_4x4x4_16b_bf16 {vr(SQ+4)}, {vr(x+2,2)}, {vr(x+2,2)}, {z(SQ+4,4)}"]
        M = [f"v_mfma_f32_32x32x16_bf16 {vr(ACC+16,16)}, {vr(w+4)}, {vr(x)}, {z(ACC+16)}",
             f"v_mfma_f32_32x32x16_bf16 {vr(ACC,16)}, {vr(w)}, {vr(x)}, {z(ACC)}",
             f"v_mfma_f32_32x32x16_bf16 {vr(ACC+32,16)}, {vr(x)}, {vr(w+8)}, {z(ACC+32)}"]
        G = {i: [] for i in range(len(M))}
        if n % 4 == 2 and n < 28:
            G[0] += (["s_waitcnt lgkmcnt(0)"] if c <= 3 else []) + ["s_barrier", lambda c=c: stamp(k, f"{'a' if c<3 else 'b'}_c{c+1}")]
        R = reads(n+2) if n < 30 else []
        G[0] += R[0:3]; G[1] += R[3:5]; G[2] += R[5:7]
        for g in range(3): G[g] += XG.get((n, g), [])
        k.waitlg(f"r{n}")
        for y in S3: k(y)
        for i, m in enumerate(M):
            k(m)
            for y in G[i]: em(y)
            if n == 31 and i == 1:
                MU=16; RS=18; QS=20
                for r in range(4): k(f"v_add_f32 v{SQ+r}, v{SQ+r}, v{SQ+4+r}")
                for r in range(1,4): k(f"v_cndmask_b32 v{SQ}, v{SQ}, v{SQ+r}, s[{38+2*r}:{39+2*r}]")
                xhalf_add(k, SQ, 25)
    stamp(k,"m_loop")
    pr = lambda b: vr(b, 2)
    stats_from_sums(k, SUM, SQ, MU, RS, 25)
    k.waitlg("ca")
    k(f"ds_write_b32 v30, v{MU}\nds_write_b32 v30, v{RS} offset:128")
    k(f"v_mul_f32 v{QS}, {fhex(0.25*LOG2E)}, v{RS}")
    TM=128
    for a in range(4): k(f"ds_read_b128 {vr(TM+4*a)}, v31 offset:{32*a}\nds_read_b128 {vr(TM+16+4*a)}, v31 offset:{128+32*a}")
    P=164
    def qk(b):
        for hf in range(2):
            R = range(8*hf, 8*hf+8, 2)
            for r in R: k(f"v_pk_fma_f32 {pr(ACC+16*b+r)}, {pr(MU)}, {pr(CSA+16*b+r)}, {pr(ACC+16*b+r)} op_sel_hi:[0,1,1] neg_lo:[1,0,0] neg_hi:[1,0,0]")
            for r in R: k(f"v_pk_mul_f32 {pr(ACC+16*b+r)}, {pr(QS if b==0 else RS)}, {pr(ACC+16*b+r)} op_sel_hi:[0,1]")
            for r in R: k(f"v_cvt_pk_bf16_f32 v{P+8*b+r//2}, v{ACC+16*b+r}, v{ACC+16*b+r+1}")
            k(f"buffer_store_dwordx4 {vr(P+8*b+4*hf)}, v3, s[4:7], s{[[31,65],[66,67]][b][hf]} offen{sc1}")
    qk(1)
    k("s_waitcnt lgkmcnt(0)")
    for hf in range(2):
        R = range(8*hf, 8*hf+8, 2)
        for r in R: k(f"v_pk_fma_f32 {pr(ACC+32+r)}, {pr(TM+r)}, {pr(CV)}, {pr(ACC+32+r)} op_sel_hi:[1,0,1] neg_lo:[1,0,0] neg_hi:[1,0,0]")
        for r in R: k(f"v_pk_mul_f32 {pr(ACC+32+r)}, {pr(TM+16+r)}, {pr(ACC+32+r)}")
        for r in R: k(f"v_cvt_pk_bf16_f32 v{P+16+r//2}, v{ACC+32+r}, v{ACC+32+r+1}")
        k(f"buffer_store_dwordx4 {vr(P+16+4*hf)}, v26, s[4:7], s68 offen offset:{1024+512*hf}{sc1}")
    qk(0)
    stamp(k,"m_epi")
    stamp_out(k, 0, 32, 18)
    k.label(done)
    k("s_endpgm")
    hopend(k, 4, "L_k1_end")
    k.label("L_k1_end")
    return k
```

```python
import math, sys
from asmlib2 import *

QF=0x000000; KV=0x200000; OF=0x600000
SETB=0x800000; SETS=0x180000; GO=0; HO=0x40000; XO=0x80000; SO=0xC0000; UO=0xC8000
WOF=0x1400000; W1F=0x1480000; W2F=0x1500000; W3F=0x1580000; W4F=0x1700000
GM=0x18C0000
XT=0x1900000
DBGOFF=0x1E00000
WS_SZ=0x2000000
ONES=0x3F803F80
EPS=1e-5
LOG2E=1.4426950408889634
GA = -2*LOG2E*math.sqrt(2/math.pi)*0.044715
GB = -2*LOG2E*math.sqrt(2/math.pi)
OPT = dict(stamp=False, slow=False, I0=2, pref=True, rot=3, k1sc=1, gram=1, nv=3, cpf=55, hop=6, early=0, fill0=4, lastfill=54, spf=2, spft=54, spfs=2, prb=0, inl=3, la=6, w2g=10, lw1=10, lwo=0, u0s=1, lk=26, spu=58, r1=2, w0=1, ws=8, wl=4, g3end=40, w2s=1, xcg=1, clat=27, sch='01.23.4s...56.7', qk2=1, ock=1)

def stamp(k, name):
    if not OPT['stamp']: return
    if not any(name.startswith(p) for p in OPT.get('sts','m').split(',')): return
    i = len(k.stn)
    if i >= k.smax: print("stamp dropped", name); return
    k.stn.append(name)
    if OPT['stamp']==4: k(f"s_mov_b32 s{k.sb+2*i}, {getattr(k,'cnt','0')} ; s_memtime")
    else: k(f"{'s_memtime' if OPT['stamp']==2 else 's_memrealtime'} s[{k.sb+2*i}:{k.sb+1+2*i}]")
    if OPT['stamp']==3 and name != 'end' and i+1 < k.smax:
        k.stn.append(name+"#")
        k(f"s_memtime s[{k.sb+2*i+2}:{k.sb+3+2*i}]")
def stamp_out(k, kidx, vt, sw):
    if not OPT['stamp']: return
    k("s_waitcnt vmcnt(0)")
    k.smax += 1
    OPT['sts'] = OPT.get('sts','m') + ',end'
    stamp(k, "end")
    nst = len(k.stn)-1
    k("s_waitcnt lgkmcnt(0)")
    k(f"s_lshl_b32 s61, s2, 2\ns_add_u32 s60, s{sw}, s61\ns_lshl_b32 s60, s60, 6\ns_add_u32 s60, s60, {DBGOFF+kidx*0x10000:#x}")
    for i in range(16): k(f"v_mov_b32 v{vt+i}, s{k.sb+2*min(i,nst)}")
    k(f"v_mov_b32 v{vt+16}, 0")
    for i in range(4): k(f"buffer_store_dwordx4 v[{vt+4*i}:{vt+4*i+3}], v{vt+16}, s[4:7], s60 offen offset:{16*i}")
    k.L.insert(0, "; STAMPS " + ",".join(k.stn))
    if OPT.get('dbo') and kidx == 1:
        k(f"s_sub_u32 s60, s60, 0x10000\nbuffer_load_dwordx4 v[{vt+20}:{vt+23}], v{vt+16}, s[4:7], s60 offen sc1\ns_waitcnt vmcnt(0)")
        k(f"v_not_b32 v{vt+17}, v{vt}\nv_not_b32 v{vt+19}, v{vt+20}\ns_mov_b64 exec, 1")
        for i in range(5): k(f"global_atomic_umax v{vt+16}, v{vt+19+i}, s[100:101] offset:{4*i}")
        k(f"global_atomic_umax v{vt+16}, v{vt+17}, s[100:101] offset:20")
        for i in range(min(nst+1, 10)): k(f"global_atomic_umax v{vt+16}, v{vt+i}, s[100:101] offset:{4*(6+i)}")

def xhalf_add(k, a, t):
    k(f"v_mov_b32 v{t}, v{a}")
    k(f"v_permlane32_swap_b32 v{a}, v{t}")
    k(f"v_add_f32 v{a}, v{a}, v{t}")
def x16_add(k, a, t):
    k(f"v_mov_b32 v{t}, v{a}")
    k(f"v_permlane16_swap_b32 v{a}, v{t}")
    k(f"v_add_f32 v{a}, v{a}, v{t}")
def stats_from_sums(k, s, q, mu, r, t):
    k(f"v_mul_f32 v{mu}, {fhex(1/512)}, v{s}")
    k(f"v_mul_f32 v{q}, {fhex(1/512)}, v{q}")
    k(f"v_fma_f32 v{q}, -v{mu}, v{mu}, v{q}")
    k(f"v_max_f32 v{q}, 0, v{q}")
    k(f"v_add_f32 v{t}, {fhex(EPS)}, v{q}")
    k(f"v_rsq_f32 v{r}, v{t}")
def code_prefetch(k, lab0, lab1, part_sgpr, vt):
    sk = k.newlabel()
    k(f"s_lshl_b32 s64, s{part_sgpr}, 13")
    k(f"s_cmp_ge_u32 s64, {lab1}-{lab0}\ns_cbranch_scc1 {sk}")
    pc = k.newlabel()
    k("s_getpc_b64 s[62:63]")
    k.label(pc)
    k(f"s_add_u32 s62, s62, {lab0}-{pc}\ns_addc_u32 s63, s63, 0" if lab0 != "qkv_kernel" else f"s_sub_u32 s62, s62, {pc}-{lab0}\ns_subb_u32 s63, s63, 0")
    k(f"v_lshlrev_b32 v{vt}, 7, v1\nv_add_u32 v{vt}, s64, v{vt}\nv_min_u32 v{vt}, {lab1}-{lab0}-4, v{vt}\nv_mov_b32 v{vt+1}, s63")
    k(f"v_add_co_u32 v{vt}, vcc, s62, v{vt}\nv_addc_co_u32 v{vt+1}, vcc, 0, v{vt+1}, vcc")
    n0 = len(k.vmq)
    k(f"global_load_dword v{vt+2}, v[{vt}:{vt+1}], off")
    del k.vmq[n0:]
    k.label(sk)

def sj_decode(k, SJ, r):
    S = 48+4*r
    so, dst, fd, st = 84+4*r, 85+4*r, 86+4*r, 87+4*r
    SJ[r] = (S, so, dst, fd, st)
    k(f"s_mov_b32 s{S+3}, 0x00020000")
    end = k.newlabel()
    def pairmode(v, jstride, base):
        k(f"s_lshr_b32 s30, s{v}, 4\ns_and_b32 s31, s{v}, 15")
        k(f"s_lshl_b32 s{so}, s30, 15\ns_lshl_b32 s{fd}, s31, 6\ns_add_u32 s{so}, s{so}, s{fd}")
        k(f"s_lshr_b32 s{dst}, s31, 1\ns_mul_i32 s{dst}, s{dst}, {jstride}\ns_lshl_b32 s30, s30, 12\ns_add_u32 s{dst}, s{dst}, s30")
        k(f"s_and_b32 s31, s31, 1\ns_lshl_b32 s31, s31, 11\ns_add_u32 s{dst}, s{dst}, s31\ns_add_u32 s{dst}, s{dst}, {base}")
        k(f"s_mov_b32 s{fd}, 1024\ns_mov_b32 s{st}, 1024")
    def w4(off):
        k(f"s_mov_b32 s{S}, s46\ns_mov_b32 s{S+1}, s47\ns_mov_b32 s{S+2}, {1376*512*2:#x}")
        k(f"s_add_u32 s65, s29, {off & 0xffffffff:#x}")
        pairmode(65, 43*4096, f"{W4F:#x}")
    def w3(off, src="s29"):
        k(f"s_mov_b32 s{S}, s44\ns_mov_b32 s{S+1}, s45\ns_mov_b32 s{S+2}, {1376*512*2:#x}")
        k(f"s_add_u32 s65, {src}, {off & 0xffffffff:#x}")
        k(f"s_mul_i32 s30, s65, 1525\ns_lshr_b32 s30, s30, 16\ns_mul_i32 s31, s30, 43\ns_sub_u32 s31, s65, s31")
        k(f"s_mul_i32 s{so}, s30, {32*2752}\ns_lshl_b32 s{fd}, s31, 6\ns_add_u32 s{so}, s{so}, s{fd}")
        k(f"s_lshl_b32 s{dst}, s31, 15\ns_lshl_b32 s30, s30, 10\ns_add_u32 s{dst}, s{dst}, s30\ns_add_u32 s{dst}, s{dst}, {W3F:#x}")
        k(f"s_mov_b32 s{fd}, 16384\ns_mov_b32 s{st}, 2752")
    if r == 0:
        l4 = k.newlabel()
        k(f"s_cmp_ge_u32 s29, 768\ns_cbranch_scc1 {l4}")
        k(f"s_lshr_b32 s66, s29, 8")
        k(f"s_cmp_eq_u32 s66, 1\ns_cselect_b32 s{S}, s40, s36\ns_cselect_b32 s{S+1}, s41, s37")
        k(f"s_cmp_eq_u32 s66, 2\ns_cselect_b32 s{S}, s42, s{S}\ns_cselect_b32 s{S+1}, s43, s{S+1}")
        k(f"s_mov_b32 s{S+2}, {512*512*2:#x}")
        k(f"s_and_b32 s65, s29, 255\ns_lshl_b32 s66, s66, 19\ns_add_u32 s66, s66, {WOF:#x}")
        pairmode(65, 65536, "s66")
        k(f"s_branch {end}")
        k.label(l4); w4(-768)
    elif r == 1:
        l3 = k.newlabel()
        k(f"s_cmp_ge_u32 s29, 432\ns_cbranch_scc1 {l3}")
        w4(256); k(f"s_branch {end}")
        k.label(l3); w3(-432)
    else:
        w3(592, "s2")
    k.label(end)

SLOT=28928; XOFF=12288; XW=4160; STG=5*SLOT; MUA=STG+16384
def gen_k1():
    k = Kern("qkv_kernel", vgpr=200, sgpr=102); k.sb = 70; k.stn = []; k.smax = 6
    NB = [int(x) for x in str(OPT.get('nb', ''))]
    done = "L_k1_done"; QK2 = OPT.get('qk2', 0)
    sc1 = ' sc1' if OPT.get('k1sc') else ''
    def em(x):
        if callable(x): x()
        elif isinstance(x, tuple): k(x[0], tag=x[1])
        else: k(x)
    k(f"s_cmp_ge_u32 s2, 256\ns_cbranch_scc1 {done}")
    stamp(k,"m_start")
    k("s_load_dwordx16 s[32:47], s[0:1], 0")
    k("s_load_dwordx2 s[4:5], s[0:1], 80")
    if OPT.get('tw', 0) & 2: k("s_load_dwordx2 s[100:101], s[0:1], 64")
    k("v_lshrrev_b32 v2, 6, v0\nv_and_b32 v1, 63, v0")
    k(f"s_mov_b32 s6, {WS_SZ:#x}\ns_mov_b32 s7, 0x00020000")
    k("s_and_b32 s16, s2, 6\ns_lshl_b32 s16, s16, 1\ns_lshr_b32 s19, s2, 3\ns_and_b32 s18, s19, 3\ns_add_u32 s16, s16, s18")
    k("s_and_b32 s17, s2, 1\ns_lshl_b32 s17, s17, 3\ns_lshr_b32 s18, s19, 2\ns_add_u32 s17, s17, s18")
    k("v_readfirstlane_b32 s23, v2")
    k(f"s_xor_b32 s96, s17, 8\ns_add_u32 s97, s17, 4\ns_and_b32 s97, s97, 15")
    if QK2 == 1: k("s_mov_b32 s96, s17")
    if QK2 == 2: k("s_xor_b32 s97, s17, 8\ns_lshr_b32 s96, s17, 1\ns_and_b32 s98, s17, 1\ns_lshl_b32 s98, s98, 3\ns_add_u32 s96, s96, s98")
    if QK2 == 3: k("s_lshr_b32 s96, s17, 1\ns_and_b32 s98, s17, 1\ns_mul_i32 s98, s98, 12\ns_xor_b32 s96, s96, s98")
    k("v_lshrrev_b32 v9, 2, v1\nv_and_b32 v10, 3, v1\nv_lshlrev_b32 v3, 4, v1")
    k("s_and_b32 s18, s23, 3")
    k("s_lshl_b32 s22, s16, 2\ns_add_u32 s22, s22, s18")
    k(f"s_mul_i32 s26, s18, 3072\ns_mul_i32 s27, s18, {XW}\ns_add_u32 s27, s27, {XOFF}")
    if OPT.get('gwx', 1): k("s_and_b32 s28, s2, 7\ns_lshl_b32 s28, s28, 5\ns_add_u32 s28, s28, s19")
    else: k("s_mov_b32 s28, s2")
    k("s_lshl_b32 s29, s28, 2\ns_add_u32 s29, s29, s18")
    k(f"s_lshl_b32 s99, s18, 8\ns_add_u32 s99, s99, s2\ns_lshl_b32 s67, s18, 12\ns_add_u32 s67, s67, {STG}\ns_add_u32 s68, s67, 2048\ns_mov_b32 s69, {MUA}")
    k("s_cmp_lt_u32 s23, 4\ns_cbranch_scc1 L_k1_comp")
    SEL=112; CP=168; CSX = MUA+1024
    def wtr(d):
        k("v_and_b32 v14, 31, v1\nv_lshrrev_b32 v15, 5, v1")
        k(f"v_and_b32 v{d}, 3, v9\nv_lshl_add_u32 v{d}, v15, 3, v{d}\nv_lshlrev_b32 v{d}, 6, v{d}\nv_and_b32 v28, 16, v1\nv_lshl_add_u32 v{d}, v28, 1, v{d}")
        k(f"v_and_b32 v28, 1, v1\nv_lshl_add_u32 v{d}, v28, 4, v{d}\nv_and_b32 v28, 2, v1\nv_lshl_add_u32 v{d}, v28, 2, v{d}")
        k(f"v_lshrrev_b32 v29, 4, v1\nv_xor_b32 v28, v9, v29\nv_and_b32 v28, 1, v28\nv_add_u32 v28, -1, v28\nv_and_b32 v{SEL}, {ONES:#x}, v28")
        for r in range(1,4): k(f"v_mov_b32 v{SEL+r}, v{SEL}")
    k(f"s_mov_b32 s10, {2048*512*2:#x}\ns_mov_b32 s11, 0x00020000\ns_mov_b32 s14, {512*1536*2:#x}\ns_mov_b32 s15, 0x00020000")
    k("v_mul_u32_u24 v8, 3072, v9\nv_lshl_add_u32 v8, v10, 4, v8")
    k("s_lshl_b32 s98, s96, 6\nv_add_u32 v16, s98, v8\ns_lshl_b32 s98, s97, 6\nv_add_u32 v17, s98, v8\ns_lshl_b32 s98, " + ("s96, 7" if QK2 else "s17, 6") + "\nv_add_u32 v8, s98, v8")
    k("v_lshrrev_b32 v11, 3, v1\nv_and_b32 v12, 7, v1\nv_and_b32 v13, 2, v11\nv_lshlrev_b32 v13, 1, v13\nv_xor_b32 v12, v12, v13")
    k("v_lshlrev_b32 v4, 10, v11\nv_lshl_add_u32 v4, v12, 4, v4")
    for i in range(1,4): k(f"v_add_u32 v{4+i}, {8192*i:#x}, v4")
    k("s_lshl_b32 s24, s22, 15")
    k(f"s_mul_i32 s25, s18, {16*3072}")
    k("s_lshl_b32 s20, s16, 1\ns_add_u32 s20, s20, s17\ns_and_b32 s20, s20, 7")
    def issue(c):
        sl = c % 5
        if c: k("s_add_u32 s20, s20, 1\ns_and_b32 s20, s20, 7")
        k(f"s_mul_i32 s21, s20, {64*3072}\ns_add_u32 m0, s26, {sl*SLOT}\ns_add_u32 s21, s25, s21")
        if c == 0:
            k("s_waitcnt lgkmcnt(0)")
            k("s_mov_b32 s12, s34\ns_mov_b32 s13, s35\ns_mov_b32 s8, s32\ns_mov_b32 s9, s33")
        if QK2:
            k(f"buffer_load_dwordx4 v17, s[12:15], s21 offen offset:2048 lds", tag=f"c{c}")
            k(f"buffer_load_dwordx4 v8, s[12:15], s21 offen lds", tag=f"c{c}")
            k(f"s_add_u32 m0, s26, {sl*SLOT+960}")
            k(f"buffer_load_dwordx4 v8, s[12:15], s21 offen offset:64 lds", tag=f"c{c}")
        else:
            for g in range(3): k(f"buffer_load_dwordx4 v{(8,16,17)[g]}, s[12:15], s21 offen offset:{1024*g} lds", tag=f"c{c}")
        k("s_lshl_b32 s21, s20, 7\ns_add_u32 s21, s24, s21")
        for i in range(4 if not OPT.get('exb') else 1):
            k(f"s_add_u32 m0, s27, {sl*SLOT+i*1040}")
            k(f"buffer_load_dwordx4 v{4+i}, s[8:11], s21 offen lds", tag=f"c{c}")
    LA = OPT.get('k1la', 2)
    SJ = {}
    decode = lambda r: sj_decode(k, SJ, r)
    def sj_issue(r, m0expr):
        S, so, dst, fd, st = SJ[r]
        k(f"v_mul_u32_u24 v12, s{st}, v9\nv_lshl_add_u32 v12, v10, 4, v12")
        k(m0expr(0))
        k(f"buffer_load_dwordx4 v12, s[{S}:{S+3}], s{so} offen lds", tag=f"sj{r}")
        k(f"s_lshl_b32 s30, s{st}, 4\ns_add_u32 s30, s30, s{so}")
        k(m0expr(1024))
        k(f"buffer_load_dwordx4 v12, s[{S}:{S+3}], s30 offen lds", tag=f"sj{r}")
    def sj_rd(r, sbase, T):
        k(f"v_add_u32 v12, s{sbase}, v13")
        for b in range(2):
            for a in range(2): k(f"ds_read_b64_tr_b16 {vr(T+4*b+2*a,2)}, v12 offset:{256*a+8*b}")
    def sj_st(r, T, vo=3):
        S, so, dst, fd, st = SJ[r]
        k(f"s_add_u32 s30, s{dst}, s{fd}")
        if r == 2: k("s_cmp_ge_u32 s99, 96\ns_cselect_b32 s31, 0x80000000, 0\nv_add_u32 v12, s31, v3")
        k(f"buffer_store_dwordx4 {vr(T)}, v{vo}, s[4:7], s{dst} offen{sc1}", tag="st")
        k(f"buffer_store_dwordx4 {vr(T+4)}, v{vo}, s[4:7], s30 offen{sc1}", tag="st")
    def only96(f):
        sk = k.newlabel()
        k(f"s_cmp_ge_u32 s99, 96\ns_cbranch_scc1 {sk}")
        n0 = len(k.vmq)
        f()
        del k.vmq[n0:]
        k.label(sk)
    def clears():
        T = 192
        k(f"s_lshl_b32 s24, s29, 11\ns_add_u32 s24, s24, {OF:#x}")
        for r in range(4): k(f"v_mov_b32 v{T+r}, -1")
        k(f"s_cmp_gt_u32 s29, 287\ns_cselect_b32 s25, 0x80000000, 0\nv_add_u32 v12, s25, v3")
        k(f"s_lshl_b32 s25, s29, 10\ns_add_u32 s25, s25, {GM:#x}")
        return [f"buffer_store_dwordx4 {vr(T)}, v12, s[4:7], s25 offen sc1"] + [f"buffer_store_dwordx4 {vr(T)}, v3, s[4:7], s24 offen offset:{1024*i} sc1" for i in range(2)]
    assert XT == GM + 0x40000
    def sj012():
        sj_issue(2, lambda o: f"s_add_u32 m0, s69, {o}")
        sj_issue(0, lambda o: f"s_add_u32 m0, s67, {o}"); sj_issue(1, lambda o: f"s_add_u32 m0, s68, {o}")
    SJB = OPT.get('sjb', 3)
    sch = str(OPT.get('sch', '01.23.4.5.6.7' if OPT.get('sjk2') else '01.23.4s..5.67')).split('.')
    sch += ['']*(9-len(sch))
    for j in sch[0].split('s')[0]: issue(int(j))
    if OPT.get('sjk2'): OPT['nosj'] = 1
    for r in range(3):
        if not OPT.get('sjk2'): decode(r)
    if not OPT.get('sjk2'): k("s_cmp_ge_u32 s99, 96\ns_cselect_b32 s58, 0, s58\ns_cselect_b32 s69, s67, s69")
    if OPT.get('sjfake'):
        for r in range(3): k(f"s_mov_b32 s{48+4*r}, s34\ns_mov_b32 s{49+4*r}, s35")
    if 's' in sch[0]:
        sj012()
        for j in sch[0].split('s')[1]: issue(int(j))
    sched = {c: sch[c+1] for c in range(8)}
    for c in range(8):
        b = c
        while b in NB: b -= 1
        for j in sched[c]:
            assert j == 's' or c < int(j) <= b+4
            if j != 's':
                p_ = int(j)
                while p_ in NB: p_ -= 1
                assert c < p_, (c, j)
    SJA = int("".join(sch).split('s')[0][-1])
    k("v_lshrrev_b32 v13, 4, v1\nv_lshlrev_b32 v13, 3, v13\nv_and_b32 v14, 3, v9\nv_add_u32 v13, v13, v14\nv_lshlrev_b32 v13, 6, v13\nv_lshl_add_u32 v13, v10, 4, v13")
    wtr(20)
    k(f"v_add_u32 v20, s26, v20\nv_add_u32 v21, {2*SLOT:#x}, v20\nv_add_u32 v22, {4*SLOT:#x}, v20")
    k(f"s_lshl_b32 s30, s18, 2\ns_add_u32 s30, s30, {CSX}\nv_lshlrev_b32 v28, 4, v14\nv_add_u32 v28, s30, v28")
    last = max(c for c in sched if sched[c])
    for c in range(8):
        if c not in NB:
            j = c
            while j+1 in NB: j += 1
            k.waitvm(f"c{j}")
            k("s_barrier")
        sl = c % 5; st = sl//2; imm = (sl-2*st)*SLOT
        for g in range(3):
            for a in range(2): k(f"ds_read_b64_tr_b16 {vr(32+4*g+2*a,2)}, v{20+st} offset:{imm+g*1024+a*256}")
        for j in sched[c]:
            if j == 's':
                if not OPT.get('nosj'): sj012()
            else: issue(int(j))
        if c == max(SJA+1, last) and not OPT.get('nosj'):
            sj_rd(0, 67, 44); sj_rd(1, 68, 52); sj_rd(2, 69, 68)
        k("s_waitcnt lgkmcnt(0)")
        for b in range(3): k(f"v_mfma_f32_16x16x32_bf16 {vr(CP+4*b)}, {vr(SEL)}, {vr(32+4*b)}, {0 if c == 0 else vr(CP+4*b)}")
        if c == max(SJA+1, last) and OPT.get('nosj', 0) != 1:
            sj_st(0, 44); sj_st(1, 52); sj_st(2, 68, 12)
    for b in range(3): k(f"ds_write_b32 v28, v{CP+4*b} offset:{512*b}")
    k("s_waitcnt lgkmcnt(0)\ns_barrier")
    if SJA == 7 and not OPT.get('nosj'):
        k.waitvm("sj1")
        sj_rd(0, 67, 44); sj_rd(1, 68, 52); sj_rd(2, 69, 68)
        k("s_waitcnt lgkmcnt(0)")
        sj_st(0, 44); sj_st(1, 52); sj_st(2, 68, 12)
    if OPT.get('hop', 1) & 2: hopentry(k, "s18", "main_kernel", 4)
    k("s_endpgm")
    k.label("L_k1_comp")
    k.vmq = []; k.lgq = []
    if OPT['pref']:
        k("s_lshl_b32 s28, s19, 2\ns_add_u32 s28, s28, s18")
        code_prefetch(k, "qkv_kernel", "L_code_end", 28, 196)
    if OPT.get('hop', 1) & 4: hopentry(k, "s18", k.name, 4, 1)
    XA0=16; XA1=19; WA=22
    wtr(WA)
    k(f"v_lshrrev_b32 v25, 3, v14\nv_mul_u32_u24 v25, 1040, v25\nv_and_b32 v26, 7, v14\nv_lshl_add_u32 v25, v26, 7, v25\nv_lshl_add_u32 v25, v15, 4, v25\nv_add_u32 v25, s27, v25")
    k(f"v_and_b32 v26, 2, v14\nv_lshlrev_b32 v26, 5, v26\nv_add_u32 v{XA0}, v25, v26\nv_xor_b32 v26, 64, v26\nv_add_u32 v{XA1}, v25, v26")
    for b in (XA0, XA1, WA):
        k(f"v_add_u32 v{b+1}, {2*SLOT:#x}, v{b}\nv_add_u32 v{b+2}, {4*SLOT:#x}, v{b}")
    ACC=32; CSA=80; XB=[116,120,124]; WB=[128,140,152]; SUM=164; SQ=180; CV=188
    k(f"v_lshlrev_b32 v29, 4, v14\nv_add_u32 v29, {CSX}, v29")
    k(f"s_lshl_b32 s30, s18, 8\ns_add_u32 s30, s30, {MUA}")
    k("v_lshlrev_b32 v30, 2, v14\nv_add_u32 v30, s30, v30\nv_lshlrev_b32 v31, 4, v15\nv_add_u32 v31, s30, v31")
    k(f"s_lshl_b32 s31, s17, 17\ns_lshl_b32 s30, s22, 10\ns_add_u32 s31, s31, s30\ns_add_u32 s65, s31, 0x10000")
    k(f"s_lshl_b32 s30, s30, 1\ns_add_u32 s30, s30, {KV:#x}\ns_lshl_b32 s66, s96, 18\ns_add_u32 s66, s66, s30\ns_add_u32 s67, s66, 0x20000\ns_lshl_b32 s68, s97, 18\ns_add_u32 s68, s68, s30")
    if QK2:
        k("s_lshl_b32 s31, s96, 18\ns_lshl_b32 s65, s22, 10\ns_add_u32 s31, s31, s65\ns_and_b32 s65, s96, 7\ns_lshl_b32 s65, s65, 19\ns_add_u32 s65, s65, s30")
        k(f"s_cmp_lt_u32 s96, 8\ns_cselect_b32 s31, s31, s65\ns_cselect_b32 s30, 0x10000, 0x20000\ns_cselect_b32 s69, {fhex(0.25*LOG2E)}, 1.0".replace("0x10000, 0x20000", "1, 2"))
        k("s_lshl_b32 s30, s30, 16\ns_add_u32 s65, s31, s30\ns_add_u32 s66, s65, s30\ns_add_u32 s67, s66, s30")
    k("v_lshrrev_b32 v26, 4, v14\nv_lshlrev_b32 v26, 17, v26\nv_and_b32 v27, 15, v14\nv_lshl_add_u32 v26, v27, 4, v26\nv_lshl_add_u32 v26, v15, 8, v26")
    k("v_cmp_eq_u32 s[40:41], 1, v10\nv_cmp_eq_u32 s[42:43], 2, v10\nv_cmp_eq_u32 s[44:45], 3, v10" if 0 else "")
    def reads(n):
        c, ks = n//4, n%4; sl = c%5; st = sl//2; imm = (sl-2*st)*SLOT
        L = [f"ds_read_b128 {vr(XB[n%3])}, v{(XA0 if ks<2 else XA1)+st} offset:{imm+32*(ks&1)}"]
        for g in range(3):
            for a in range(2): L.append(f"ds_read_b64_tr_b16 {vr(WB[n%3]+4*g+2*a,2)}, v{WA+st} offset:{imm+ks*3072+g*1024+a*256}")
        if OPT.get('exa') == 1: L = L[1:]
        if OPT.get('exa') == 2: L = L[:3]
        return [(x, f"r{n}") for x in L]
    XG = {}
    def put(n, g, L): XG.setdefault((n, g), []).extend(L)
    for i, x in enumerate(clears()):
        if not (OPT.get('noclr') or OPT.get('ock')) or i == 0: put(OPT.get('clat', 0)+i, 2, [x])
    if OPT.get('k1u'):
        n = OPT['k1u']
        k(f"s_lshr_b32 s26, s29, 7\ns_mul_i32 s26, s26, {SETS:#x}\ns_and_b32 s27, s29, 127\ns_mul_i32 s27, s27, {n*1024}\ns_add_u32 s26, s26, s27\ns_add_u32 s26, s26, {SETB+SETS-n*131072:#x}")
        k("v_add_u32 v13, 0x1000, v3\nv_add_u32 v11, 0x2000, v3")
        for i in range(n): put(OPT.get('k1ut', 3)+OPT.get('k1us', 1)*i, 2, [f"buffer_store_dwordx4 v[192:195], v{(3,13,11)[i//4]}, s[4:7], s26 offen offset:{1024*(i%4)} sc1"])
    put(29, 0, ["s_barrier"] + [(f"ds_read_b128 {vr(CP+4*b)}, v29 offset:{512*b}", "cx") for b in range(3)])
    put(30, 0, [lambda: k.waitlg("cx")] + [f"v_add_f32 v{CP+4*b+r}, v{CP+4*b+r}, v{CP+4*b+r+1}" for b in range(2) for r in (0, 2)])
    put(30, 1, [f"v_add_f32 v{CP+4*b}, v{CP+4*b}, v{CP+4*b+2}" for b in range(2)] + [f"v_add_f32 v{CP+8+r}, v{CP+8+r}, v{CP+8+r+1}" for r in (0, 2)])
    put(30, 2, [f"ds_write_b32 v30, v{CP+4*b} offset:{128*b}" for b in range(2)] + [f"v_add_f32 v{CV}, v{CP+8}, v{CP+10}"])
    put(31, 0, [(f"ds_read_b128 {vr(CSA+16+4*a)}, v31 offset:{128+32*a}", "cb") for a in range(4)])
    put(31, 1, [(f"ds_read_b128 {vr(CSA+4*a)}, v31 offset:{32*a}", "ca") for a in range(4)])
    k("s_waitcnt lgkmcnt(0)")
    if OPT.get('tw'):
        TW = []
        k(f"v_lshlrev_b32 v191, {OPT.get('twg', 19)}, v1\nv_min_u32 v191, {XT:#x}, v191\nv_lshlrev_b32 v189, 15, v1")
        if OPT['tw'] & 1: TW.append("buffer_load_dword v190, v191, s[4:7], 0 offen")
        if OPT['tw'] & 2: TW.append("global_load_dword v190, v189, s[100:101]")
        def tw():
            sk = k.newlabel()
            k(f"s_cmp_lg_u32 s18, 0\ns_cbranch_scc1 {sk}")
            n0 = len(k.vmq)
            for x in TW: k(x)
            del k.vmq[n0:]
            k.label(sk)
        if OPT.get('tws', -1) < 0: tw()
        else: put(OPT['tws'], 2, [tw])
    k("v_cmp_eq_u32 s[40:41], 1, v10\nv_cmp_eq_u32 s[42:43], 2, v10\nv_cmp_eq_u32 s[44:45], 3, v10")
    stamp(k,"m_pre")
    k("s_barrier")
    stamp(k,"m_c0")
    for x in reads(0) + reads(1): em(x)
    for n in range(32):
        c = n//4; x = XB[n%3]; w = WB[n%3]
        z = lambda a, q=16: 0 if n == 0 else vr(a, q)
        S3 = [f"v_mfma_f32_16x16x32_bf16 {vr(SUM)}, {vr(SEL)}, {vr(x)}, {z(SUM,4)}",
              f"v_mfma_f32_4x4x4_16b_bf16 {vr(SQ)}, {vr(x,2)}, {vr(x,2)}, {z(SQ,4)}",
              f"v_mfma_f32_4x4x4_16b_bf16 {vr(SQ+4)}, {vr(x+2,2)}, {vr(x+2,2)}, {z(SQ+4,4)}"]
        M = [f"v_mfma_f32_32x32x16_bf16 {vr(ACC+16,16)}, {vr(w+4)}, {vr(x)}, {z(ACC+16)}",
             f"v_mfma_f32_32x32x16_bf16 {vr(ACC,16)}, {vr(w)}, {vr(x)}, {z(ACC)}",
             f"v_mfma_f32_32x32x16_bf16 {vr(ACC+32,16)}, {vr(x)}, {vr(w+8)}, {z(ACC+32)}"]
        G = {i: [] for i in range(len(M))}
        if n % 4 == 2 and n < 28 and c+1 not in NB:
            G[0] += (["s_waitcnt lgkmcnt(0)"] if c <= 3 or NB else []) + ["s_barrier", lambda c=c: stamp(k, f"{'a' if c<3 else 'b'}_c{c+1}")]
        R = reads(n+2) if n < 30 else []
        G[0] += R[0:3]; G[1] += R[3:5]; G[2] += R[5:7]
        for g in range(3): G[g] += XG.get((n, g), [])
        k.waitlg(f"r{n}")
        for y in S3: k(y)
        for i, m in enumerate(M):
            k(m)
            for y in G[i]: em(y)
            if n == 31 and i == 1:
                MU=16; RS=18; QS=20
                for r in range(4): k(f"v_add_f32 v{SQ+r}, v{SQ+r}, v{SQ+4+r}")
                for r in range(1,4): k(f"v_cndmask_b32 v{SQ}, v{SQ}, v{SQ+r}, s[{38+2*r}:{39+2*r}]")
                xhalf_add(k, SQ, 25)
    stamp(k,"m_loop")
    pr = lambda b: vr(b, 2)
    stats_from_sums(k, SUM, SQ, MU, RS, 25)
    k.waitlg("ca")
    k(f"ds_write_b32 v30, v{MU}\nds_write_b32 v30, v{RS} offset:128")
    k(f"v_mul_f32 v{QS}, {'s69' if QK2 else fhex(0.25*LOG2E)}, v{RS}")
    TM=128
    for a in range(4): k(f"ds_read_b128 {vr(TM+4*a)}, v31 offset:{32*a}\nds_read_b128 {vr(TM+16+4*a)}, v31 offset:{128+32*a}")
    P=164
    def qk(b):
        for hf in range(2):
            R = range(8*hf, 8*hf+8, 2)
            for r in R: k(f"v_pk_fma_f32 {pr(ACC+16*b+r)}, {pr(MU)}, {pr(CSA+16*b+r)}, {pr(ACC+16*b+r)} op_sel_hi:[0,1,1] neg_lo:[1,0,0] neg_hi:[1,0,0]")
            for r in R: k(f"v_pk_mul_f32 {pr(ACC+16*b+r)}, {pr(QS if b==0 or QK2 else RS)}, {pr(ACC+16*b+r)} op_sel_hi:[0,1]")
            for r in R: k(f"v_cvt_pk_bf16_f32 v{P+8*b+r//2}, v{ACC+16*b+r}, v{ACC+16*b+r+1}")
            k(f"buffer_store_dwordx4 {vr(P+8*b+4*hf)}, v3, s[4:7], s{[[31,65],[66,67]][b][hf]} offen{sc1}")
    qk(1)
    k("s_waitcnt lgkmcnt(0)")
    for hf in range(2):
        R = range(8*hf, 8*hf+8, 2)
        for r in R: k(f"v_pk_fma_f32 {pr(ACC+32+r)}, {pr(TM+r)}, {pr(CV)}, {pr(ACC+32+r)} op_sel_hi:[1,0,1] neg_lo:[1,0,0] neg_hi:[1,0,0]")
        for r in R: k(f"v_pk_mul_f32 {pr(ACC+32+r)}, {pr(TM+16+r)}, {pr(ACC+32+r)}")
        for r in R: k(f"v_cvt_pk_bf16_f32 v{P+16+r//2}, v{ACC+32+r}, v{ACC+32+r+1}")
        k(f"buffer_store_dwordx4 {vr(P+16+4*hf)}, v26, s[4:7], s68 offen offset:{1024+512*hf}{sc1}")
    qk(0)
    stamp(k,"m_epi")
    if OPT.get('k1x'):
        k(f"s_movk_i32 s26, {OPT['k1x']}")
        k.label("L_k1x")
        k("v_add_f32 v5, v5, v5\nv_add_f32 v5, v5, v5\ns_sub_u32 s26, s26, 1\ns_cmp_lg_u32 s26, 0\ns_cbranch_scc1 L_k1x")
    stamp_out(k, 0, 32, 18)
    k.label(done)
    k("s_endpgm")
    hopend(k, 4, "L_k1_end")
    k.label("L_k1_end")
    return k
```

```python
from gen3 import *

WA=0; WB=0x10000; RING=0x20000; RP=2064; NR=13; MISC=0x26900; CSL=MISC; STL=MISC+256
UT=43*1024
BOUND=20000
OOB=0x80000000
def M16(d, a, b, c): return f"v_mfma_f32_16x16x32_bf16 {d}, {a}, {b}, {c}"
def M32(d, a, b, c): return f"v_mfma_f32_32x32x16_bf16 {d}, {a}, {b}, {c}"
def w3reg(t, s):
    n = 16*t+s
    return vr(144+4*n) if n < 28 else ar(176+4*(n-28))
def w4reg(ks, nb):
    b = 64+16*ks if ks < 7 else 16*(ks-7)
    return ar(b+4*nb)
pr = lambda b: vr(b,2)

class SA:
    def __init__(s, lo, hi): s.n = lo; s.hi = hi; s.m = {}
    def __call__(s, name, align=1, cnt=1):
        if name in s.m: return s.m[name]
        while s.n % align: s.n += 1
        r = s.n; s.n += cnt
        assert s.n <= s.hi, "out of sgprs"
        s.m[name] = f"s{r}"; return s.m[name]

def gen_k2():
    k = Kern("main_kernel", vgpr=512, sgpr=102, accum=256); k.sb = 80; k.stn = []; k.smax = 10
    k.label("L_code_begin")
    done = "L_k2_done"
    S_ = SA(19, 80)
    X, HD, W, T = "s16", "s17", "s18", S_("T")
    S_("RET", 2, 2); T2 = S_("T2")
    def em(x):
        if callable(x): x()
        elif isinstance(x, tuple): k(x[0], tag=x[1])
        else: k(x)
    k(f"s_cmp_ge_u32 s2, 256\ns_cbranch_scc1 {done}")
    stamp(k,"m_start")
    k("s_load_dwordx2 s[4:5], s[0:1], 80\ns_load_dwordx2 s[8:9], s[0:1], 0\ns_load_dwordx2 s[12:13], s[0:1], 64")
    SJK = OPT.get('sjk2', 0)
    if SJK: k("s_load_dwordx16 s[32:47], s[0:1], 0")
    if OPT.get('dbo'): k("s_load_dwordx2 s[100:101], s[0:1], 72")
    k(f"s_mov_b32 s6, {WS_SZ:#x}\ns_mov_b32 s7, 0x00020000\ns_mov_b32 s10, 0x200000\ns_mov_b32 s11, 0x00020000\ns_mov_b32 s14, 0x200000\ns_mov_b32 s15, 0x00020000")
    k("v_lshrrev_b32 v2, 6, v0\nv_and_b32 v1, 63, v0")
    k("s_and_b32 s16, s2, 7\ns_lshr_b32 s17, s2, 3")
    k("v_readfirstlane_b32 s18, v2")
    k("v_lshlrev_b32 v3, 4, v1")
    for q in range(1,4): k(f"v_add_u32 v{3+q}, {4096*q:#x}, v3")
    sKV, sRW = S_("KV"), S_("RW")
    k(f"s_lshl_b32 {T2}, {HD}, 16\ns_lshl_b32 {T}, {X}, 13\ns_add_u32 {T2}, {T2}, {T}\ns_lshl_b32 {T}, {W}, 11\ns_add_u32 {T2}, {T2}, {T}")
    k(f"s_lshl_b32 {sKV}, {HD}, 17\ns_add_u32 {sKV}, {sKV}, {T}\ns_add_u32 {sKV}, {sKV}, {KV:#x}")
    k(f"s_mul_i32 {sRW}, {W}, {RP}\ns_add_u32 {sRW}, {sRW}, {RING:#x}")
    QA=16; QB=20; C=24; S=[40,56]; P=[72,80]; O=[88,104]; KR=120; V0=124; V1=128
    KA=7; VA0=8; VA1=9; XV=132; XTV=133
    k(f"s_mov_b32 m0, {sRW}")
    k("s_waitcnt lgkmcnt(0)")
    stamp(k,"k_karg")
    k(f"buffer_load_dwordx4 v3, s[4:7], {sKV} offen lds", tag="g0")
    k(f"buffer_load_dwordx4 {vr(QA)}, v3, s[4:7], {T2} offen", tag="g0")
    k(f"buffer_load_dwordx4 {vr(QB)}, v3, s[4:7], {T2} offen offset:1024", tag="g0")
    k(f"buffer_load_dwordx4 v3, s[4:7], {sKV} offen offset:1024 lds", tag="g0")
    def kvm0(n):
        a = 4*n % NR
        return f"s_add_u32 m0, {sRW}, {a*RP}" if a+3 < NR else f"s_mov_b32 m0, {S_('WR%d'%a)}"
    kvso = f"s_add_u32 {sKV}, {sKV}, 16384"
    def kvld(n): return [(f"buffer_load_dwordx4 v{5 if n & 1 else 3}, s[4:7], {sKV} offen offset:{o} lds", f"g{n}") for o in (0, 1024)]
    for x in [kvm0(1)] + kvld(1) + [kvm0(2), kvso] + kvld(2): em(x)
    SJT = 200; SJD = 224; SJR = 230; SJF = 231
    if SJK:
        SJ = {}
        k(f"s_lshl_b32 s29, {X}, 7\ns_lshl_b32 s28, {HD}, 2\ns_add_u32 s29, s29, s28\ns_add_u32 s29, s29, {W}\ns_lshl_b32 s99, {W}, 8\ns_add_u32 s99, s99, s2\ns_lshl_b32 s28, {W}, 14")
        k(f"v_lshrrev_b32 v{SJT}, 2, v1\nv_and_b32 v{SJT+1}, 3, v1\nv_lshlrev_b32 v{SJT+1}, 4, v{SJT+1}")
        for r in (0, 1, 2):
            sj_decode(k, SJ, r)
            S0, so, dst, fd, st = SJ[r]
            if r == 2: k(f"s_cmp_ge_u32 s99, 96\ns_cselect_b32 s{S0+2}, 0, s{S0+2}\ns_cselect_b32 s{dst}, {OOB:#x}, s{dst}")
            k(f"v_mad_u32_u24 v{SJT+2}, s{st}, v{SJT}, v{SJT+1}")
            k(f"s_add_u32 m0, s28, {WA+2048*r}\ns_lshl_b32 s30, s{st}, 4\ns_add_u32 s30, s30, s{so}")
            k(f"buffer_load_dwordx4 v{SJT+2}, s[{S0}:{S0+3}], s{so} offen lds", tag="sj")
            k(f"s_add_u32 m0, s28, {WA+2048*r+1024}")
            k(f"v_add_u32 v{SJD+2*r}, s{dst}, v3")
            k(f"buffer_load_dwordx4 v{SJT+2}, s[{S0}:{S0+3}], s30 offen lds", tag="sj")
            k(f"v_add_u32 v{SJD+2*r+1}, s{fd}, v{SJD+2*r}")
        k(f"v_lshrrev_b32 v{SJR}, 4, v1\nv_lshlrev_b32 v{SJR}, 3, v{SJR}\nv_and_b32 v{SJT}, 3, v{SJT}\nv_add_u32 v{SJR}, v{SJR}, v{SJT}\nv_lshl_add_u32 v{SJR}, v{SJR}, 6, v{SJT+1}\nv_add_u32 v{SJR}, s28, v{SJR}")
    MG = "s3"; J, MTB, MT, JW, W14, T14 = [S_(n) for n in "J MTB MT JW W14 T14".split()]
    k(f"s_lshr_b32 {MG}, {HD}, 3\ns_and_b32 {J}, {HD}, 7")
    k(f"s_lshl_b32 {MTB}, {X}, 4\ns_lshl_b32 {T}, {MG}, 2\ns_add_u32 {MTB}, {MTB}, {T}\ns_add_u32 {MT}, {MTB}, {W}")
    k(f"s_lshl_b32 {JW}, {J}, 2\ns_add_u32 {JW}, {JW}, {W}\ns_lshl_b32 {W14}, {W}, 14\ns_lshl_b32 {T14}, {MT}, 14")
    sONE, sM2, sCNT, sXC = S_("ONE"), S_("M2"), S_("CNT"), S_("XC")
    RET = S_("RET", 2, 2); RETP = f"s[{RET[1:]}:{int(RET[1:])+1}]"
    k(f"s_mov_b32 {sONE}, {ONES:#x}\ns_mov_b32 {sM2}, -2\ns_mov_b32 {sCNT}, 0")
    k.cnt = sCNT
    k(f"s_getreg_b32 {sXC}, hwreg(HW_REG_XCC_ID, 0, 4)")
    for r in range(4): k(f"v_accvgpr_write_b32 a{168+r}, -1")
    k("v_and_b32 v10, 31, v1\nv_lshrrev_b32 v11, 5, v1\nv_and_b32 v12, 15, v1\nv_lshrrev_b32 v13, 4, v1")
    sXT = S_("XT")
    k(f"s_lshl_b32 {sXT}, {X}, 12\ns_add_u32 {sXT}, {sXT}, {XT:#x}\ns_lshl_b32 {T}, {HD}, 7\ns_add_u32 {T}, {T}, {sXT}")
    k(f"v_sub_u32 v14, 0, v0\nv_and_b32 v14, {OOB:#x}, v14\nv_mov_b32 v15, {sXC}")
    if SJK:
        k(f"v_add_u32 v{SJF}, {T}, v14\nv_mov_b32 v{SJF+1}, {sXC}\ns_lshl_b32 {T}, {W}, 13\ns_add_u32 {T}, {T}, {XT:#x}\nv_lshlrev_b32 v{SJF+2}, 7, v1\nv_add_u32 v{SJF+2}, {T}, v{SJF+2}")
    elif OPT.get('ock'):
        k(f"v_add_u32 v141, {T}, v14\nv_mov_b32 v142, {sXC}")
        k(f"s_lshl_b32 {T}, {X}, 5\ns_add_u32 {T}, {T}, {HD}\ns_lshl_b32 {T}, {T}, 2\ns_add_u32 {T}, {T}, {W}\ns_lshl_b32 {T}, {T}, 11\ns_add_u32 {T}, {T}, {OF:#x}\nv_add_u32 v143, {T}, v3")
    else: k(f"buffer_store_dword v15, v14, s[4:7], {T} offen sc1", tag="clr")
    NCL = 12-OPT.get('k1u', 0)
    sCL, sSet, sXT_, sW2a, sW2b = S_("CL"), S_("Set"), S_("XTl"), S_("W2a"), S_("W2b")
    k(f"s_mul_i32 {sSet}, {X}, {SETS:#x}\ns_add_u32 {sSet}, {sSet}, {SETB:#x}")
    k(f"s_lshl_b32 {T}, {HD}, 2\ns_add_u32 {T}, {T}, {W}\ns_mul_i32 {T}, {T}, {1024*NCL}\ns_add_u32 {sCL}, {sSet}, {T}")
    CL = [f"buffer_store_dwordx4 a[168:171], v{3+i//4}, s[4:7], {sCL} offen offset:{1024*(i%4)}" for i in range(NCL)]
    atr = []
    def clpair(i):
        def f():
            a = k.newlabel("Z"); c = k.newlabel("C")
            k(f"s_cbranch_scc1 {a}")
            for x in CL[i:i+2]: k(x + ('', ' sc0', ' nt', ' sc0 nt')[OPT.get('clm', 0)], tag="clr")
            k.label(c)
            atr.append([f"{a}:"] + [x + " sc1" for x in CL[i:i+2]] + [f"s_branch {c}"])
        return f
    k(f"v_lshlrev_b32 v{XV}, 10, v12\nv_lshl_add_u32 v{XV}, v13, 4, v{XV}")
    k(f"s_lshl_b32 {sXT_}, {J}, 7\ns_add_u32 {sXT_}, {sXT_}, {T14}")
    EL = [(f"buffer_load_dwordx4 a[160:163], v{XV}, s[8:11], {sXT_} offen", "w"), (f"buffer_load_dwordx4 a[164:167], v{XV}, s[8:11], {sXT_} offen offset:64", "w")]
    sSh, sSx = S_("Sh"), S_("Sx")
    k(f"s_and_b32 {T}, {MT}, 15\ns_lshl_b32 {T}, {T}, 10\ns_add_u32 {sSh}, {sSet}, {T}\ns_add_u32 {sSh}, {sSh}, {SO:#x}\ns_add_u32 {sSx}, {sSh}, 0x4000")
    sWO, sW1, sSA, sSB = S_("WO"), S_("W1"), RET, S_("SB")
    k(f"s_lshl_b32 {T2}, {J}, 16\ns_add_u32 {sWO}, {T2}, {W14}\ns_add_u32 {sW1}, {sWO}, {W1F:#x}\ns_add_u32 {sWO}, {sWO}, {WOF:#x}")
    k(f"s_mul_i32 {sSA}, {W}, 6144\ns_mul_i32 {sSB}, {W}, 10240\ns_add_u32 {sSB}, {sSB}, 24576\ns_add_u32 {T2}, {T2}, {W2F:#x}")
    def ldr(dst, so, i, vo=None): return (f"buffer_load_dwordx4 {dst}, {vo or 'v%d' % (3+i//4)}, s[4:7], {so} offen offset:{1024*(i%4)}", "w")
    k(f"s_add_u32 {sW2a}, {T2}, {sSA}\ns_add_u32 {sW2b}, {T2}, {sSB}")
    EL += [ldr(ar(4*i), sW2a, i) for i in range(6)] + [ldr(ar(24+4*i), sW2b, i) for i in range(10)]
    if OPT.get('xlate'): EL = EL[2:] + EL[:2]
    ne = OPT.get('early', 6)
    for x in EL[:ne]: em(x)
    EL = EL[ne:]
    for a in (10, 11, 12):
        r = S_(f"WR{a}")
        k(f"s_cmp_ge_u32 {W}, {NR-a}\ns_cselect_b32 {T}, {NR*RP}, 0\ns_sub_u32 {r}, {sRW}, {T}\ns_add_u32 {r}, {r}, {a*RP}")
    s3 = [S_("3a"), S_("3b"), S_("3c")]; s4 = [S_("4a"), S_("4b"), S_("4c")]
    k(f"s_lshl_b32 {s3[0]}, {JW}, 15\ns_add_u32 {s3[0]}, {s3[0]}, {W3F:#x}\ns_add_u32 {s3[1]}, {s3[0]}, 16384")
    k(f"s_add_u32 {s3[2]}, {JW}, 64\ns_min_u32 {s3[2]}, {s3[2]}, 85\ns_lshl_b32 {s3[2]}, {s3[2]}, 14\ns_add_u32 {s3[2]}, {s3[2]}, {W3F:#x}")
    k(f"s_mul_i32 {s4[0]}, {J}, 43\ns_mul_i32 {T}, {W}, 11\ns_add_u32 {s4[0]}, {s4[0]}, {T}\ns_lshl_b32 {s4[0]}, {s4[0]}, 12\ns_add_u32 {s4[0]}, {s4[0]}, {W4F:#x}")
    k(f"s_add_u32 {s4[1]}, {s4[0]}, 16384\ns_add_u32 {s4[2]}, {s4[0]}, 32768")
    sOs = [S_("Os0"), S_("Os1")]
    k(f"s_lshl_b32 {sOs[0]}, {X}, 18\ns_lshl_b32 {T}, {W}, 16\ns_add_u32 {sOs[0]}, {sOs[0]}, {T}\ns_lshl_b32 {T}, {HD}, 9\ns_add_u32 {sOs[0]}, {sOs[0]}, {T}\ns_add_u32 {sOs[0]}, {sOs[0]}, {OF:#x}\ns_add_u32 {sOs[1]}, {sOs[0]}, 0x8000")
    sOl, sHl, sHs, sGl, sGs, sXl, sXs, sDP, sDN, sMB, sSV = [S_(n) for n in "Ol Hl Hs Gl Gs Xl Xs DP DN MB SV".split()]
    k(f"s_add_u32 {sOl}, {T14}, {OF:#x}\ns_and_b32 {T14}, {T14}, 0x3ffff\ns_add_u32 {T14}, {T14}, {sSet}")
    GA_L = OPT.get('gal', 1)
    k(f"s_add_u32 {sHl}, {T14}, {HO:#x}\ns_add_u32 {sXl}, {T14}, {XO:#x}\ns_sub_u32 {sGl}, {T14}, {(0 if GA_L else 32)+16384-GO:#x}")
    k(f"s_lshl_b32 {T}, {J}, 11\ns_add_u32 {sHs}, {sHl}, {T}\ns_add_u32 {sXs}, {sXl}, {T}\ns_sub_u32 {sGs}, {sHs}, {HO-GO+(16384 if GA_L else 0):#x}")
    sOt = MTB2 = S_("Ot")
    k(f"s_add_u32 {sOt}, {sOl}, {T}\nv_lshlrev_b32 v{XV+2}, 5, v1")
    q = 0 if GA_L else 256
    k(f"s_lshl_b32 {T2}, {X}, 15\ns_add_u32 {sMB}, {T2}, {T}\ns_add_u32 {sMB}, {sMB}, {GM:#x}")
    k(f"s_sub_u32 {T2}, {T2}, {T14}\ns_add_u32 {T2}, {T2}, {GM-GO+16384:#x}")
    k(f"s_add_u32 {sDP}, {T2}, {(q-16384) & 0xffffffff:#x}\ns_add_u32 {sDN}, {T2}, {32768-q}")
    k(f"s_cmp_eq_u32 {X}, 0\ns_cselect_b32 {sDP}, {OOB:#x}, {sDP}\ns_cmp_eq_u32 {X}, 7\ns_cselect_b32 {sDN}, {OOB:#x}, {sDN}")
    k(f"s_and_b32 {T}, {MT}, 15\ns_cmp_eq_u32 {T}, 0\ns_cselect_b32 {sDP}, {sDP}, {16384 if GA_L else 256}\ns_cmp_eq_u32 {T}, 15\ns_cselect_b32 {sDN}, {sDN}, {16384 if GA_L else 32768-256}")
    k(f"s_cselect_b32 {T2}, 16384, 0\ns_add_u32 {sMB}, {sMB}, {T2}")
    if GA_L:
        sNS, sOT = S_("NS"), S_("OT")
        k(f"s_lshr_b32 {sNS}, {J}, 2\ns_add_u32 {sNS}, {sNS}, 1\ns_sub_u32 {T2}, 0, {sNS}\ns_mov_b32 {sOT}, 256")
        k(f"s_bitcmp1_b32 {J}, 1\ns_cselect_b32 {sNS}, {T2}, {sNS}\ns_cselect_b32 {sOT}, {sOT}, {32768-256}\ns_cselect_b32 {T2}, {sOT}, {-256 & 0xffffffff:#x}")
        k(f"s_add_u32 {sMB}, {sMB}, {T2}\ns_lshl_b32 {T2}, {sNS}, 4\ns_add_u32 {sMB}, {sMB}, {T2}\ns_add_u32 {sGs}, {sGs}, {T2}")
    k(f"s_bitcmp1_b32 {J}, 1\ns_cselect_b32 {T2}, 0, 15\ns_cmp_eq_u32 {T}, {T2}\ns_cselect_b32 {sMB}, {sMB}, 0")
    if GA_L: k(f"s_cselect_b32 {sOT}, {OOB:#x}, {sOT}")
    k(f"s_lshr_b32 {sSV}, {J}, 1\ns_lshl_b32 {sSV}, {sSV}, 8\ns_and_b32 {T}, {J}, 1\ns_lshl_b32 {T}, {T}, 3\ns_add_u32 {sSV}, {sSV}, {T}")
    sTid = [W] + [S_(f"Tid{q}") for q in range(1,4)]
    sUs = [S_(f"Us{q}") for q in range(4)]; sUl = [sSet, T14] + [S_(f"Ul{q}") for q in range(2,4)]; sHF, sOut = MG, [JW, MT]
    for q in range(1,4): k(f"s_cmp_le_u32 {W}, {q-1}\ns_cselect_b32 {sTid[q]}, {q}, {q-1}")
    k(f"s_mul_i32 {T2}, {MG}, {4*UT}\ns_add_u32 {sSet}, {sSet}, {T2}\ns_add_u32 {sSet}, {sSet}, {UO:#x}")
    k(f"s_lshl_b32 {T}, {JW}, 10\ns_add_u32 {T}, {T}, {sSet}")
    for q in range(4): k(f"s_mul_i32 {sUs[q]}, {sTid[q]}, {UT}\ns_add_u32 {sUs[q]}, {sUs[q]}, {T}")
    k(f"s_lshr_b32 {T}, {JW}, 1\ns_add_u32 {T}, {T}, 32\ns_sub_u32 {T}, {T}, {JW}\ns_lshl_b32 {T}, {T}, 10\ns_and_b32 {T2}, {JW}, 1\ns_lshl_b32 {T2}, {T2}, 3\ns_add_u32 {T}, {T}, {T2}")
    k(f"s_cmp_lt_u32 {JW}, 22\ns_cselect_b32 {sHF}, {T}, {OOB:#x}")
    k(f"s_mul_i32 {T}, {W}, {11*1024}\ns_add_u32 {sUl[0]}, {sSet}, {T}")
    for t in range(1,4): k(f"s_add_u32 {sUl[t]}, {sUl[0]}, {t*UT}")
    k(f"s_lshr_b32 {T}, {W}, 1\ns_add_u32 {T}, {T}, {MTB}\ns_lshl_b32 {sOut[0]}, {T}, 14\ns_lshl_b32 {T}, {J}, 7\ns_add_u32 {sOut[0]}, {sOut[0]}, {T}")
    k(f"s_and_b32 {T}, {W}, 1\ns_lshl_b32 {T}, {T}, 6\ns_add_u32 {sOut[0]}, {sOut[0]}, {T}\ns_add_u32 {sOut[1]}, {sOut[0]}, 0x8000")
    k(f"v_add_u32 v{KA}, {RING:#x}, v3")
    k(f"v_lshlrev_b32 v14, 4, v12\nv_lshl_add_u32 v14, v11, 8, v14")
    k(f"v_add_u32 v{VA0}, {RING+1024:#x}, v14\nv_add_u32 v{VA1}, {RING+1536:#x}, v14\nv_mov_b32 v15, {RING+2048:#x}")
    k(f"v_cmp_gt_u32 vcc, 16, v10\nv_cndmask_b32 v{VA0}, v15, v{VA0}, vcc\nv_cndmask_b32 v{VA1}, v15, v{VA1}, vcc")
    k("v_lshrrev_b32 v2, 4, v10\nv_lshl_add_u32 v2, v2, 14, v14")
    k(f"v_lshlrev_b32 v{XTV}, 7, v10")
    k(f"v_min_u32 v15, {NR-1}, v1\nv_mul_u32_u24 v15, {RP}, v15\nv_add_u32 v15, {RING+2048:#x}, v15")
    for r in range(4): k(f"v_mov_b32 v{V0+r}, {sONE}")
    k(f"ds_write_b128 v15, {vr(V0)}")
    for r in range(4): k(f"v_accvgpr_write_b32 a{172+r}, v{V0}")
    for r in range(32): k(f"v_mov_b32 v{O[0]+r}, 0")
    for r in range(4,8): k(f"v_mov_b32 v{P[1]+r}, 0")
    for r in range(4): k(f"v_mov_b32 v{V1+r}, 0")
    k(f"s_lshl_b32 {T}, {W}, 10\ns_add_u32 {T}, {T}, {WB:#x}\nv_add_u32 v10, {T}, v3")
    k(f"s_lshl_b32 {T}, {W}, 6\ns_add_u32 {T}, {T}, {CSL:#x}\nv_lshlrev_b32 v11, 4, v13\nv_add_u32 v11, {T}, v11")
    k(f"v_add_u32 v15, {sSA}, v{KA}")
    if OPT.get('cpf'):
        pc = k.newlabel()
        k(f"s_getpc_b64 {RETP}"); k.label(pc)
        k(f"s_add_u32 {RET}, {RET}, L_attn_fin-{pc}\ns_addc_u32 s{int(RET[1:])+1}, s{int(RET[1:])+1}, 0\ns_lshl_b32 {T}, {W}, 13")
        if OPT.get('cpf2', 1): k(f"s_lshl_b32 {T}, {HD}, 2\ns_add_u32 {T}, {T}, {W}\ns_lshl_b32 {T}, {T}, 8")
        k(f"v_lshlrev_b32 v136, {'6, v13' if OPT.get('cpf2', 1) else '7, v1'}\nv_add_u32 v136, {T}, v136\nv_min_u32 v136, L_code_end-L_attn_fin-4, v136\nv_mov_b32 v137, s{int(RET[1:])+1}")
        k(f"v_add_co_u32 v136, vcc, {RET}, v136\nv_addc_co_u32 v137, vcc, 0, v137, vcc")
    DM = []
    for so, lb in ((sWO, WA), (sW1, WB)):
        for q in range(4): DM.append((f"s_add_u32 m0, {W14}, {lb+4096*q:#x}", [(f"buffer_load_dwordx4 v{3+q}, s[4:7], {so} offen offset:{1024*i} lds", "w") for i in range(4)]))
    RL = [ldr(w3reg(t, s), s3[t], s) for t in range(3) for s in range(16)] + [ldr(w4reg(i//4, i%4), s4[i//16], i%16) for i in range(24)]
    if OPT.get('nofill'): DM = []
    if OPT.get('fakeld'):
        import re as _re
        fk = lambda x: (_re.sub(r"s\[4:7\], s\d+ ", "s[4:7], 0 ", x[0]), x[1])
        DM = [(m, [fk(x) for x in L]) for m, L in DM]; RL = [fk(x) for x in RL]; EL = [fk(x) for x in EL]
    spot = {}
    def put(t, sp, x): spot.setdefault((t, sp), []).append(x)
    for n in range(1, 14):
        put(4*n-2, 'Bpv_s', kvm0(n+2))
        if not (n+2) & 1: put(4*n-2, 'Bmid_s', kvso)
        for x in kvld(n+2): put(4*n-1, 'Apv', x)
    if OPT.get('ock'):
        o0 = OPT.get('oc0', 1); ob = OPT.get('ocb', 11)
        assert ob % 4 == 3 and ob > o0+1 and ob < OPT.get('clr0', 36)-13-4
        for i in range(2): put(o0+i, 'Bmid', (f"buffer_store_dwordx4 a[168:171], v143, s[4:7], 0 offen offset:{1024*i} sc1", "oc"))
        put(ob, 'Abar', lambda: k.waitvm("oc"))
        put(ob, 'Bmid', (f"buffer_store_dword v142, v141, s[4:7], 0 offen sc1", "clr"))
    free = []
    F0 = OPT.get('fill0', 0)
    if SJK:
        s0 = OPT.get('sj0', 4); sb = OPT.get('sjb2', 11); F0 = OPT.get('sjf', 16)
        assert sb % 4 == 3 and F0 % 4 == 0 and F0 > sb+1
        put(s0, 'Bpre', lambda: k.waitvm("sj"))
        for r in range(3):
            for b in range(2):
                for a in range(2): put(s0+r, 'Bpre' if b == 0 else 'Bmid', f"ds_read_b64_tr_b16 {vr(SJT+8*r+4*b+2*a,2)}, v{SJR} offset:{2048*r+256*a+8*b}")
                put(s0+r+1, 'Apv', (f"buffer_store_dwordx4 {vr(SJT+8*r+4*b)}, v{SJD+2*r+b}, s[4:7], 0 offen sc1", "sjs"))
        put(sb, 'Abar', lambda: k.waitvm("sjs"))
        put(sb, 'Bpre', (f"buffer_store_dword v{SJF+1}, v{SJF}, s[4:7], 0 offen sc1", "clr"))
        pl = f"buffer_load_dword v{SJF+1}, v{SJF+2}, s[4:7], 0 offen sc1"
        put(F0-1-OPT.get('sjp', 1), 'Bmid', (pl, "pol"))
        def polchk():
            a = k.newlabel("Y"); c = k.newlabel("C")
            k.waitvm("pol")
            k(f"v_cmp_eq_u32 vcc, -1, v{SJF+1}\ns_cbranch_vccnz {a}"); k.label(c)
            atr.append([f"{a}:", pl, f"s_add_u32 {sCNT}, {sCNT}, 1", f"s_cmp_gt_u32 {sCNT}, {BOUND}", "s_waitcnt vmcnt(0)", f"v_cmp_eq_u32 vcc, -1, v{SJF+1}",
                        f"s_cbranch_scc1 {c}", f"s_cbranch_vccnz {a}", f"s_branch {c}"])
        put(F0-1, 'Abar', polchk)
        for x in EL[:2]: put(sb-2, 'Apv', x)
        EL = EL[2:]
    for t in range(F0, 64):
        g = (t+1-F0)//4
        if t % 4 in (0, 1) and g < len(DM):
            for x in DM[g][1][2*(t%4):2*(t%4)+2]: put(t, 'Apv', x)
            if t % 4 == 0:
                if t: put(t-1, 'Bmid_s', DM[g][0])
                else: k(DM[g][0])
        elif t % 4 == 3 and t < 55: free.append((t, 'Bpre'))
        else: free.append((t, 'Apv'))
    LT = OPT.get('lastfill', 56)
    free = [f for f in free if f[0] < LT]
    RL = EL + RL
    if OPT.get('nofill'): RL = []; CL = []
    FL = [RL[i:i+2] for i in range(0, len(RL), 2)]
    C0 = OPT.get('clr0', 36); ctl = [t for t in range(C0, 64) if t % 4 in (0, 1)][:len(CL)//2]
    assert not ctl or ctl[-1] < 51
    for i, t in enumerate(ctl):
        put(t-1, 'Bpv_s', "s_cmp_lg_u64 s[0:1], 0"); put(t, 'Bmid', clpair(2*i))
    put(C0-13, 'Bmid', (f"buffer_load_dword v{XTV}, v{XTV}, s[4:7], {sXT} offen sc1", "xt"))
    put(C0-2, 'Bpre', lambda: (k.waitvm("xt"), k(f"v_cmp_ne_u32 s[0:1], {sXC}, v{XTV}" if not OPT.get('slowtail') else "s_mov_b64 s[0:1], -1")))
    if OPT.get('cpf'): put(OPT['cpf'], 'Bmid', ("global_load_dword v0, v[136:137], off", "cpf"))
    if OPT.get('spf', 8):
        n = OPT.get('spf', 8); L = -(-50//n); h = n//2
        k(f"s_mul_i32 {T}, {X}, {SETS:#x}\ns_lshl_b32 {T2}, {HD}, 2\ns_add_u32 {T2}, {T2}, {W}\ns_mul_i32 {T2}, {T2}, 6400\ns_add_u32 {T}, {T}, {T2}\ns_add_u32 {T}, {T}, {SETB:#x}")
        k(f"v_sub_u32 v139, {L-1}, v1\nv_and_b32 v139, {OOB:#x}, v139\nv_lshl_add_u32 v138, v1, 7, v139\nv_add_u32 v138, {T}, v138\nv_add_u32 v139, {128*L*h}, v138")
        t0 = OPT.get('spft', 30); ts = OPT.get('spfs', 4)
        for i in range(n): put(t0+ts*i, 'Bmid', (f"buffer_load_dword v0, v{138+i//h}, s[4:7], 0 offen offset:{128*L*(i%h)} sc1", "spf"))
        if OPT.get('spu'):
            k(f"s_mul_i32 {T2}, {T2}, 43\ns_mul_i32 {T}, {X}, {SETS:#x}\ns_add_u32 {T}, {T}, {SETB+UO:#x}")
            k(f"s_lshl_b32 {T2}, {HD}, 2\ns_add_u32 {T2}, {T2}, {W}\ns_mul_i32 {T2}, {T2}, {43*128}\ns_add_u32 {T}, {T}, {T2}")
            k(f"v_sub_u32 v140, 42, v1\nv_and_b32 v140, {OOB:#x}, v140\nv_lshl_add_u32 v140, v1, 7, v140\nv_add_u32 v140, {T}, v140")
            put(OPT['spu'], 'Bmid', (f"buffer_load_dword v0, v140, s[4:7], 0 offen sc1", "spf"))
            if OPT.get('wrs'):
                for i in range(3): put(OPT.get('wrm', 1)+OPT['wrs']*i, 'Bmid', (f"buffer_load_dword v0, v{140-i}, s[4:7], 0 offen{('', ' nt', ' sc1')[OPT.get('wrk', 0)]}", "spf"))
    put(51, 'Bmid', (f"buffer_load_dword v0, v{XV+2}, s[4:7], {sOt} offen sc1", "ot"))
    need = len(FL) - len(free)
    cand = [t for t in range(F0, LT) if t % 4 != 3 and t not in ctl]
    for i in range(max(0, need)): free.append((cand[i*len(cand)//need], 'Bmid'))
    free.sort()
    for f, xs in zip(free, FL):
        for x in xs: put(*f, x)
    assert RET == "s20"
    if OPT.get('hop', 1) & 1: hopentry(k, W, k.name, 4, 1)
    stamp(k,"k_pre")
    k.waitvm("g0", "lgkmcnt(0)")
    k("s_barrier")
    stamp(k,"m_g0")
    k(f"ds_read_b128 {vr(KR)}, v{KA}\nds_read_b128 {vr(V0)}, v{VA0}")
    k("s_waitcnt lgkmcnt(1)")
    k(M32(vr(S[0],16), vr(KR), vr(QA), 0)); k(M32(vr(S[1],16), vr(KR), vr(QB), 0))
    k(f"v_max_f32 v{C}, v{S[0]}, v{S[0]+1}")
    for r in range(2,32,2): k(f"v_max3_f32 v{C}, v{C}, v{S[0]+r}, v{S[0]+r+1}")
    k(f"v_mov_b32 v{C+1}, v{C}\nv_permlane32_swap_b32 v{C}, v{C+1}\nv_max_f32 v{C}, v{C}, v{C+1}")
    k(f"v_sub_f32 v{C}, 0, v{C}")
    for r in range(1,16): k(f"v_mov_b32 v{C+r}, v{C}")
    for r in range(0,16,2): k(f"v_pk_add_f32 {pr(S[0]+r)}, {pr(S[0]+r)}, {pr(C)}")
    k(f"v_mov_b32 v{S[1]+14}, 0\nv_mov_b32 v{S[1]+15}, 0")
    stamp(k,"k_att0")
    MIDJ = OPT.get('midj', 1); PVJ = OPT.get('pvj', 5)
    def half(X_, t):
        s = S[X_]; p = P[X_]; Y = 1-X_; last = t == 63
        pos = lambda tt: (tt % NR)*RP
        g = lambda sp: spot.get((t, sp), [])
        if X_ == 0:
            a = []
            if (t+1) % 4 == 0 and not last: a = [lambda: k.waitvm(f"g{(t+1)//4}")] + g('Abar') + ["s_barrier"]
            if not last: a.append(f"ds_read_b128 {vr(KR)}, v{KA} offset:{pos(t+1)}")
            pre = [M32(vr(S[1],16), vr(KR), vr(QB), vr(C,16))] + a
            mid = [f"s_waitcnt lgkmcnt({0 if last else 1})", f"ds_read_b128 {vr(V1)}, v{VA1} offset:{pos(t)}"]
            pv = ([] if last else ["s_waitcnt lgkmcnt(1)"]) + g('Apv')
        else:
            pre = ([] if last else [M32(vr(S[0],16), vr(KR), vr(QA), vr(C,16))]) + ["s_waitcnt lgkmcnt(0)"] + g('Bpre')
            mid = g('Bmid_s') + g('Bmid')
            pv = g('Bpv_s') + ([] if last else [f"ds_read_b128 {vr(V0)}, v{VA0} offset:{pos(t+1)}"])
        for j in range(8):
            k(f"v_exp_f32 v{s+2*j}, v{s+2*j}")
            if j == 0:
                k(f"v_cvt_pk_bf16_f32 v{P[Y]+7}, v{S[Y]+14}, v{S[Y]+15}")
                for x in pre: em(x)
            k(f"v_exp_f32 v{s+2*j+1}, v{s+2*j+1}")
            if j >= 1: k(f"v_cvt_pk_bf16_f32 v{p+j-1}, v{s+2*j-2}, v{s+2*j-1}")
            if j == MIDJ:
                k(M32(vr(O[Y],16), vr(V1), vr(P[Y]+4), vr(O[Y],16)))
                for x in mid: em(x)
            if j == PVJ:
                k(M32(vr(O[X_],16), vr(V0), vr(p), vr(O[X_],16)))
                for x in pv: em(x)
    for t in range(64):
        half(0, t); half(1, t)
        if t == 31: stamp(k,"m_att32")
        stamp(k, f"t{t%4}_{t:02d}")
    k(f"v_cvt_pk_bf16_f32 v{P[1]+7}, v{S[1]+14}, v{S[1]+15}")
    T0 = S[0]
    k(f"v_rcp_f32 v{T0+4}, v{O[0]+8}")
    k(M32(vr(O[1],16), vr(V1), vr(P[1]+4), vr(O[1],16)))
    stamp(k,"m_att64")
    def norm(X_):
        for r in range(0,8,2): k(f"v_pk_mul_f32 {pr(O[X_]+r)}, {pr(O[X_]+r)}, {pr(T0+4+2*X_)} op_sel_hi:[1,0]")
        for r in range(4): k(f"v_cvt_pk_bf16_f32 v{P[X_]+r}, v{O[X_]+2*r}, v{O[X_]+2*r+1}")
        k(f"v_min_u32 v{P[X_]}, {sM2}, v{P[X_]}")
    k(f"v_pk_mul_f32 {pr(T0)}, {pr(O[0]+8)}, 0 op_sel_hi:[1,0]")
    for r in range(0,8,2): k(f"v_pk_fma_f32 {pr(T0)}, {pr(O[0]+r)}, 0, {pr(T0)} op_sel_hi:[1,0,1]")
    norm(0)
    k(f"s_mov_b32 {T}, {fhex(2.0**-30)}\ns_mov_b32 {T2}, {fhex(2.0**30)}")
    k(f"v_rcp_f32 v{T0+6}, v{O[1]+8}")
    for r in range(0,10,2): k(f"v_pk_fma_f32 {pr(T0)}, {pr(O[1]+r)}, 0, {pr(T0)} op_sel_hi:[1,0,1]")
    k(f"v_min_f32 v{T0+2}, v{O[0]+8}, v{O[1]+8}\nv_max_f32 v{T0+3}, v{O[0]+8}, v{O[1]+8}")
    k(f"v_cmp_u_f32 vcc, v{T0}, v{T0+1}")
    k(f"v_cmp_gt_f32 {RETP}, {T}, v{T0+2}")
    k(f"s_or_b64 vcc, vcc, {RETP}")
    k(f"v_cmp_lt_f32 {RETP}, {T2}, v{T0+3}")
    k(f"s_or_b64 vcc, vcc, {RETP}")
    if OPT['slow']: k("s_branch L_attn_slow")
    if not OPT.get('noslow'): k("s_cbranch_vccnz L_attn_slow")
    k.label("L_attn_fin")
    k("s_cmp_lg_u64 s[0:1], 0")
    k("s_cbranch_scc1 L_tail_sc")

    def tail(fast):
        sc = "" if fast else " sc1"
        stubs = []; tramp = []
        st = (lambda n: stamp(k, n)) if fast != bool(OPT.get('slowtail')) else (lambda n: None)
        ACT=16; H=80; STR=96; A2=100; TMP=132; PK=ACT+32
        WV = [120,124,128,132,136,140,96,100,116,104,108,112]
        R10 = [ar(4*i) for i in range(6)] + [vr(116+4*i) for i in range(4)]
        def buf(e): return vr(WV[e % 12]) if e < 80 else R10[(e-80) % 10]
        def rd(e):
            if e < 16: a = f"v10 offset:{4096*e}"
            elif e < 80: a = f"v3 offset:{1024*(e-16)}"
            elif e < 144: a = f"v8 offset:{1024*(e-80)}"
            elif e < 168: a = f"v{KA} offset:{1024*(e-144)}"
            else: a = f"v3 offset:{1024*(e-144)}"
            if OPT.get('abl') == 2 and e >= 92: return (f"ds_read_b32 v0, {a}", f"r{e}")
            return (f"ds_read_b128 {buf(e)}, {a}", f"r{e}")
        def refill(e):
            n = e+12 if e < 78 else (e+10 if e >= 80 else None)
            return [rd(n)] if n is not None and n < 208 else []
        def stub(name, L):
            lab = k.newlabel("S"+name)
            o = [f"{lab}:"]
            for x, regs in L:
                sk = k.newlabel("K")
                o += maxl(regs) + [f"s_cbranch_vccz {sk}", x, f"{sk}:"]
            o += ["s_waitcnt vmcnt(0)", f"s_setpc_b64 {RETP}"]
            stubs.append(o); return dict(lab=lab, L=L, iss=set())
        def maxl(regs):
            r = list(regs); o = []
            if len(r) == 1: return [f"v_cmp_eq_u32 vcc, -1, v{r[0]}"]
            if len(r) % 2 == 0: o.append(f"v_max_u32 v0, v{r[0]}, v{r[1]}"); r = r[2:]
            else: o.append(f"v_max3_u32 v0, v{r[0]}, v{r[1]}, v{r[2]}"); r = r[3:]
            while r: o.append(f"v_max3_u32 v0, v0, v{r[0]}, v{r[1]}"); r = r[2:]
            return o + ["v_cmp_eq_u32 vcc, -1, v0"]
        def br(D, own):
            def f():
                a = k.newlabel("R"); c = k.newlabel("C")
                if D.get('inl'):
                    assert all(i in D['iss'] for i in own), (own, D['iss'])
                    D['iss'] -= set(own)
                    od = D['ord']; p0 = min(j for j, (i, q) in enumerate(od) if i in own and (i < 16 or D.get('nst')))
                    p1 = max(j for j, (i, q) in enumerate(od) if i in own)
                    for j in range(p1+1, len(od)):
                        if len(k.vmq) - od[j][1] != len(od) - j: p1 = j
                    re_ = [i for j, (i, q) in enumerate(od) if j >= p0 or i in own]
                    o = []; cur = None
                    for i in re_:
                        if D.get('m0', {}).get(i, cur) != cur: cur = D['m0'][i]; o.append(cur)
                        o.append(D['L'][i][0])
                    assert cur in (None, D.get('m0cur'))
                    o = o + [f"s_add_u32 {sCNT}, {sCNT}, {len(re_) if OPT.get('cntw') else 1}", f"s_cmp_gt_u32 {sCNT}, {BOUND}", f"s_waitcnt vmcnt({len(od)-1-p1})"]
                    rr = [D['rd'][i] for i in own if i in D.get('rd', {})]
                    if rr:
                        assert 0 not in own
                        o += rr + ["s_waitcnt lgkmcnt(0)"]
                    o += maxl([r for i in own for r in D['L'][i][1]]) + [f"s_cbranch_scc1 {c}", f"s_cbranch_vccnz {a}"]
                    if D['inl'] == 1 or (D['inl'] == 3 and 0 in own):
                        k(f"s_cbranch_vccz {c}"); k.label(a)
                        n0 = len(k.vmq)
                        for x in o: k(x)
                        del k.vmq[n0:]
                        k.label(c)
                    elif OPT.get('abl') == 4: pass
                    elif OPT.get('abl') == 5: k("s_nop 0")
                    elif OPT.get('abl') == 6:
                        k(f"s_cbranch_execz {a}"); k.label(c)
                        tramp.append([f"{a}:"] + o + [f"s_branch {c}"])
                    else:
                        k(f"s_cbranch_vccnz {a}"); k.label(c)
                        tramp.append([f"{a}:"] + o + [f"s_branch {c}"])
                    return
                k(f"s_cbranch_vccnz {a}"); k.label(c)
                assert all(i in D['iss'] for i in own), (own, D['iss'])
                D['iss'] -= set(own)
                o = [f"{a}:"] + [D['L'][i][0] for i in own]
                o += [f"s_add_u32 {sCNT}, {sCNT}, 1", f"s_cmp_gt_u32 {sCNT}, {BOUND}", "s_waitcnt vmcnt(0)", f"s_cbranch_scc1 {c}"]
                o += maxl([r for i in own for r in D['L'][i][1]]) + [f"s_cbranch_vccnz {a}"]
                if D['iss']:
                    o += maxl([r for i in sorted(D['iss']) for r in D['L'][i][1]]) + [f"s_cbranch_vccz {c}", f"s_call_b64 {RETP}, {D['lab']}"]
                tramp.append(o + [f"s_branch {c}"])
            return f
        def iss(D, i, tag):
            def f():
                D.setdefault('ord', []).append((i, len(k.vmq)))
                if D.get('m0', {}).get(i, D.get('m0cur')) != D.get('m0cur'):
                    D['m0cur'] = D['m0'][i]; k(D['m0cur'])
                k(D['L'][i][0].replace(' sc1', (' sc1', '', ' sc0', ' nt', ' sc1 nt')[OPT.get('ldm', 0) if fast else 0]), tag=tag); D['iss'].add(i)
            return f
        def stream(M, G):
            for i, m in enumerate(M):
                k(m)
                for x in G.get(i, []): em(x)
        def spread(G, items, gaps):
            n = len(items); g = len(gaps)
            for i, x in enumerate(items): G.setdefault(gaps[i*g//n], []).append(x)
        def fcost(x):
            if callable(x): return OPT.get('cw', 4)
            t = x[0] if isinstance(x, tuple) else x
            if t.startswith("buffer_"): return OPT.get('cl', 6)
            if t.startswith("ds_write"): return OPT.get('cd', 8)
            return 8 if t.startswith(TRANS) else 4*(1+t.count("\n"))
        def spreadb(G, items, gaps, F):
            fx = {g: sum(fcost(x) for x in F.get(g, []) + G.get(g, [])) for g in gaps}
            tot = sum(fx.values()) + sum(fcost(x) for x in items); acc = 0; j = 0; n = len(gaps)
            for i, g in enumerate(gaps):
                acc += fx[g]
                while j < len(items) and ((2*acc + fcost(items[j])) * n <= 2 * tot * (i+1) or i == n-1):
                    G.setdefault(g, []).append(items[j]); acc += fcost(items[j]); j += 1
        LA = OPT.get('la', 8)
        def actl(name, vo, so, sst, sreg=STR, dma=16):
            L = [(f"buffer_load_dwordx4 {vr(ACT+4*s)}, v{vo[s//4]}, s[4:7], {so} offen offset:{1024*(s%4)} sc1", [ACT+4*s]) for s in range(16)]
            for s in range(dma, 16): L[s] = (f"buffer_load_dwordx4 v{vo[s//4]}, s[4:7], {so} offen offset:{1024*(s%4)} sc1 lds", [ACT+4*s])
            if sst: L.append((f"buffer_load_dwordx4 {vr(sreg)}, v3, s[4:7], {sst} offen sc1", [sreg+i for i in range(4)]))
            D = stub(name, L)
            D['m0'] = {s: f"s_add_u32 m0, {W14}, {WB+4096*(s//4):#x}" for s in range(dma, 16)}
            D['rd'] = {s: f"ds_read_b128 {vr(ACT+4*s)}, v{KA} offset:{1024*s}" for s in range(dma, 16)}
            D['m0cur'] = None
            D['inl'] = OPT.get('inl', 1)
            if D['inl']: stubs.pop()
            I = [iss(D, s, f"{name}{s//2}") for s in range(16)]
            if sst: I.insert(6, iss(D, 16, "sts"))
            n = OPT.get(name+'la', LA) + (1 if sst else 0)
            D['rest'] = I[n:]
            return I[:n], D
        def first_check(name, D):
            k.waitvm(f"{name}0")
            for x in maxl([ACT, ACT+4]): k(x)
            br(D, [0, 1])()
        def mstage(name, D, e0, AC, zero, has_st, early, late, fin=(), fix=()):
            M = [M16(vr(AC+4*(i%4)), buf(e0+i), vr(ACT+4*(i//4)), 0 if (zero and i < 4) else vr(AC+4*(i%4))) for i in range(64)]
            G = {i: [] for i in range(64)}
            used = set(); HSP = OPT.get('hsp', 3) if has_st else OPT.get(name+'lt', 3)
            for i in range(64):
                WL = OPT.get('wl', 2)
                if i % WL == (OPT.get('wlo', 1) % WL) and i < 63: G[i].append(lambda i=i: k.waitlg(f"r{e0+min(63, i+WL)}"))
                p = i//8
                if p < 7 and i % 8 == 4-OPT.get('bdm', 0): G[i].append(lambda p=p: k.waitvm(f"{name}{p+1}"))
                if p < 7 and i % 8 == 6+OPT.get('bd', 1): G[i].append(br(D, ([16] if has_st and p == HSP else []) + [2*p+2, 2*p+3]))
                if i % 8 == 6 and f"{name}_s" in OPT.get('sts', ''): G[i].append(lambda p=p: st(f"{name}_s{p}"))
                G[i] += refill(e0+i)
            for j, x in enumerate(D['rest']):
                rs = OPT.get(name+'rs', OPT.get('rs', 0))
                gi = rs*j if rs else 8*(j//2) + (OPT.get('r0', 0), OPT.get('r1', 7-OPT.get('bd', 1)))[j % 2]; G[gi].append(x); used.add(gi)
            for p in range(7):
                regs = [ACT+8*p+8, ACT+8*p+12]
                if has_st and p == HSP: regs = [STR, STR+1, STR+2, STR+3] + regs
                L = maxl(regs)
                for j, x in enumerate(L):
                    gi = 8*p+5-OPT.get('bdm', 0)-(len(L)-1-j); G[gi].append(x); used.add(gi)
            for j, x in enumerate(fin): G[56+j].append(x); used.add(56+j)
            for gi, x in fix: G[gi].append(x); used.add(gi)
            if OPT.get('mbal'):
                if has_st: spreadb(G, list(early), list(range(0, 8*HSP+8)), {}); spreadb(G, list(late), list(range(8*HSP+8, 64)), {})
                else: spreadb(G, list(late), list(range(0, 64)), {})
            else:
                spread(G, list(early), [i for i in range(0, 8*HSP+8) if i not in used])
                spread(G, list(late), [i for i in range(8*HSP+7, 64) if i not in used])
            st(f"{name}_w")
            first_check(name, D)
            k.waitlg(f"r{e0+OPT.get('wlo', 1) % OPT.get('wl', 2)}")
            st(f"{name}_m")
            stream(M, G)
            st(f"{name}_e")
        def packstore(AC, so):
            for p in range(2):
                for r in range(4): k(f"v_cvt_pk_bf16_f32 v{PK+4*p+r}, v{AC+8*p+2*r}, v{AC+8*p+2*r+1}")
                k(f"v_min_u32 v{PK+4*p}, {sM2}, v{PK+4*p}")
                k(f"buffer_store_dwordx4 {vr(PK+4*p)}, v3, s[4:7], {so} offen offset:{1024*p}{sc}", tag="st")
        SV=9
        def pstats(so, a):
            k(f"v_dot2_f32_bf16 v{a}, v{PK}, {sONE}, 0\nv_dot2_f32_bf16 v{a+1}, v{PK}, v{PK}, 0")
            for r in range(1,8): k(f"v_dot2_f32_bf16 v{a}, v{PK+r}, {sONE}, v{a}\nv_dot2_f32_bf16 v{a+1}, v{PK+r}, v{PK+r}, v{a+1}")
            k(f"v_permlane16_swap_b32 v{a}, v{a+1}\nv_add_f32 v{a}, v{a}, v{a+1}")
            xhalf_add(k, a, a+1)
            k(f"v_min_u32 v{a}, {sM2}, v{a}")
            k(f"buffer_store_dword v{a}, v{SV}, s[4:7], {so} offen{sc}", tag="st")
        def cs3(t): return [M16(ar(160+4*t), w3reg(t, s), "a[172:175]", 0 if s == 0 else ar(160+4*t)) for s in range(16)]
        def statlist(a, NMU, RS, t):
            L = [f"v_add_f32 v{a}, v{a}, v{a+2}", f"v_add_f32 v{a+1}, v{a+1}, v{a+3}"]
            for op in ("v_permlane16_swap_b32", "v_permlane32_swap_b32"):
                L += [f"v_mov_b32 v{a+2}, v{a}", f"v_mov_b32 v{a+3}, v{a+1}", f"{op} v{a}, v{a+2}", f"{op} v{a+1}, v{a+3}",
                      f"v_add_f32 v{a}, v{a}, v{a+2}", f"v_add_f32 v{a+1}, v{a+1}, v{a+3}"]
            L += [f"v_mul_f32 v{NMU}, {fhex(-1/512)}, v{a}", f"v_mul_f32 v{a+1}, {fhex(1/512)}, v{a+1}", f"v_fma_f32 v{a+1}, -v{NMU}, v{NMU}, v{a+1}",
                  f"v_max_f32 v{a+1}, 0, v{a+1}", f"v_add_f32 v{t}, {fhex(EPS)}, v{a+1}", f"v_rsq_f32 v{RS}, v{t}"]
            return L
        def gconsts(R, IRS, A, B):
            return [f"v_rcp_f32 v{IRS}, v{R}", f"v_mul_f32 v{A}, v{R}, v{R}", f"v_mul_f32 v{B}, {fhex(GB)}, v{R}", f"v_mul_f32 v{A}, v{A}, v{R}", f"v_mul_f32 v{A}, {fhex(GA)}, v{A}"]
        def window(M, loads, pre, extra):
            G = {}
            n = len(M)
            spread(G, loads, list(range(pre, n)))
            for gi, x in extra: G.setdefault(gi, []).append(x)
            stream(M, G)
        PRB = OPT.get('prb', 1)
        def probe(name, so, I, work):
            nsp = OPT.get(name+'sp', OPT.get('spec', 0))
            k(f"v_lshlrev_b32 v{ACT+63}, 8, v1")
            if OPT.get('dbgst'):
                st(f"{name}_a"); k("s_waitcnt vmcnt(1)"); st(f"{name}_b"); k("s_waitcnt vmcnt(0)"); st(f"{name}_c")
            pl = [f"buffer_load_dword v0, v{ACT+63}, s[4:7], {so} offen sc1"]
            for x in pl: k(x, tag="prb")
            n0 = len(k.L)
            for x in I[:nsp]: em(x)
            rep = [x.strip() for x in k.L[n0:]]
            work()
            k.waitvm("prb")
            st(f"{name}_p")
            P_ = k.newlabel("P"); OK = k.newlabel("Q")
            k(f"v_cmp_eq_u32 vcc, -1, v0\ns_cbranch_vccz {OK}")
            k.label(P_)
            n0 = len(k.vmq)
            for x in pl + rep: k(x)
            del k.vmq[n0:]
            k(f"s_add_u32 {sCNT}, {sCNT}, 1\ns_cmp_gt_u32 {sCNT}, {BOUND}\ns_waitcnt vmcnt({nsp})\nv_cmp_eq_u32 vcc, -1, v0\ns_cbranch_scc1 {OK}\ns_cbranch_vccnz {P_}")
            k.label(OK)
            st(f"{name}_q")
            return I[nsp:]
        def pwindow(name, so, M, I, extra):
            a = OPT.get(name+'wa', OPT.get('wa', 0))
            G = {}
            for gi, x in extra: G.setdefault(gi, []).append(x)
            R = probe(name, so, I, lambda: stream(M[:a], G))
            n1 = OPT.get('l0', 2)
            for x in R[:n1]: em(x)
            G = {g-a: v for g, v in G.items() if g >= a}
            if a < len(M):
                G2 = {}
                spread(G2, R[n1:], list(range(0, min(len(M)-a, OPT.get('lsp', 4)))))
                for g in G2: G[g] = G2[g] + G.get(g, [])
                stream(M[a:], G)
            else:
                for x in R[n1:]: em(x)
        k(f"buffer_store_dwordx4 {vr(P[0])}, v2, s[4:7], {sOs[0]} offen{sc}", tag="st")
        for e in range(6): em(rd(e))
        norm(1)
        k(f"buffer_store_dwordx4 {vr(P[1])}, v2, s[4:7], {sOs[1]} offen{sc}", tag="st")
        st("m_ost")
        I, labO = actl("o", [3,4,5,6], sOl, None)
        M = [M16("a[168:171]", buf(e), "a[172:175]", 0 if e == 0 else "a[168:171]") for e in range(16)]
        W2S = OPT.get('w2s', 0)
        rw = [f"ds_write_b128 v15, {ar(4*i)} offset:{1024*i}" for i in range(6)]
        xc = [f"v_accvgpr_read_b32 v{H+2*r+1}, a{160+r}" for r in range(8)]
        for r in range(8): xc += [f"v_lshlrev_b32 v{H+2*r}, 16, v{H+2*r+1}", f"v_and_b32 v{H+2*r+1}, 0xffff0000, v{H+2*r+1}"]
        def b0work():
            k("s_barrier")
            if not W2S & 1:
                for x in rw: k(x)
            if not OPT.get('xcg'):
                for x in xc: k(x)
        if PRB:
            a = OPT.get('owa', 0)
            G = {e: ([lambda e=e: k.waitlg(f"r{e+2}")] if e % 2 == 1 and e < 15 else []) + refill(e) for e in range(16)}
            def w0():
                for e in range(6, 12): em(rd(e))
                k(f"v_add_u32 v8, {WB:#x}, v3")
                b0work()
                k.waitlg("r1")
                stream(M[:a], G)
            R = probe("o", sOl, I, w0)
            n1 = OPT.get('l0', 2) if a < 16 else 99
            for x in R[:n1]: em(x)
            G = {g-a: v for g, v in G.items() if g >= a}
            G2 = {}
            if a < 16: spread(G2, R[n1:], list(range(0, min(16-a, OPT.get('lsp', 4)))))
            for g in G2: G[g] = G2[g] + G[g]
            stream(M[a:], G)
        else:
            for x in I[:2]: em(x)
            for e in range(6, 12): em(rd(e))
            k(f"v_add_u32 v8, {WB:#x}, v3")
            k.waitlg("r1")
            G = {}
            for e in range(16):
                G[e] = ([lambda e=e: k.waitlg(f"r{e+2}")] if e % 2 == 1 and e < 15 else []) + refill(e) + (I[2+e//2:3+e//2] if e % 2 == 0 else [])
            if OPT.get('xcg'): spreadb(G, xc, list(range(16)), {})
            stream(M, G)
            b0work()
        k("ds_write_b128 v11, a[168:171]")
        GV = [2, 10, 11, 15]
        E = [f"v_lshrrev_b32 v{SV}, 5, v1", f"v_lshlrev_b32 v{SV}, 31, v{SV}", f"v_lshl_add_u32 v{SV}, v12, 4, v{SV}", f"v_lshl_add_u32 v{SV}, v13, 2, v{SV}", f"v_add_u32 v{SV}, {sSV}, v{SV}",
             "v_mov_b32 v14, 0x4000"]
        for gi, sh in enumerate((-1, 1, -2, 2)):
            v = GV[gi]
            E += [f"v_add_u32 v{v}, {sh}, v12", f"v_bfe_i32 v{v}, v{v}, 4, 1", f"v_bfi_b32 v{v}, v{v}, {sDP if sh < 0 else sDN}, v14", f"v_add_u32 v{v}, v{3+gi}, v{v}" if GA_L else f"v_add3_u32 v{v}, v{3+gi}, v{v}, {16*(sh+2)}"]
        VG = TMP+11 if GA_L else 3
        EH = []
        if GA_L:
            EH = [f"v_add_u32 v{VG}, {sNS}, v12", f"v_bfe_i32 v{VG}, v{VG}, 4, 1", f"v_bfi_b32 v14, v{VG}, {sOT}, v14", f"v_xor_b32 v{VG}, -1, v{VG}", f"v_and_b32 v{VG}, 0x80000000, v{VG}",
                  f"v_add_u32 v{VG}, v{VG}, v3", "v_add_u32 v14, v14, v3"]
        else: E += ["v_add_u32 v14, 2, v12", "v_and_b32 v14, 12, v14", "v_sub_u32 v14, 0, v14", "v_and_b32 v14, 0x80000000, v14", "v_add_u32 v14, v14, v3"]
        VM, VG = (VG, 14) if GA_L else (14, 3)
        mstage("o", labO, 16, H, False, False, [], E, fix=[(OPT.get('ow0', 3)+OPT.get('ows', 8)*i, x) for i, x in enumerate(rw)] if W2S & 1 else [])
        I, labH = actl("h", [3,4,5,6], sHl, sSh)
        def lfirst(I, key):
            n = OPT.get(key, 0)
            for x in I[:n]: em(x)
            return I[n:]
        I = lfirst(I, 'hlf0')
        packstore(H, sHs)
        st("m_hst")
        I = lfirst(I, 'hlf1')
        pstats(sSh, TMP)
        if OPT.get('dbg2'):
            st("d_a"); k("s_waitcnt vmcnt(2)"); st("d_b"); k("s_waitcnt vmcnt(1)"); st("d_c"); k("s_waitcnt vmcnt(0)"); st("d_d")
            k(f"buffer_load_dwordx4 {vr(ACT)}, v3, s[4:7], {sHs} offen sc1\ns_waitcnt vmcnt(0)"); st("d_e")
            k(f"buffer_load_dwordx4 {vr(ACT)}, v3, s[4:7], {sHl} offen sc1\ns_waitcnt vmcnt(0)"); st("d_f")
            k(f"buffer_load_dwordx4 {vr(ACT)}, v6, s[4:7], {sHl} offen sc1\ns_waitcnt vmcnt(0)"); st("d_g")
        k(f"v_add_u32 v{TMP}, {sSB}, v3\nv_lshlrev_b32 v{TMP+1}, 4, v13\nv_add_u32 v{TMP+1}, {CSL:#x}, v{TMP+1}")
        NG = OPT.get('w2g', 0)
        w2w = [f"ds_write_b128 v{TMP}, {ar(24+4*i)} offset:{1024*i}" for i in range(10)]
        hfix = []
        if W2S & 2:
            nh = OPT.get('w2h', 10)
            hg = [int(x) for x in str(OPT.get('hwg', '3.6.11.14.19.22.30.35.43.51')).split('.')]
            hfix = list(zip(hg, w2w[:nh])); w2w = w2w[nh:]; NG = len(w2w); w2w = [None]*(10-NG) + w2w
        ex = [(OPT.get('b1g', 3), "s_waitcnt lgkmcnt(0)\ns_barrier" if W2S & 1 else "s_barrier")] + [(min(15, OPT.get('b1g', 3)+1+i), x) for i, x in enumerate(w2w[:10-NG]) if x]
        exg = [(OPT.get('gws', 1)*i, x) for i, x in enumerate(w2w[10-NG:])] + [(OPT.get('b2g', 15), "s_waitcnt lgkmcnt(0)\ns_barrier" if NG else "s_barrier")]
        if PRB: pwindow("h", sHl, cs3(0), I, ex)
        else: window(cs3(0), I, OPT.get('hpre', 0), ex)
        NMU=TMP+2; IRS=TMP+3; GA_=TMP+4; GB_=TMP+5; R1=TMP+6; KK=TMP+7; TT=TMP+8; RR=TMP+9; EP=TMP+10
        late = statlist(STR, NMU, R1, TT) + [f"v_mul_f32 v{TT}, v{R1}, v{R1}", f"v_fma_f32 v{TT}, v{TT}, v{STR+1}, v{EP}", f"v_rsq_f32 v{TT}, v{TT}",
              f"v_mul_f32 v{KK}, v{NMU}, v{R1}", f"v_mul_f32 v{RR}, v{R1}, v{TT}"] + gconsts(RR, IRS, GA_, GB_)
        CS=ACT; G0=ACT+16
        mstage("h", labH, 80, A2, True, True, [f"v_mov_b32 v{EP}, {fhex(EPS)}"] + EH, late, [(f"ds_read_b128 {vr(CS+4*nb)}, v{TMP+1} offset:{64*nb}", "cs") for nb in range(4)], fix=hfix)
        k.waitlg("cs")
        k(f"s_cmp_lg_u32 {sMB}, 0")
        for p in range(2):
            R = range(8*p, 8*p+8, 2)
            for r in R: k(f"v_pk_fma_f32 {pr(A2+r)}, {pr(CS+r)}, {pr(NMU)}, {pr(A2+r)} op_sel_hi:[1,0,1]")
            for r in R: k(f"v_pk_mul_f32 {pr(G0+r)}, {pr(A2+r)}, {pr(A2+r)}")
            for r in R: k(f"v_pk_fma_f32 {pr(G0+r)}, {pr(G0+r)}, {pr(GA_)}, {pr(GA_)} op_sel:[0,0,1] op_sel_hi:[1,0,1]")
            for r in R: k(f"v_pk_mul_f32 {pr(G0+r)}, {pr(G0+r)}, {pr(A2+r)}")
            for r in range(8*p, 8*p+8): k(f"v_exp_f32 v{G0+r}, v{G0+r}")
            for r in R: k(f"v_pk_fma_f32 {pr(G0+r)}, {pr(G0+r)}, {pr(NMU)}, {pr(NMU)} op_sel:[0,1,1] op_sel_hi:[1,1,1]")
            for r in range(8*p, 8*p+8): k(f"v_rcp_f32 v{G0+r}, v{G0+r}")
            for r in R: k(f"v_pk_mul_f32 {pr(A2+r)}, {pr(A2+r)}, {pr(G0+r)}")
            for r in range(4): k(f"v_cvt_pk_bf16_f32 v{PK+4*p+r}, v{A2+8*p+2*r}, v{A2+8*p+2*r+1}")
            k(f"v_min_u32 v{PK+4*p}, {sM2}, v{PK+4*p}")
            a = k.newlabel("M"); c = k.newlabel("C")
            k(f"s_cbranch_scc1 {a}"); k.label(c)
            tramp.append([f"{a}:", f"buffer_store_dwordx4 {vr(PK+4*p)}, v{VM}, s[4:7], {sMB} offen offset:{1024*p} sc1", f"s_branch {c}"])
            k(f"buffer_store_dwordx4 {vr(PK+4*p)}, v{VG}, s[4:7], {sGs} offen offset:{1024*p}{sc}", tag="st")
        st("m_gst")
        for r in range(0,16,2): k(f"v_pk_fma_f32 {pr(A2+r)}, {pr(H+r)}, {pr(R1)}, {pr(R1)} op_sel:[0,0,1] op_sel_hi:[1,0,1]")
        I, labG = actl("g", GV, sGl, None)
        if PRB:
            k(f"s_sub_u32 {T}, {sHl}, {HO-GO:#x}")
            pwindow("g", T, cs3(1), I, exg)
        else: window(cs3(1), I, OPT.get('gpre', 4), exg)
        E = ["v_lshl_add_u32 v14, v13, 2, v12", "v_and_b32 v14, 15, v14", "v_lshlrev_b32 v14, 4, v14", "v_lshl_add_u32 v14, v13, 8, v14",
             f"s_lshl_b32 {T}, {W}, 12", f"v_add_u32 v14, {T}, v14", f"v_add_u32 v{KA}, {W14}, v8"]
        mstage("g", labG, 144, A2, False, False, [], E)
        ST3=136
        XD = OPT.get('xd', 8)
        I, labX = actl("x", [3,4,5,6], sXl, sSx, ST3, 2*XD)
        I = lfirst(I, 'xlf0')
        packstore(A2, sXs)
        st("m_x1st")
        I = lfirst(I, 'xlf1')
        pstats(sSx, TMP)
        I = lfirst(I, 'xlf2')
        for r in range(0,16,2): k(f"v_pk_add_f32 {pr(H+r)}, {pr(H+r)}, {pr(A2+r)}")
        for nb in range(4): k(f"ds_write_b128 v14, {vr(H+4*nb)} offset:{1024*nb}")
        if PRB: pwindow("x", sXl, cs3(2), I, [])
        AC=[84,96]; C3=108; GT=120; SP=[132,32,36,32]; UP=136; TT=140; RS=141
        TB=[None,80,81,82]; SB=[None,83,142,143]
        early = [f"v_accvgpr_read_b32 v{C3+r}, a{160+r}" for r in range(12)]
        early += [f"s_lshl_b32 {T}, {W}, 8", "v_lshlrev_b32 v15, 4, v12", f"v_add_u32 v15, {STL:#x}, v15", f"v_add_u32 v2, {T}, v15",
                  f"v_add_u32 v10, {sHF}, v3", f"s_cmp_eq_u32 {W}, 3\ns_cselect_b32 {T}, {OOB:#x}, 0", f"v_add_u32 v11, {T}, v5",
                  f"s_lshr_b32 {T}, {T}, 21", f"v_subrev_u32 v12, {T}, v5" if OPT.get('abl') != 3 else "v_mov_b32 v12, 0x80000000"]
        late2 = []
        for q in range(1,4): late2 += [f"s_lshl_b32 {T}, {sTid[q]}, 14", f"v_add_u32 v{TB[q]}, {T}, v8", f"s_lshl_b32 {T}, {sTid[q]}, 8", f"v_add_u32 v{SB[q]}, {T}, v15"]
        exw = []
        if OPT.get('xw', 1):
            wl = early[:8] + early[12:] + late2; early = early[8:12]; late2 = []
            exw = [(i*16//len(wl), x) for i, x in enumerate(wl)]
        if not PRB: window(cs3(2), I, OPT.get('xpre', 0), exw)
        XSP = OPT.get('xsp', 3)
        M = [M16(vr(AC[0]+4*t), w3reg(t,s), vr(ACT+4*s), 0 if s == 0 else vr(AC[0]+4*t)) for s in range(16) for t in range(3)]
        G = {i: [] for i in range(48)}; used = set()
        for p in range(8):
            for h in range(2 if OPT.get('abl') != 1 and p < XD else 0): G[6*p+h*OPT.get('wx', 1)].append(f"ds_write_b128 v{KA}, {vr(ACT+8*p+4*h)} offset:{2048*p+1024*h}")
            if p < 7:
                regs = [ACT+8*p+8, ACT+8*p+12]
                if p == XSP: regs = [ST3+i for i in range(4)] + regs
                L = maxl(regs)
                if p+1 < XD:
                    G[6*p+3-OPT.get('bdx', 1)].append(lambda p=p: k.waitvm(f"x{p+1}"))
                    for j, x in enumerate(L):
                        gi = 6*p+4-OPT.get('bdx', 1)-(len(L)-1-j); G[gi].append(x)
                else:
                    assert p >= 1
                    G[6*p-1] += [lambda p=p: k.waitvm(f"x{p+1}"), (labX['rd'][2*p+2], f"xr{p+1}")]
                    G[6*p-1+OPT.get('xr2', 1)].append((labX['rd'][2*p+3], f"xr{p+1}"))
                    c_ = OPT.get('xc', 3)
                    for j, x in enumerate(L[:-2]): G[6*p+1+j].append(x)
                    G[6*p+c_] += [lambda p=p: k.waitlg(f"xr{p+1}")] + L[-2:]
                G[6*p+5].append(br(labX, ([16] if p == XSP else []) + [2*p+2, 2*p+3]))
                G[6*p+5].append(lambda p=p: st(f"x_s{p}"))
        for j, x in enumerate(labX['rest']): G[OPT['xrs']*j if OPT.get('xrs') else 3*j+2+(OPT.get('xr0', 1), OPT.get('xr1', -1))[j % 2]*OPT.get('bdx', 1)].append(x)
        spread(G, early, list(range(2, 6*XSP+6)))
        late = statlist(ST3, SP[0], RS, TT) + gconsts(RS, SP[0]+1, SP[0]+2, SP[0]+3) + [f"ds_write_b128 v2, {vr(SP[0])}"] + late2
        if OPT.get('xbal', 1):
            gaps = list(range(6*XSP+6, 48)); wt = lambda x: 3 if isinstance(x, str) and x.startswith("ds_write") else 1
            load = {g: sum(wt(x) for x in G[g]) for g in gaps}
            tot = sum(load.values()) + len(late); acc = 0; j = 0
            for n_, g in enumerate(gaps):
                acc += load[g]
                while j < len(late) and (acc + 1) * len(gaps) <= tot * (n_+1) + len(gaps)//2: G[g].append(late[j]); j += 1; acc += 1
            G[47] += late[j:]
        else: spread(G, late, list(range(6*XSP+6, 48)))
        st("x_w")
        first_check("x", labX)
        st("x_m")
        stream(M, G)
        st("x_e")
        k("s_waitcnt lgkmcnt(0)\ns_barrier")
        st("m_B3")
        def gelu_list(a, sp, q):
            L = []
            for c in range(2):
                R = range(0,8) if c == 0 else range(8,12)
                L += [f"v_fma_f32 v{a+r}, v{sp}, v{C3+r}, v{a+r}" for r in R]
                L += [f"v_mul_f32 v{GT+r}, v{a+r}, v{a+r}" for r in R]
                L += [f"v_fma_f32 v{GT+r}, v{GT+r}, v{sp+2}, v{sp+3}" for r in R]
                L += [f"v_mul_f32 v{GT+r}, v{GT+r}, v{a+r}" for r in R]
                L += [f"v_exp_f32 v{GT+r}, v{GT+r}" for r in R]
                L += [f"v_fma_f32 v{GT+r}, v{GT+r}, v{sp+1}, v{sp+1}" for r in R]
                L += [f"v_rcp_f32 v{GT+r}, v{GT+r}" for r in R]
                L += [f"v_mul_f32 v{a+r}, v{a+r}, v{GT+r}" for r in R]
                L += [f"v_cvt_pk_bf16_f32 v{UP+r//2}, v{a+r}, v{a+r+1}" for r in R if r % 2 == 0]
                if c == 0:
                    L += [f"v_min_u32 v{UP}, {sM2}, v{UP}", f"v_min_u32 v{UP+2}, {sM2}, v{UP+2}",
                          (f"buffer_store_dwordx4 {vr(UP)}, v3, s[4:7], {sUs[q]} offen{sc}", "st")]
                else:
                    L += [f"v_min_u32 v{UP+4}, {sM2}, v{UP+4}", (f"buffer_store_dwordx2 {vr(UP+4,2)}, v10, s[4:7], {sUs[q]} offen{sc}", "st")]
            return L
        cost = lambda x: 8 if isinstance(x, tuple) or x.startswith(TRANS) else 4
        def spreadw(G, items, gaps, F=None):
            if OPT.get('sbal', 1): return spreadb(G, items, gaps, F)
            tot = sum(cost(x) for x in items); acc = 0; g = len(gaps)
            for x in items:
                gi = min(g-1, acc*g//tot); acc += cost(x)
                if isinstance(x, tuple) and gi+1 < g: G.setdefault(('m', gaps[gi+1]), []).append(x)
                else: G.setdefault(gaps[gi], []).append(x)
        def stream2(M, F, G):
            for i, m in enumerate(M):
                k(m)
                for x in F.get(i, []) + G.get(('m', i), []) + G.get(i, []): em(x)
        lateW = [(ldr(w4reg(i//4, i%4), s4[i//16], i%16, "v11" if i >= 40 else None)[0], "w4") for i in range(24, 44)]
        BB=ACT
        def rdB(n):
            q = n//16+1; s = n % 16
            return (f"ds_read_b128 {vr(BB+4*(n%4))}, v{TB[q]} offset:{1024*s}", f"b{n}")
        UB=[40,144,188,40]
        UV=[80,80,80,80]
        def uld(t): return [f"buffer_load_dwordx4 {vr(UB[t]+4*ks)}, v{12 if ks == 10 else 3+ks//4}, s[4:7], {sUl[t]} offen offset:{1024*(ks%4)} sc1" for ks in range(11)]
        DU = dict(L=[(x, [UB[t]+4*ks, UB[t]+4*ks+2]) for t in range(4) for ks, x in enumerate(uld(t))], iss=set(), inl=OPT.get('uinl', 2), nst=1)
        def uiss(t): return [iss(DU, 11*t+ks, f"u{t}_{ks//2}") for ks in range(11)]
        LK = OPT.get('lk', 44)
        UPOS = {}
        for t in range(1, 4):
            for ks, x in enumerate(uiss(t)): UPOS.setdefault(max(OPT.get(f'u{t}at', 0) + 44*(t-1) + OPT.get('usp', 0)*ks, 44*t + 4*ks - OPT.get(f'lk{t}', LK)), []).append(x)
        for n in range(4): em(rdB(n))
        for q in range(1,4):
            M = []; F = {}; G = {}
            for s in range(16):
                n = 16*(q-1)+s
                for t in range(3): M.append(M16(vr(AC[q%2]+4*t), w3reg(t,s), vr(BB+4*(n%4)), 0 if s == 0 else vr(AC[q%2]+4*t)))
                if OPT.get('bw2'): F[3*s+2] = ([lambda n=n: k.waitlg(f"b{min(47, n+2)}")] if n % 2 == 0 else []) + ([rdB(n+4)] if n+4 < 48 else [])
                else: F[3*s+2] = ([lambda n=n: k.waitlg(f"b{n+1}")] if n < 47 else []) + ([rdB(n+4)] if n+4 < 48 else [])
            F.setdefault(30, []).append((f"ds_read_b128 {vr(SP[q])}, v{SB[q]}", f"sp{q}"))
            if OPT.get('lw2', 1) and q < 3:
                n1 = OPT.get('lw1', 8)
                mem = lateW[:n1] if q == 1 else lateW[n1:]
                for i, x in enumerate(mem): F.setdefault(3*((i*16+OPT.get('lwo', 8))//len(mem)), []).append(x)
            else:
                mem = lateW if q == 1 else ([] if q == 2 else uiss(0)[:10])
                g0 = 0 if q == 1 else OPT.get('u0at', 6)
                us = OPT.get('u0s', 2)
                for i, x in enumerate(mem): F.setdefault(3*(g0+i//(2 if q == 1 else us)), []).append(x)
            gl = gelu_list(AC[(q-1)%2], SP[q-1], q-1)
            if q == 1:
                for x in gl[:OPT.get('lead1', 20)]: em(x)
                gl = gl[OPT.get('lead1', 20):]
                k.waitlg("b0")
                spreadw(G, gl, list(range(0, 48)), F)
            else: spreadw(G, gl, list(range(OPT.get('sl0', 2), 48)), F)
            stream2(M, F, G)
            st(f"u_slot{q}")
        st("m_w3e")
        em(uiss(0)[10])
        A4=[232,16]
        RD=84
        RA=[8,124]
        red_addr = ["v_lshrrev_b32 v7, 2, v1", "v_and_b32 v8, 3, v1", "v_lshl_add_u32 v9, v8, 2, v7", "v_and_b32 v9, 15, v9", "v_lshlrev_b32 v9, 4, v9", "v_lshl_add_u32 v9, v8, 8, v9",
                    "v_lshlrev_b32 v7, 10, v7", "v_lshl_add_u32 v7, v8, 4, v7",
                    f"s_and_b32 {T}, {W}, 1", f"s_lshl_b32 {T}, {T}, 11", f"v_add_u32 v9, {T}, v9",
                    f"s_mov_b32 {T2}, 16384", f"s_cmp_lt_u32 {W}, 2\ns_cselect_b32 {T}, {RING:#x}, {T2}", f"v_add_u32 v{RA[0]}, {T}, v9",
                    f"s_lshr_b32 {T2}, {W}, 1", f"s_lshl_b32 {T}, {T2}, 14", f"s_add_u32 {T}, {T}, 0x8000", f"v_add_u32 v{RA[1]}, {T}, v9",
                    f"s_lshl_b32 {T}, {T2}, 12", f"v_add_u32 v9, {T}, v9"]
        def red_list(u):
            L = []
            for src in range(4):
                for b in range(2): L.append((f"ds_read_b128 {vr(RD+8*src+4*b)}, v{RA[u]} offset:{4096*src+1024*b}", f"rd{src}"))
            for b in range(2): L.append((f"ds_read_b128 {vr(RD+32+4*b)}, v9 offset:{8192*u+1024*b}", "rd4"))
            add = (lambda d, s: [f"v_add_f32 v{d+r}, v{d+r}, v{s+r}" for r in range(8)]) if u == 0 else (lambda d, s: [f"v_pk_add_f32 {pr(d+r)}, {pr(d+r)}, {pr(s+r)}" for r in range(0,8,2)])
            L.append(lambda: k.waitlg("rd1")); L += add(RD, RD+8)
            L.append(lambda: k.waitlg("rd3")); L += add(RD+16, RD+24)
            L.append(lambda: k.waitlg("rd4")); L += add(RD, RD+32) + add(RD, RD+16)
            L += [f"v_cvt_pk_bf16_f32 v{RD+8+r}, v{RD+2*r}, v{RD+2*r+1}" for r in range(4)]
            L.append((f"buffer_store_dwordx4 {vr(RD+8)}, v7, s[12:15], {sOut[u]} offen{' sc1' if OPT.get('outsc') else ''}", "out"))
            return L
        def ureg(t, c): return [UB[t]+4*ks+d for ks in range(2*c, min(2*c+2, 11)) for d in (0, 2)]
        k(f"v_add_u32 v2, {RING:#x}, v14")
        k.waitvm("u0_0")
        for x in maxl(ureg(0, 0)): k(x)
        br(DU, [0, 1])()
        k.waitlg("sp3")
        for t in range(4):
            a = A4[t%2]
            M = [M16(vr(a+4*nb), w4reg(ks,nb), vr(UB[t]+4*ks), 0 if ks == 0 else vr(a+4*nb)) for ks in range(11) for nb in range(4)]
            F = {}; G = {}; used = set()
            for c in range(1, 7):
                tt, cc, e = (t, c, 8*c) if c < 6 else (t+1, 0, 44)
                if tt > 3: continue
                L = maxl(ureg(tt, cc))
                e1 = e-1-len(L)-OPT.get('bdu', 1)
                F.setdefault(e1, []).append(lambda tt=tt, cc=cc: k.waitvm(f"u{tt}_{cc}"))
                for j, x in enumerate(L): G.setdefault(e1+j, []).append(x); used.add(e1+j)
                F.setdefault(e-1, []).append(br(DU, [11*tt+i for i in range(2*cc, min(2*cc+2, 11))]))
            if t >= 1:
                pa = A4[(t-1)%2]
                for nb in range(4): F.setdefault(OPT.get('w0', 8)+nb*OPT.get('ws', 1), []).append(f"ds_write_b128 v2, {vr(pa+4*nb)} offset:{1024*nb}" if t == 1 else f"ds_write_b128 v14, {vr(pa+4*nb)} offset:{16384*(t-1)+1024*nb}")
            for g in range(44):
                for x in UPOS.get(44*t+g, []): F.setdefault(g, []).append(x)
            if t == 0:
                F.setdefault(22, []).insert(0, lambda: k.waitvm("w4"))
                g3 = gelu_list(AC[1], SP[3], 3); n3 = OPT.get('g3t1', 0)
                assert n3 <= 36
                spreadw(G, g3[:len(g3)-n3], list(range(OPT.get('sl0', 2), OPT.get('g3end', 36))), F)
            if t == 1:
                if n3: spreadb(G, g3[len(g3)-n3:], list(range(0, OPT.get('g3e1', 14))), F)
                spread(G, red_addr, [i for i in range(max(14, OPT.get('g3e1', 14)), 44) if i not in used])
            if t == 2:
                F.setdefault(32, []).append("s_waitcnt lgkmcnt(0)"); F.setdefault(32, []).append("s_barrier")
            if t == 3:
                if OPT.get('rbal', 0): spreadb(G, red_list(0), list(range(0, 44)), F)
                else: spread(G, red_list(0), [i for i in range(0, 44) if i not in used])
            stream2(M, F, G)
            st(f"u_t{t}")
        for nb in range(4): k(f"ds_write_b128 v14, {vr(A4[1]+4*nb)} offset:{16384*3+1024*nb}")
        k("s_waitcnt lgkmcnt(0)\ns_barrier")
        st("m_w4e")
        for x in red_list(1): em(x)
        if fast != bool(OPT.get('slowtail')):
            if OPT.get('cnt'): k(f"s_mov_b32 s{k.sb}, {sCNT}")
            stamp_out(k, 1, 16, 18)
        if fast: k.label(done)
        k("s_endpgm")
        for L in tramp + stubs:
            for x in L:
                if x.endswith(":"): k.label(x[:-1])
                else: k(x)
    vq, lq = list(k.vmq), list(k.lgq)
    tail(True)
    hopend(k, 4, "L_code_end")
    k.label("L_code_end")
    k.label("L_tail_sc")
    k.vmq, k.lgq = list(vq), list(lq)
    k("s_nop 7")
    if OPT.get('ock'):
        k("s_waitcnt vmcnt(0)")
        k.label("L_xt_poll")
        k(f"v_mbcnt_lo_u32_b32 v{XTV}, -1, 0\nv_and_b32 v{XTV}, 31, v{XTV}\nv_lshlrev_b32 v{XTV}, 7, v{XTV}")
        k(f"buffer_load_dword v{XTV}, v{XTV}, s[4:7], {sXT} offen sc1")
        k(f"s_add_u32 {sCNT}, {sCNT}, 1\ns_cmp_gt_u32 {sCNT}, {BOUND}\ns_waitcnt vmcnt(0)\nv_cmp_eq_u32 vcc, -1, v{XTV}")
        k("s_cbranch_scc1 L_xt_done\ns_cbranch_vccnz L_xt_poll")
        k.label("L_xt_done")
        k.vmq = list(vq)
    tail(False)
    for L in atr:
        for x in L:
            if x.endswith(":"): k.label(x[:-1])
            else: k(x)
    k.label("L_attn_slow")
    k("s_waitcnt vmcnt(0)")
    M=[C, C+1]; TM=C+2; TX=C+3; AL=C+4
    for X_ in range(2): k(f"v_mov_b32 v{M[X_]}, {fhex(-3.0e38)}")
    for r in range(32): k(f"v_mov_b32 v{O[0]+r}, 0")
    for r in range(8): k(f"v_mov_b32 v{V0+r}, {sONE}")
    k(f"s_lshl_b32 {sKV}, {HD}, 17\ns_add_u32 {sKV}, {sKV}, {KV:#x}\ns_mov_b32 {sRW}, 64\ns_mov_b32 {RET}, 0x0000ffff\ns_mov_b32 s{int(RET[1:])+1}, 0x0000ffff")
    k.label("L_attn_sloop")
    k(f"buffer_load_dwordx4 {vr(KR)}, v3, s[4:7], {sKV} offen")
    k(f"s_mov_b64 exec, {RETP}")
    k(f"buffer_load_dwordx4 {vr(V0)}, v14, s[4:7], {sKV} offen offset:1024")
    k(f"buffer_load_dwordx4 {vr(V1)}, v14, s[4:7], {sKV} offen offset:1536")
    k("s_mov_b64 exec, -1")
    k("s_waitcnt vmcnt(0)")
    for X_ in range(2):
        s = S[X_]; p = P[X_]
        k(M32(vr(s,16), vr(KR), vr([QA,QB][X_]), 0))
        k(f"v_max_f32 v{TM}, v{s}, v{s+1}")
        for r in range(2,16,2): k(f"v_max3_f32 v{TM}, v{TM}, v{s+r}, v{s+r+1}")
        k(f"v_mov_b32 v{TX}, v{TM}\nv_permlane32_swap_b32 v{TM}, v{TX}\nv_max3_f32 v{TM}, v{TM}, v{TX}, v{M[X_]}")
        k(f"v_sub_f32 v{AL}, v{M[X_]}, v{TM}\nv_exp_f32 v{AL}, v{AL}\nv_mov_b32 v{M[X_]}, v{TM}")
        for r in range(16): k(f"v_mul_f32 v{O[X_]+r}, v{O[X_]+r}, v{AL}")
        for r in range(16): k(f"v_sub_f32 v{s+r}, v{s+r}, v{TM}")
        for r in range(16): k(f"v_exp_f32 v{s+r}, v{s+r}")
        for r in range(8): k(f"v_cvt_pk_bf16_f32 v{p+r}, v{s+2*r}, v{s+2*r+1}")
        k(M32(vr(O[X_],16), vr(V0), vr(p), vr(O[X_],16)))
        k(M32(vr(O[X_],16), vr(V1), vr(p+4), vr(O[X_],16)))
    k("s_nop 15")
    k(f"s_add_u32 {sKV}, {sKV}, 2048\ns_sub_u32 {sRW}, {sRW}, 1\ns_cmp_lg_u32 {sRW}, 0\ns_cbranch_scc1 L_attn_sloop")
    k(f"v_rcp_f32 v{T0+4}, v{O[0]+8}\nv_rcp_f32 v{T0+6}, v{O[1]+8}")
    norm(0)
    k("s_nop 3")
    k("s_branch L_attn_fin")
    print("sgprs used up to", S_.n)
    return k

if __name__ == "__main__":
    out = sys.argv[1]
    for a in sys.argv[2:]:
        kk, v = a.split("="); OPT[kk] = int(v) if v.lstrip("-").isdigit() else v
    k2 = gen_k2(); n2 = k2.fix(verbose=bool(OPT.get('v')))
    k1 = gen_k1(); n1 = k1.fix(verbose=bool(OPT.get('v')))
    print("nops inserted", n1, n2, "verify errors", verify(k1), verify(k2))
    emit(out, [("qkv_kernel",256,512,163840),("main_kernel",256,256,163840)], [k1, k2], step=OPT.get('hopstep', 4096))
```

```python
import math, sys
from asmlib2 import *

QF=0x000000; KV=0x200000; OF=0x600000
SETB=0x800000; SETS=0x180000; GO=0; HO=0x40000; XO=0x80000; SO=0xC0000; UO=0xC8000
WOF=0x1400000; W1F=0x1480000; W2F=0x1500000; W3F=0x1580000; W4F=0x1700000
GM=0x18C0000
XT=0x1900000
DBGOFF=0x1E00000
WS_SZ=0x2000000
ONES=0x3F803F80
EPS=1e-5
LOG2E=1.4426950408889634
GA = -2*LOG2E*math.sqrt(2/math.pi)*0.044715
GB = -2*LOG2E*math.sqrt(2/math.pi)
OPT = dict(stamp=False, slow=False, I0=2, pref=True, rot=3, k1sc=1, gram=1, nv=3, cpf=55, hop=6, early=0, fill0=4, lastfill=54, spf=2, spft=54, spfs=2, prb=0, inl=3, la=6, w2g=10, lw1=10, lwo=0, u0s=1, lk=26, spu=58, r1=2, w0=1, ws=8, wl=4, g3end=40, w2s=1, xcg=1, clat=27, sch='01.23.4s...56.7', qk2=1, ock=1, ocb=11, xtl=13, dv=0)

def stamp(k, name):
    if not OPT['stamp']: return
    if not any(name.startswith(p) for p in OPT.get('sts','m').split(',')): return
    i = len(k.stn)
    if i >= k.smax: print("stamp dropped", name); return
    k.stn.append(name)
    if OPT['stamp']==4: k(f"s_mov_b32 s{k.sb+2*i}, {getattr(k,'cnt','0')} ; s_memtime")
    else: k(f"{'s_memtime' if OPT['stamp']==2 else 's_memrealtime'} s[{k.sb+2*i}:{k.sb+1+2*i}]")
    if OPT['stamp']==3 and name != 'end' and i+1 < k.smax:
        k.stn.append(name+"#")
        k(f"s_memtime s[{k.sb+2*i+2}:{k.sb+3+2*i}]")
def stamp_out(k, kidx, vt, sw):
    if not OPT['stamp']: return
    k("s_waitcnt vmcnt(0)")
    k.smax += 1
    OPT['sts'] = OPT.get('sts','m') + ',end'
    stamp(k, "end")
    nst = len(k.stn)-1
    k("s_waitcnt lgkmcnt(0)")
    k(f"s_lshl_b32 s61, s2, 2\ns_add_u32 s60, s{sw}, s61\ns_lshl_b32 s60, s60, 6\ns_add_u32 s60, s60, {DBGOFF+kidx*0x10000:#x}")
    for i in range(16): k(f"v_mov_b32 v{vt+i}, s{k.sb+2*min(i,nst)}")
    k(f"v_mov_b32 v{vt+16}, 0")
    for i in range(4): k(f"buffer_store_dwordx4 v[{vt+4*i}:{vt+4*i+3}], v{vt+16}, s[4:7], s60 offen offset:{16*i}")
    k.L.insert(0, "; STAMPS " + ",".join(k.stn))
    if OPT.get('dbo') and kidx == 1:
        k(f"s_sub_u32 s60, s60, 0x10000\nbuffer_load_dwordx4 v[{vt+20}:{vt+23}], v{vt+16}, s[4:7], s60 offen sc1\ns_waitcnt vmcnt(0)")
        k(f"v_not_b32 v{vt+17}, v{vt}\nv_not_b32 v{vt+19}, v{vt+20}\ns_mov_b64 exec, 1")
        for i in range(5): k(f"global_atomic_umax v{vt+16}, v{vt+19+i}, s[100:101] offset:{4*i}")
        k(f"global_atomic_umax v{vt+16}, v{vt+17}, s[100:101] offset:20")
        for i in range(min(nst+1, 10)): k(f"global_atomic_umax v{vt+16}, v{vt+i}, s[100:101] offset:{4*(6+i)}")

def xhalf_add(k, a, t):
    k(f"v_mov_b32 v{t}, v{a}")
    k(f"v_permlane32_swap_b32 v{a}, v{t}")
    k(f"v_add_f32 v{a}, v{a}, v{t}")
def x16_add(k, a, t):
    k(f"v_mov_b32 v{t}, v{a}")
    k(f"v_permlane16_swap_b32 v{a}, v{t}")
    k(f"v_add_f32 v{a}, v{a}, v{t}")
def stats_from_sums(k, s, q, mu, r, t):
    k(f"v_mul_f32 v{mu}, {fhex(1/512)}, v{s}")
    k(f"v_mul_f32 v{q}, {fhex(1/512)}, v{q}")
    k(f"v_fma_f32 v{q}, -v{mu}, v{mu}, v{q}")
    k(f"v_max_f32 v{q}, 0, v{q}")
    k(f"v_add_f32 v{t}, {fhex(EPS)}, v{q}")
    k(f"v_rsq_f32 v{r}, v{t}")
def code_prefetch(k, lab0, lab1, part_sgpr, vt):
    sk = k.newlabel()
    k(f"s_lshl_b32 s64, s{part_sgpr}, 13")
    k(f"s_cmp_ge_u32 s64, {lab1}-{lab0}\ns_cbranch_scc1 {sk}")
    pc = k.newlabel()
    k("s_getpc_b64 s[62:63]")
    k.label(pc)
    k(f"s_add_u32 s62, s62, {lab0}-{pc}\ns_addc_u32 s63, s63, 0" if lab0 != "qkv_kernel" else f"s_sub_u32 s62, s62, {pc}-{lab0}\ns_subb_u32 s63, s63, 0")
    k(f"v_lshlrev_b32 v{vt}, 7, v1\nv_add_u32 v{vt}, s64, v{vt}\nv_min_u32 v{vt}, {lab1}-{lab0}-4, v{vt}\nv_mov_b32 v{vt+1}, s63")
    k(f"v_add_co_u32 v{vt}, vcc, s62, v{vt}\nv_addc_co_u32 v{vt+1}, vcc, 0, v{vt+1}, vcc")
    n0 = len(k.vmq)
    k(f"global_load_dword v{vt+2}, v[{vt}:{vt+1}], off")
    del k.vmq[n0:]
    k.label(sk)

def sj_decode(k, SJ, r):
    S = 48+4*r
    so, dst, fd, st = 84+4*r, 85+4*r, 86+4*r, 87+4*r
    SJ[r] = (S, so, dst, fd, st)
    k(f"s_mov_b32 s{S+3}, 0x00020000")
    end = k.newlabel()
    def pairmode(v, jstride, base):
        k(f"s_lshr_b32 s30, s{v}, 4\ns_and_b32 s31, s{v}, 15")
        k(f"s_lshl_b32 s{so}, s30, 15\ns_lshl_b32 s{fd}, s31, 6\ns_add_u32 s{so}, s{so}, s{fd}")
        k(f"s_lshr_b32 s{dst}, s31, 1\ns_mul_i32 s{dst}, s{dst}, {jstride}\ns_lshl_b32 s30, s30, 12\ns_add_u32 s{dst}, s{dst}, s30")
        k(f"s_and_b32 s31, s31, 1\ns_lshl_b32 s31, s31, 11\ns_add_u32 s{dst}, s{dst}, s31\ns_add_u32 s{dst}, s{dst}, {base}")
        k(f"s_mov_b32 s{fd}, 1024\ns_mov_b32 s{st}, 1024")
    def w4(off):
        k(f"s_mov_b32 s{S}, s46\ns_mov_b32 s{S+1}, s47\ns_mov_b32 s{S+2}, {1376*512*2:#x}")
        k(f"s_add_u32 s65, s29, {off & 0xffffffff:#x}")
        pairmode(65, 43*4096, f"{W4F:#x}")
    def w3(off, src="s29"):
        k(f"s_mov_b32 s{S}, s44\ns_mov_b32 s{S+1}, s45\ns_mov_b32 s{S+2}, {1376*512*2:#x}")
        k(f"s_add_u32 s65, {src}, {off & 0xffffffff:#x}")
        k(f"s_mul_i32 s30, s65, 1525\ns_lshr_b32 s30, s30, 16\ns_mul_i32 s31, s30, 43\ns_sub_u32 s31, s65, s31")
        k(f"s_mul_i32 s{so}, s30, {32*2752}\ns_lshl_b32 s{fd}, s31, 6\ns_add_u32 s{so}, s{so}, s{fd}")
        k(f"s_lshl_b32 s{dst}, s31, 15\ns_lshl_b32 s30, s30, 10\ns_add_u32 s{dst}, s{dst}, s30\ns_add_u32 s{dst}, s{dst}, {W3F:#x}")
        k(f"s_mov_b32 s{fd}, 16384\ns_mov_b32 s{st}, 2752")
    if r == 0:
        l4 = k.newlabel()
        k(f"s_cmp_ge_u32 s29, 768\ns_cbranch_scc1 {l4}")
        k(f"s_lshr_b32 s66, s29, 8")
        k(f"s_cmp_eq_u32 s66, 1\ns_cselect_b32 s{S}, s40, s36\ns_cselect_b32 s{S+1}, s41, s37")
        k(f"s_cmp_eq_u32 s66, 2\ns_cselect_b32 s{S}, s42, s{S}\ns_cselect_b32 s{S+1}, s43, s{S+1}")
        k(f"s_mov_b32 s{S+2}, {512*512*2:#x}")
        k(f"s_and_b32 s65, s29, 255\ns_lshl_b32 s66, s66, 19\ns_add_u32 s66, s66, {WOF:#x}")
        pairmode(65, 65536, "s66")
        k(f"s_branch {end}")
        k.label(l4); w4(-768)
    elif r == 1:
        l3 = k.newlabel()
        k(f"s_cmp_ge_u32 s29, 432\ns_cbranch_scc1 {l3}")
        w4(256); k(f"s_branch {end}")
        k.label(l3); w3(-432)
    else:
        w3(592, "s2")
    k.label(end)

SLOT=28928; XOFF=12288; XW=4160; STG=5*SLOT; MUA=STG+16384
def gen_k1():
    k = Kern("qkv_kernel", vgpr=200, sgpr=102); k.sb = 70; k.stn = []; k.smax = 6
    NB = [int(x) for x in str(OPT.get('nb', ''))]
    done = "L_k1_done"; QK2 = OPT.get('qk2', 0)
    sc1 = ' sc1' if OPT.get('k1sc') else ''
    def em(x):
        if callable(x): x()
        elif isinstance(x, tuple): k(x[0], tag=x[1])
        else: k(x)
    k(f"s_cmp_ge_u32 s2, 256\ns_cbranch_scc1 {done}")
    stamp(k,"m_start")
    k("s_load_dwordx16 s[32:47], s[0:1], 0")
    k("s_load_dwordx2 s[4:5], s[0:1], 80")
    if OPT.get('tw', 0) & 2: k("s_load_dwordx2 s[100:101], s[0:1], 64")
    k("v_lshrrev_b32 v2, 6, v0\nv_and_b32 v1, 63, v0")
    k(f"s_mov_b32 s6, {WS_SZ:#x}\ns_mov_b32 s7, 0x00020000")
    k("s_and_b32 s16, s2, 6\ns_lshl_b32 s16, s16, 1\ns_lshr_b32 s19, s2, 3\ns_and_b32 s18, s19, 3\ns_add_u32 s16, s16, s18")
    k("s_and_b32 s17, s2, 1\ns_lshl_b32 s17, s17, 3\ns_lshr_b32 s18, s19, 2\ns_add_u32 s17, s17, s18")
    k("v_readfirstlane_b32 s23, v2")
    k(f"s_xor_b32 s96, s17, 8\ns_add_u32 s97, s17, 4\ns_and_b32 s97, s97, 15")
    if QK2 == 1: k("s_mov_b32 s96, s17")
    if QK2 == 2: k("s_xor_b32 s97, s17, 8\ns_lshr_b32 s96, s17, 1\ns_and_b32 s98, s17, 1\ns_lshl_b32 s98, s98, 3\ns_add_u32 s96, s96, s98")
    if QK2 == 3: k("s_lshr_b32 s96, s17, 1\ns_and_b32 s98, s17, 1\ns_mul_i32 s98, s98, 12\ns_xor_b32 s96, s96, s98")
    k("v_lshrrev_b32 v9, 2, v1\nv_and_b32 v10, 3, v1\nv_lshlrev_b32 v3, 4, v1")
    k("s_and_b32 s18, s23, 3")
    k("s_lshl_b32 s22, s16, 2\ns_add_u32 s22, s22, s18")
    k(f"s_mul_i32 s26, s18, 3072\ns_mul_i32 s27, s18, {XW}\ns_add_u32 s27, s27, {XOFF}")
    if OPT.get('gwx', 1): k("s_and_b32 s28, s2, 7\ns_lshl_b32 s28, s28, 5\ns_add_u32 s28, s28, s19")
    else: k("s_mov_b32 s28, s2")
    k("s_lshl_b32 s29, s28, 2\ns_add_u32 s29, s29, s18")
    k(f"s_lshl_b32 s99, s18, 8\ns_add_u32 s99, s99, s2\ns_lshl_b32 s67, s18, 12\ns_add_u32 s67, s67, {STG}\ns_add_u32 s68, s67, 2048\ns_mov_b32 s69, {MUA}")
    k("s_cmp_lt_u32 s23, 4\ns_cbranch_scc1 L_k1_comp")
    SEL=112; CP=168; CSX = MUA+1024
    def wtr(d):
        k("v_and_b32 v14, 31, v1\nv_lshrrev_b32 v15, 5, v1")
        k(f"v_and_b32 v{d}, 3, v9\nv_lshl_add_u32 v{d}, v15, 3, v{d}\nv_lshlrev_b32 v{d}, 6, v{d}\nv_and_b32 v28, 16, v1\nv_lshl_add_u32 v{d}, v28, 1, v{d}")
        k(f"v_and_b32 v28, 1, v1\nv_lshl_add_u32 v{d}, v28, 4, v{d}\nv_and_b32 v28, 2, v1\nv_lshl_add_u32 v{d}, v28, 2, v{d}")
        k(f"v_lshrrev_b32 v29, 4, v1\nv_xor_b32 v28, v9, v29\nv_and_b32 v28, 1, v28\nv_add_u32 v28, -1, v28\nv_and_b32 v{SEL}, {ONES:#x}, v28")
        for r in range(1,4): k(f"v_mov_b32 v{SEL+r}, v{SEL}")
    k(f"s_mov_b32 s10, {2048*512*2:#x}\ns_mov_b32 s11, 0x00020000\ns_mov_b32 s14, {512*1536*2:#x}\ns_mov_b32 s15, 0x00020000")
    k("v_mul_u32_u24 v8, 3072, v9\nv_lshl_add_u32 v8, v10, 4, v8")
    k("s_lshl_b32 s98, s96, 6\nv_add_u32 v16, s98, v8\ns_lshl_b32 s98, s97, 6\nv_add_u32 v17, s98, v8\ns_lshl_b32 s98, " + ("s96, 7" if QK2 else "s17, 6") + "\nv_add_u32 v8, s98, v8")
    k("v_lshrrev_b32 v11, 3, v1\nv_and_b32 v12, 7, v1\nv_and_b32 v13, 2, v11\nv_lshlrev_b32 v13, 1, v13\nv_xor_b32 v12, v12, v13")
    k("v_lshlrev_b32 v4, 10, v11\nv_lshl_add_u32 v4, v12, 4, v4")
    for i in range(1,4): k(f"v_add_u32 v{4+i}, {8192*i:#x}, v4")
    k("s_lshl_b32 s24, s22, 15")
    k(f"s_mul_i32 s25, s18, {16*3072}")
    k("s_lshl_b32 s20, s16, 1\ns_add_u32 s20, s20, s17\ns_and_b32 s20, s20, 7")
    def issue(c):
        sl = c % 5
        if c: k("s_add_u32 s20, s20, 1\ns_and_b32 s20, s20, 7")
        k(f"s_mul_i32 s21, s20, {64*3072}\ns_add_u32 m0, s26, {sl*SLOT}\ns_add_u32 s21, s25, s21")
        if c == 0:
            k("s_waitcnt lgkmcnt(0)")
            k("s_mov_b32 s12, s34\ns_mov_b32 s13, s35\ns_mov_b32 s8, s32\ns_mov_b32 s9, s33")
        if QK2:
            k(f"buffer_load_dwordx4 v17, s[12:15], s21 offen offset:2048 lds", tag=f"c{c}")
            k(f"buffer_load_dwordx4 v8, s[12:15], s21 offen lds", tag=f"c{c}")
            k(f"s_add_u32 m0, s26, {sl*SLOT+960}")
            k(f"buffer_load_dwordx4 v8, s[12:15], s21 offen offset:64 lds", tag=f"c{c}")
        else:
            for g in range(3): k(f"buffer_load_dwordx4 v{(8,16,17)[g]}, s[12:15], s21 offen offset:{1024*g} lds", tag=f"c{c}")
        k("s_lshl_b32 s21, s20, 7\ns_add_u32 s21, s24, s21")
        for i in range(4 if not OPT.get('exb') else 1):
            k(f"s_add_u32 m0, s27, {sl*SLOT+i*1040}")
            k(f"buffer_load_dwordx4 v{4+i}, s[8:11], s21 offen lds", tag=f"c{c}")
    LA = OPT.get('k1la', 2)
    SJ = {}
    decode = lambda r: sj_decode(k, SJ, r)
    def sj_issue(r, m0expr):
        S, so, dst, fd, st = SJ[r]
        k(f"v_mul_u32_u24 v12, s{st}, v9\nv_lshl_add_u32 v12, v10, 4, v12")
        k(m0expr(0))
        k(f"buffer_load_dwordx4 v12, s[{S}:{S+3}], s{so} offen lds", tag=f"sj{r}")
        k(f"s_lshl_b32 s30, s{st}, 4\ns_add_u32 s30, s30, s{so}")
        k(m0expr(1024))
        k(f"buffer_load_dwordx4 v12, s[{S}:{S+3}], s30 offen lds", tag=f"sj{r}")
    def sj_rd(r, sbase, T):
        k(f"v_add_u32 v12, s{sbase}, v13")
        for b in range(2):
            for a in range(2): k(f"ds_read_b64_tr_b16 {vr(T+4*b+2*a,2)}, v12 offset:{256*a+8*b}")
    def sj_st(r, T, vo=3):
        S, so, dst, fd, st = SJ[r]
        k(f"s_add_u32 s30, s{dst}, s{fd}")
        if r == 2: k("s_cmp_ge_u32 s99, 96\ns_cselect_b32 s31, 0x80000000, 0\nv_add_u32 v12, s31, v3")
        k(f"buffer_store_dwordx4 {vr(T)}, v{vo}, s[4:7], s{dst} offen{sc1}", tag="st")
        k(f"buffer_store_dwordx4 {vr(T+4)}, v{vo}, s[4:7], s30 offen{sc1}", tag="st")
    def only96(f):
        sk = k.newlabel()
        k(f"s_cmp_ge_u32 s99, 96\ns_cbranch_scc1 {sk}")
        n0 = len(k.vmq)
        f()
        del k.vmq[n0:]
        k.label(sk)
    def clears():
        T = 192
        k(f"s_lshl_b32 s24, s29, 11\ns_add_u32 s24, s24, {OF:#x}")
        for r in range(4): k(f"v_mov_b32 v{T+r}, -1")
        k(f"s_cmp_gt_u32 s29, 287\ns_cselect_b32 s25, 0x80000000, 0\nv_add_u32 v12, s25, v3")
        k(f"s_lshl_b32 s25, s29, 10\ns_add_u32 s25, s25, {GM:#x}")
        return [f"buffer_store_dwordx4 {vr(T)}, v12, s[4:7], s25 offen sc1"] + [f"buffer_store_dwordx4 {vr(T)}, v3, s[4:7], s24 offen offset:{1024*i} sc1" for i in range(2)]
    assert XT == GM + 0x40000
    def sj012():
        sj_issue(2, lambda o: f"s_add_u32 m0, s69, {o}")
        sj_issue(0, lambda o: f"s_add_u32 m0, s67, {o}"); sj_issue(1, lambda o: f"s_add_u32 m0, s68, {o}")
    SJB = OPT.get('sjb', 3)
    sch = str(OPT.get('sch', '01.23.4.5.6.7' if OPT.get('sjk2') else '01.23.4s..5.67')).split('.')
    sch += ['']*(9-len(sch))
    for j in sch[0].split('s')[0]: issue(int(j))
    if OPT.get('sjk2'): OPT['nosj'] = 1
    for r in range(3):
        if not OPT.get('sjk2'): decode(r)
    if not OPT.get('sjk2'): k("s_cmp_ge_u32 s99, 96\ns_cselect_b32 s58, 0, s58\ns_cselect_b32 s69, s67, s69")
    if OPT.get('sjfake'):
        for r in range(3): k(f"s_mov_b32 s{48+4*r}, s34\ns_mov_b32 s{49+4*r}, s35")
    if 's' in sch[0]:
        sj012()
        for j in sch[0].split('s')[1]: issue(int(j))
    sched = {c: sch[c+1] for c in range(8)}
    for c in range(8):
        b = c
        while b in NB: b -= 1
        for j in sched[c]:
            assert j == 's' or c < int(j) <= b+4
            if j != 's':
                p_ = int(j)
                while p_ in NB: p_ -= 1
                assert c < p_, (c, j)
    SJA = int("".join(sch).split('s')[0][-1])
    k("v_lshrrev_b32 v13, 4, v1\nv_lshlrev_b32 v13, 3, v13\nv_and_b32 v14, 3, v9\nv_add_u32 v13, v13, v14\nv_lshlrev_b32 v13, 6, v13\nv_lshl_add_u32 v13, v10, 4, v13")
    wtr(20)
    k(f"v_add_u32 v20, s26, v20\nv_add_u32 v21, {2*SLOT:#x}, v20\nv_add_u32 v22, {4*SLOT:#x}, v20")
    k(f"s_lshl_b32 s30, s18, 2\ns_add_u32 s30, s30, {CSX}\nv_lshlrev_b32 v28, 4, v14\nv_add_u32 v28, s30, v28")
    last = max(c for c in sched if sched[c])
    for c in range(8):
        if c not in NB:
            j = c
            while j+1 in NB: j += 1
            k.waitvm(f"c{j}")
            k("s_barrier")
        sl = c % 5; st = sl//2; imm = (sl-2*st)*SLOT
        for g in range(3):
            for a in range(2): k(f"ds_read_b64_tr_b16 {vr(32+4*g+2*a,2)}, v{20+st} offset:{imm+g*1024+a*256}")
        for j in sched[c]:
            if j == 's':
                if not OPT.get('nosj'): sj012()
            else: issue(int(j))
        if c == max(SJA+1, last) and not OPT.get('nosj'):
            sj_rd(0, 67, 44); sj_rd(1, 68, 52); sj_rd(2, 69, 68)
        k("s_waitcnt lgkmcnt(0)")
        for b in range(3): k(f"v_mfma_f32_16x16x32_bf16 {vr(CP+4*b)}, {vr(SEL)}, {vr(32+4*b)}, {0 if c == 0 else vr(CP+4*b)}")
        if c == max(SJA+1, last) and OPT.get('nosj', 0) != 1:
            sj_st(0, 44); sj_st(1, 52); sj_st(2, 68, 12)
    for b in range(3): k(f"ds_write_b32 v28, v{CP+4*b} offset:{512*b}")
    k("s_waitcnt lgkmcnt(0)\ns_barrier")
    if SJA == 7 and not OPT.get('nosj'):
        k.waitvm("sj1")
        sj_rd(0, 67, 44); sj_rd(1, 68, 52); sj_rd(2, 69, 68)
        k("s_waitcnt lgkmcnt(0)")
        sj_st(0, 44); sj_st(1, 52); sj_st(2, 68, 12)
    if OPT.get('hop', 1) & 2: hopentry(k, "s18", "main_kernel", 4)
    k("s_endpgm")
    k.label("L_k1_comp")
    k.vmq = []; k.lgq = []
    if OPT['pref']:
        k("s_lshl_b32 s28, s19, 2\ns_add_u32 s28, s28, s18")
        code_prefetch(k, "qkv_kernel", "L_code_end", 28, 196)
    if OPT.get('hop', 1) & 4: hopentry(k, "s18", k.name, 4, 1)
    XA0=16; XA1=19; WA=22
    wtr(WA)
    k(f"v_lshrrev_b32 v25, 3, v14\nv_mul_u32_u24 v25, 1040, v25\nv_and_b32 v26, 7, v14\nv_lshl_add_u32 v25, v26, 7, v25\nv_lshl_add_u32 v25, v15, 4, v25\nv_add_u32 v25, s27, v25")
    k(f"v_and_b32 v26, 2, v14\nv_lshlrev_b32 v26, 5, v26\nv_add_u32 v{XA0}, v25, v26\nv_xor_b32 v26, 64, v26\nv_add_u32 v{XA1}, v25, v26")
    for b in (XA0, XA1, WA):
        k(f"v_add_u32 v{b+1}, {2*SLOT:#x}, v{b}\nv_add_u32 v{b+2}, {4*SLOT:#x}, v{b}")
    ACC=32; CSA=80; XB=[116,120,124]; WB=[128,140,152]; SUM=164; SQ=180; CV=188
    k(f"v_lshlrev_b32 v29, 4, v14\nv_add_u32 v29, {CSX}, v29")
    k(f"s_lshl_b32 s30, s18, 8\ns_add_u32 s30, s30, {MUA}")
    k("v_lshlrev_b32 v30, 2, v14\nv_add_u32 v30, s30, v30\nv_lshlrev_b32 v31, 4, v15\nv_add_u32 v31, s30, v31")
    k(f"s_lshl_b32 s31, s17, 17\ns_lshl_b32 s30, s22, 10\ns_add_u32 s31, s31, s30\ns_add_u32 s65, s31, 0x10000")
    k(f"s_lshl_b32 s30, s30, 1\ns_add_u32 s30, s30, {KV:#x}\ns_lshl_b32 s66, s96, 18\ns_add_u32 s66, s66, s30\ns_add_u32 s67, s66, 0x20000\ns_lshl_b32 s68, s97, 18\ns_add_u32 s68, s68, s30")
    if QK2:
        k("s_lshl_b32 s31, s96, 18\ns_lshl_b32 s65, s22, 10\ns_add_u32 s31, s31, s65\ns_and_b32 s65, s96, 7\ns_lshl_b32 s65, s65, 19\ns_add_u32 s65, s65, s30")
        k(f"s_cmp_lt_u32 s96, 8\ns_cselect_b32 s31, s31, s65\ns_cselect_b32 s30, 0x10000, 0x20000\ns_cselect_b32 s69, {fhex(0.25*LOG2E)}, 1.0".replace("0x10000, 0x20000", "1, 2"))
        k("s_lshl_b32 s30, s30, 16\ns_add_u32 s65, s31, s30\ns_add_u32 s66, s65, s30\ns_add_u32 s67, s66, s30")
    k("v_lshrrev_b32 v26, 4, v14\nv_lshlrev_b32 v26, 17, v26\nv_and_b32 v27, 15, v14\nv_lshl_add_u32 v26, v27, 4, v26\nv_lshl_add_u32 v26, v15, 8, v26")
    k("v_cmp_eq_u32 s[40:41], 1, v10\nv_cmp_eq_u32 s[42:43], 2, v10\nv_cmp_eq_u32 s[44:45], 3, v10" if 0 else "")
    def reads(n):
        c, ks = n//4, n%4; sl = c%5; st = sl//2; imm = (sl-2*st)*SLOT
        L = [f"ds_read_b128 {vr(XB[n%3])}, v{(XA0 if ks<2 else XA1)+st} offset:{imm+32*(ks&1)}"]
        for g in range(3):
            for a in range(2): L.append(f"ds_read_b64_tr_b16 {vr(WB[n%3]+4*g+2*a,2)}, v{WA+st} offset:{imm+ks*3072+g*1024+a*256}")
        if OPT.get('exa') == 1: L = L[1:]
        if OPT.get('exa') == 2: L = L[:3]
        return [(x, f"r{n}") for x in L]
    XG = {}
    def put(n, g, L): XG.setdefault((n, g), []).extend(L)
    for i, x in enumerate(clears()):
        if not (OPT.get('noclr') or OPT.get('ock')) or i == 0: put(OPT.get('clat', 0)+i, 2, [x])
    if OPT.get('k1u'):
        n = OPT['k1u']
        k(f"s_lshr_b32 s26, s29, 7\ns_mul_i32 s26, s26, {SETS:#x}\ns_and_b32 s27, s29, 127\ns_mul_i32 s27, s27, {n*1024}\ns_add_u32 s26, s26, s27\ns_add_u32 s26, s26, {SETB+SETS-n*131072:#x}")
        k("v_add_u32 v13, 0x1000, v3\nv_add_u32 v11, 0x2000, v3")
        for i in range(n): put(OPT.get('k1ut', 3)+OPT.get('k1us', 1)*i, 2, [f"buffer_store_dwordx4 v[192:195], v{(3,13,11)[i//4]}, s[4:7], s26 offen offset:{1024*(i%4)} sc1"])
    put(29, 0, ["s_barrier"] + [(f"ds_read_b128 {vr(CP+4*b)}, v29 offset:{512*b}", "cx") for b in range(3)])
    put(30, 0, [lambda: k.waitlg("cx")] + [f"v_add_f32 v{CP+4*b+r}, v{CP+4*b+r}, v{CP+4*b+r+1}" for b in range(2) for r in (0, 2)])
    put(30, 1, [f"v_add_f32 v{CP+4*b}, v{CP+4*b}, v{CP+4*b+2}" for b in range(2)] + [f"v_add_f32 v{CP+8+r}, v{CP+8+r}, v{CP+8+r+1}" for r in (0, 2)])
    put(30, 2, [f"ds_write_b32 v30, v{CP+4*b} offset:{128*b}" for b in range(2)] + [f"v_add_f32 v{CV}, v{CP+8}, v{CP+10}"])
    put(31, 0, [(f"ds_read_b128 {vr(CSA+16+4*a)}, v31 offset:{128+32*a}", "cb") for a in range(4)])
    put(31, 1, [(f"ds_read_b128 {vr(CSA+4*a)}, v31 offset:{32*a}", "ca") for a in range(4)])
    k("s_waitcnt lgkmcnt(0)")
    if OPT.get('tw'):
        TW = []
        k(f"v_lshlrev_b32 v191, {OPT.get('twg', 19)}, v1\nv_min_u32 v191, {XT:#x}, v191\nv_lshlrev_b32 v189, 15, v1")
        if OPT['tw'] & 1: TW.append("buffer_load_dword v190, v191, s[4:7], 0 offen")
        if OPT['tw'] & 2: TW.append("global_load_dword v190, v189, s[100:101]")
        def tw():
            sk = k.newlabel()
            k(f"s_cmp_lg_u32 s18, 0\ns_cbranch_scc1 {sk}")
            n0 = len(k.vmq)
            for x in TW: k(x)
            del k.vmq[n0:]
            k.label(sk)
        if OPT.get('tws', -1) < 0: tw()
        else: put(OPT['tws'], 2, [tw])
    k("v_cmp_eq_u32 s[40:41], 1, v10\nv_cmp_eq_u32 s[42:43], 2, v10\nv_cmp_eq_u32 s[44:45], 3, v10")
    if OPT.get('dv', 0) & 2: k(f"s_mov_b32 s64, {ONES:#x}")
    stamp(k,"m_pre")
    k("s_barrier")
    stamp(k,"m_c0")
    for x in reads(0) + reads(1): em(x)
    for n in range(32):
        c = n//4; x = XB[n%3]; w = WB[n%3]
        z = lambda a, q=16: 0 if n == 0 else vr(a, q)
        S3 = [f"v_mfma_f32_16x16x32_bf16 {vr(SUM)}, {vr(SEL)}, {vr(x)}, {z(SUM,4)}",
              f"v_mfma_f32_4x4x4_16b_bf16 {vr(SQ)}, {vr(x,2)}, {vr(x,2)}, {z(SQ,4)}",
              f"v_mfma_f32_4x4x4_16b_bf16 {vr(SQ+4)}, {vr(x+2,2)}, {vr(x+2,2)}, {z(SQ+4,4)}"]
        M = [f"v_mfma_f32_32x32x16_bf16 {vr(ACC+16,16)}, {vr(w+4)}, {vr(x)}, {z(ACC+16)}",
             f"v_mfma_f32_32x32x16_bf16 {vr(ACC,16)}, {vr(w)}, {vr(x)}, {z(ACC)}",
             f"v_mfma_f32_32x32x16_bf16 {vr(ACC+32,16)}, {vr(x)}, {vr(w+8)}, {z(ACC+32)}"]
        G = {i: [] for i in range(len(M))}
        DV = OPT.get('dv', 0); D = []
        for r in range(4):
            if DV & 1: D.append(f"v_dot2_f32_bf16 v{SQ+r}, v{x+r}, v{x+r}, {0 if n == 0 else 'v%d' % (SQ+r)}")
            if DV & 2: D.append(f"v_dot2_f32_bf16 v{SUM+r}, v{x+r}, s64, {0 if n == 0 else 'v%d' % (SUM+r)}")
        if DV & 1: S3 = S3[:1]
        if DV & 2: S3 = S3[1:]
        if n % 4 == 2 and n < 28 and c+1 not in NB:
            G[0] += (["s_waitcnt lgkmcnt(0)"] if c <= 3 or NB else []) + ["s_barrier", lambda c=c: stamp(k, f"{'a' if c<3 else 'b'}_c{c+1}")]
        R = reads(n+2) if n < 30 else []
        G[0] += R[0:3]; G[1] += R[3:5]; G[2] += R[5:7]
        if n == 31: G[0] = D + G[0]
        else:
            c1 = len(D)//4; c2 = c1 + (len(D)-c1)//2
            G[0] += D[:c1]; G[1] += D[c1:c2]; G[2] += D[c2:]
        for g in range(3): G[g] += XG.get((n, g), [])
        k.waitlg(f"r{n}")
        for y in S3: k(y)
        for i, m in enumerate(M):
            k(m)
            for y in G[i]: em(y)
            if n == 31 and i == 1:
                MU=16; RS=18; QS=20
                red = lambda b: k(f"v_add_f32 v{b}, v{b}, v{b+1}\nv_add_f32 v{b+2}, v{b+2}, v{b+3}\nv_add_f32 v{b}, v{b}, v{b+2}")
                if DV & 2: red(SUM); xhalf_add(k, SUM, 25)
                if DV & 1: red(SQ)
                else:
                    for r in range(4): k(f"v_add_f32 v{SQ+r}, v{SQ+r}, v{SQ+4+r}")
                    for r in range(1,4): k(f"v_cndmask_b32 v{SQ}, v{SQ}, v{SQ+r}, s[{38+2*r}:{39+2*r}]")
                xhalf_add(k, SQ, 25)
    stamp(k,"m_loop")
    pr = lambda b: vr(b, 2)
    stats_from_sums(k, SUM, SQ, MU, RS, 25)
    k.waitlg("ca")
    k(f"ds_write_b32 v30, v{MU}\nds_write_b32 v30, v{RS} offset:128")
    k(f"v_mul_f32 v{QS}, {'s69' if QK2 else fhex(0.25*LOG2E)}, v{RS}")
    TM=128
    for a in range(4): k(f"ds_read_b128 {vr(TM+4*a)}, v31 offset:{32*a}\nds_read_b128 {vr(TM+16+4*a)}, v31 offset:{128+32*a}")
    P=164
    def qk(b):
        for hf in range(2):
            R = range(8*hf, 8*hf+8, 2)
            for r in R: k(f"v_pk_fma_f32 {pr(ACC+16*b+r)}, {pr(MU)}, {pr(CSA+16*b+r)}, {pr(ACC+16*b+r)} op_sel_hi:[0,1,1] neg_lo:[1,0,0] neg_hi:[1,0,0]")
            for r in R: k(f"v_pk_mul_f32 {pr(ACC+16*b+r)}, {pr(QS if b==0 or QK2 else RS)}, {pr(ACC+16*b+r)} op_sel_hi:[0,1]")
            for r in R: k(f"v_cvt_pk_bf16_f32 v{P+8*b+r//2}, v{ACC+16*b+r}, v{ACC+16*b+r+1}")
            k(f"buffer_store_dwordx4 {vr(P+8*b+4*hf)}, v3, s[4:7], s{[[31,65],[66,67]][b][hf]} offen{sc1}")
    qk(1)
    k("s_waitcnt lgkmcnt(0)")
    for hf in range(2):
        R = range(8*hf, 8*hf+8, 2)
        for r in R: k(f"v_pk_fma_f32 {pr(ACC+32+r)}, {pr(TM+r)}, {pr(CV)}, {pr(ACC+32+r)} op_sel_hi:[1,0,1] neg_lo:[1,0,0] neg_hi:[1,0,0]")
        for r in R: k(f"v_pk_mul_f32 {pr(ACC+32+r)}, {pr(TM+16+r)}, {pr(ACC+32+r)}")
        for r in R: k(f"v_cvt_pk_bf16_f32 v{P+16+r//2}, v{ACC+32+r}, v{ACC+32+r+1}")
        k(f"buffer_store_dwordx4 {vr(P+16+4*hf)}, v26, s[4:7], s68 offen offset:{1024+512*hf}{sc1}")
    qk(0)
    stamp(k,"m_epi")
    if OPT.get('k1x'):
        k(f"s_movk_i32 s26, {OPT['k1x']}")
        k.label("L_k1x")
        k("v_add_f32 v5, v5, v5\nv_add_f32 v5, v5, v5\ns_sub_u32 s26, s26, 1\ns_cmp_lg_u32 s26, 0\ns_cbranch_scc1 L_k1x")
    stamp_out(k, 0, 32, 18)
    k.label(done)
    k("s_endpgm")
    hopend(k, 4, "L_k1_end")
    k.label("L_k1_end")
    return k
```

```python
from gen3 import *

WA=0; WB=0x10000; RING=0x20000; RP=2064; NR=13; MISC=0x26900; CSL=MISC; STL=MISC+256
UT=43*1024
BOUND=20000
OOB=0x80000000
def M16(d, a, b, c): return f"v_mfma_f32_16x16x32_bf16 {d}, {a}, {b}, {c}"
def M32(d, a, b, c): return f"v_mfma_f32_32x32x16_bf16 {d}, {a}, {b}, {c}"
def w3reg(t, s):
    n = 16*t+s
    return vr(144+4*n) if n < 28 else ar(176+4*(n-28))
def w4reg(ks, nb):
    b = 64+16*ks if ks < 7 else 16*(ks-7)
    return ar(b+4*nb)
pr = lambda b: vr(b,2)

class SA:
    def __init__(s, lo, hi): s.n = lo; s.hi = hi; s.m = {}
    def __call__(s, name, align=1, cnt=1):
        if name in s.m: return s.m[name]
        while s.n % align: s.n += 1
        r = s.n; s.n += cnt
        assert s.n <= s.hi, "out of sgprs"
        s.m[name] = f"s{r}"; return s.m[name]

def gen_k2():
    k = Kern("main_kernel", vgpr=512, sgpr=102, accum=256); k.sb = 80; k.stn = []; k.smax = 10
    k.label("L_code_begin")
    done = "L_k2_done"
    S_ = SA(19, 80)
    X, HD, W, T = "s16", "s17", "s18", S_("T")
    S_("RET", 2, 2); T2 = S_("T2")
    def em(x):
        if callable(x): x()
        elif isinstance(x, tuple): k(x[0], tag=x[1])
        else: k(x)
    k(f"s_cmp_ge_u32 s2, 256\ns_cbranch_scc1 {done}")
    stamp(k,"m_start")
    k("s_load_dwordx2 s[4:5], s[0:1], 80\ns_load_dwordx2 s[8:9], s[0:1], 0\ns_load_dwordx2 s[12:13], s[0:1], 64")
    SJK = OPT.get('sjk2', 0)
    if SJK: k("s_load_dwordx16 s[32:47], s[0:1], 0")
    if OPT.get('dbo'): k("s_load_dwordx2 s[100:101], s[0:1], 72")
    k(f"s_mov_b32 s6, {WS_SZ:#x}\ns_mov_b32 s7, 0x00020000\ns_mov_b32 s10, 0x200000\ns_mov_b32 s11, 0x00020000\ns_mov_b32 s14, 0x200000\ns_mov_b32 s15, 0x00020000")
    k("v_lshrrev_b32 v2, 6, v0\nv_and_b32 v1, 63, v0")
    k("s_and_b32 s16, s2, 7\ns_lshr_b32 s17, s2, 3")
    k("v_readfirstlane_b32 s18, v2")
    k("v_lshlrev_b32 v3, 4, v1")
    for q in range(1,4): k(f"v_add_u32 v{3+q}, {4096*q:#x}, v3")
    sKV, sRW = S_("KV"), S_("RW")
    k(f"s_lshl_b32 {T2}, {HD}, 16\ns_lshl_b32 {T}, {X}, 13\ns_add_u32 {T2}, {T2}, {T}\ns_lshl_b32 {T}, {W}, 11\ns_add_u32 {T2}, {T2}, {T}")
    k(f"s_lshl_b32 {sKV}, {HD}, 17\ns_add_u32 {sKV}, {sKV}, {T}\ns_add_u32 {sKV}, {sKV}, {KV:#x}")
    k(f"s_mul_i32 {sRW}, {W}, {RP}\ns_add_u32 {sRW}, {sRW}, {RING:#x}")
    QA=16; QB=20; C=24; S=[40,56]; P=[72,80]; O=[88,104]; KR=120; V0=124; V1=128
    KA=7; VA0=8; VA1=9; XV=132; XTV=133
    k(f"s_mov_b32 m0, {sRW}")
    k("s_waitcnt lgkmcnt(0)")
    stamp(k,"k_karg")
    k(f"buffer_load_dwordx4 v3, s[4:7], {sKV} offen lds", tag="g0")
    k(f"buffer_load_dwordx4 {vr(QA)}, v3, s[4:7], {T2} offen", tag="g0")
    k(f"buffer_load_dwordx4 {vr(QB)}, v3, s[4:7], {T2} offen offset:1024", tag="g0")
    k(f"buffer_load_dwordx4 v3, s[4:7], {sKV} offen offset:1024 lds", tag="g0")
    def kvm0(n):
        a = 4*n % NR
        return f"s_add_u32 m0, {sRW}, {a*RP}" if a+3 < NR else f"s_mov_b32 m0, {S_('WR%d'%a)}"
    kvso = f"s_add_u32 {sKV}, {sKV}, 16384"
    def kvld(n): return [(f"buffer_load_dwordx4 v{5 if n & 1 else 3}, s[4:7], {sKV} offen offset:{o} lds", f"g{n}") for o in (0, 1024)]
    for x in [kvm0(1)] + kvld(1) + [kvm0(2), kvso] + kvld(2): em(x)
    SJT = 200; SJD = 224; SJR = 230; SJF = 231
    if SJK:
        SJ = {}
        k(f"s_lshl_b32 s29, {X}, 7\ns_lshl_b32 s28, {HD}, 2\ns_add_u32 s29, s29, s28\ns_add_u32 s29, s29, {W}\ns_lshl_b32 s99, {W}, 8\ns_add_u32 s99, s99, s2\ns_lshl_b32 s28, {W}, 14")
        k(f"v_lshrrev_b32 v{SJT}, 2, v1\nv_and_b32 v{SJT+1}, 3, v1\nv_lshlrev_b32 v{SJT+1}, 4, v{SJT+1}")
        for r in (0, 1, 2):
            sj_decode(k, SJ, r)
            S0, so, dst, fd, st = SJ[r]
            if r == 2: k(f"s_cmp_ge_u32 s99, 96\ns_cselect_b32 s{S0+2}, 0, s{S0+2}\ns_cselect_b32 s{dst}, {OOB:#x}, s{dst}")
            k(f"v_mad_u32_u24 v{SJT+2}, s{st}, v{SJT}, v{SJT+1}")
            k(f"s_add_u32 m0, s28, {WA+2048*r}\ns_lshl_b32 s30, s{st}, 4\ns_add_u32 s30, s30, s{so}")
            k(f"buffer_load_dwordx4 v{SJT+2}, s[{S0}:{S0+3}], s{so} offen lds", tag="sj")
            k(f"s_add_u32 m0, s28, {WA+2048*r+1024}")
            k(f"v_add_u32 v{SJD+2*r}, s{dst}, v3")
            k(f"buffer_load_dwordx4 v{SJT+2}, s[{S0}:{S0+3}], s30 offen lds", tag="sj")
            k(f"v_add_u32 v{SJD+2*r+1}, s{fd}, v{SJD+2*r}")
        k(f"v_lshrrev_b32 v{SJR}, 4, v1\nv_lshlrev_b32 v{SJR}, 3, v{SJR}\nv_and_b32 v{SJT}, 3, v{SJT}\nv_add_u32 v{SJR}, v{SJR}, v{SJT}\nv_lshl_add_u32 v{SJR}, v{SJR}, 6, v{SJT+1}\nv_add_u32 v{SJR}, s28, v{SJR}")
    MG = "s3"; J, MTB, MT, JW, W14, T14 = [S_(n) for n in "J MTB MT JW W14 T14".split()]
    k(f"s_lshr_b32 {MG}, {HD}, 3\ns_and_b32 {J}, {HD}, 7")
    k(f"s_lshl_b32 {MTB}, {X}, 4\ns_lshl_b32 {T}, {MG}, 2\ns_add_u32 {MTB}, {MTB}, {T}\ns_add_u32 {MT}, {MTB}, {W}")
    k(f"s_lshl_b32 {JW}, {J}, 2\ns_add_u32 {JW}, {JW}, {W}\ns_lshl_b32 {W14}, {W}, 14\ns_lshl_b32 {T14}, {MT}, 14")
    sONE, sM2, sCNT, sXC = S_("ONE"), S_("M2"), S_("CNT"), S_("XC")
    RET = S_("RET", 2, 2); RETP = f"s[{RET[1:]}:{int(RET[1:])+1}]"
    k(f"s_mov_b32 {sONE}, {ONES:#x}\ns_mov_b32 {sM2}, -2\ns_mov_b32 {sCNT}, 0")
    k.cnt = sCNT
    k(f"s_getreg_b32 {sXC}, hwreg(HW_REG_XCC_ID, 0, 4)")
    for r in range(4): k(f"v_accvgpr_write_b32 a{168+r}, -1")
    k("v_and_b32 v10, 31, v1\nv_lshrrev_b32 v11, 5, v1\nv_and_b32 v12, 15, v1\nv_lshrrev_b32 v13, 4, v1")
    sXT = S_("XT")
    k(f"s_lshl_b32 {sXT}, {X}, 12\ns_add_u32 {sXT}, {sXT}, {XT:#x}\ns_lshl_b32 {T}, {HD}, 7\ns_add_u32 {T}, {T}, {sXT}")
    k(f"v_sub_u32 v14, 0, v0\nv_and_b32 v14, {OOB:#x}, v14\nv_mov_b32 v15, {sXC}")
    if SJK:
        k(f"v_add_u32 v{SJF}, {T}, v14\nv_mov_b32 v{SJF+1}, {sXC}\ns_lshl_b32 {T}, {W}, 13\ns_add_u32 {T}, {T}, {XT:#x}\nv_lshlrev_b32 v{SJF+2}, 7, v1\nv_add_u32 v{SJF+2}, {T}, v{SJF+2}")
    elif OPT.get('ock'):
        k(f"v_add_u32 v141, {T}, v14\nv_mov_b32 v142, {sXC}")
        k(f"s_lshl_b32 {T}, {X}, 5\ns_add_u32 {T}, {T}, {HD}\ns_lshl_b32 {T}, {T}, 2\ns_add_u32 {T}, {T}, {W}\ns_lshl_b32 {T}, {T}, 11\ns_add_u32 {T}, {T}, {OF:#x}\nv_add_u32 v143, {T}, v3")
    else: k(f"buffer_store_dword v15, v14, s[4:7], {T} offen sc1", tag="clr")
    NCL = 12-OPT.get('k1u', 0)
    sCL, sSet, sXT_, sW2a, sW2b = S_("CL"), S_("Set"), S_("XTl"), S_("W2a"), S_("W2b")
    k(f"s_mul_i32 {sSet}, {X}, {SETS:#x}\ns_add_u32 {sSet}, {sSet}, {SETB:#x}")
    k(f"s_lshl_b32 {T}, {HD}, 2\ns_add_u32 {T}, {T}, {W}\ns_mul_i32 {T}, {T}, {1024*NCL}\ns_add_u32 {sCL}, {sSet}, {T}")
    CL = [f"buffer_store_dwordx4 a[168:171], v{3+i//4}, s[4:7], {sCL} offen offset:{1024*(i%4)}" for i in range(NCL)]
    atr = []
    def clpair(i):
        def f():
            a = k.newlabel("Z"); c = k.newlabel("C")
            k(f"s_cbranch_scc1 {a}")
            for x in CL[i:i+2]: k(x + ('', ' sc0', ' nt', ' sc0 nt')[OPT.get('clm', 0)], tag="clr")
            k.label(c)
            atr.append([f"{a}:"] + [x + " sc1" for x in CL[i:i+2]] + [f"s_branch {c}"])
        return f
    k(f"v_lshlrev_b32 v{XV}, 10, v12\nv_lshl_add_u32 v{XV}, v13, 4, v{XV}")
    k(f"s_lshl_b32 {sXT_}, {J}, 7\ns_add_u32 {sXT_}, {sXT_}, {T14}")
    EL = [(f"buffer_load_dwordx4 a[160:163], v{XV}, s[8:11], {sXT_} offen", "w"), (f"buffer_load_dwordx4 a[164:167], v{XV}, s[8:11], {sXT_} offen offset:64", "w")]
    sSh, sSx = S_("Sh"), S_("Sx")
    k(f"s_and_b32 {T}, {MT}, 15\ns_lshl_b32 {T}, {T}, 10\ns_add_u32 {sSh}, {sSet}, {T}\ns_add_u32 {sSh}, {sSh}, {SO:#x}\ns_add_u32 {sSx}, {sSh}, 0x4000")
    sWO, sW1, sSA, sSB = S_("WO"), S_("W1"), RET, S_("SB")
    k(f"s_lshl_b32 {T2}, {J}, 16\ns_add_u32 {sWO}, {T2}, {W14}\ns_add_u32 {sW1}, {sWO}, {W1F:#x}\ns_add_u32 {sWO}, {sWO}, {WOF:#x}")
    k(f"s_mul_i32 {sSA}, {W}, 6144\ns_mul_i32 {sSB}, {W}, 10240\ns_add_u32 {sSB}, {sSB}, 24576\ns_add_u32 {T2}, {T2}, {W2F:#x}")
    def ldr(dst, so, i, vo=None): return (f"buffer_load_dwordx4 {dst}, {vo or 'v%d' % (3+i//4)}, s[4:7], {so} offen offset:{1024*(i%4)}", "w")
    k(f"s_add_u32 {sW2a}, {T2}, {sSA}\ns_add_u32 {sW2b}, {T2}, {sSB}")
    EL += [ldr(ar(4*i), sW2a, i) for i in range(6)] + [ldr(ar(24+4*i), sW2b, i) for i in range(10)]
    if OPT.get('xlate'): EL = EL[2:] + EL[:2]
    ne = OPT.get('early', 6)
    for x in EL[:ne]: em(x)
    EL = EL[ne:]
    for a in (10, 11, 12):
        r = S_(f"WR{a}")
        k(f"s_cmp_ge_u32 {W}, {NR-a}\ns_cselect_b32 {T}, {NR*RP}, 0\ns_sub_u32 {r}, {sRW}, {T}\ns_add_u32 {r}, {r}, {a*RP}")
    s3 = [S_("3a"), S_("3b"), S_("3c")]; s4 = [S_("4a"), S_("4b"), S_("4c")]
    k(f"s_lshl_b32 {s3[0]}, {JW}, 15\ns_add_u32 {s3[0]}, {s3[0]}, {W3F:#x}\ns_add_u32 {s3[1]}, {s3[0]}, 16384")
    k(f"s_add_u32 {s3[2]}, {JW}, 64\ns_min_u32 {s3[2]}, {s3[2]}, 85\ns_lshl_b32 {s3[2]}, {s3[2]}, 14\ns_add_u32 {s3[2]}, {s3[2]}, {W3F:#x}")
    k(f"s_mul_i32 {s4[0]}, {J}, 43\ns_mul_i32 {T}, {W}, 11\ns_add_u32 {s4[0]}, {s4[0]}, {T}\ns_lshl_b32 {s4[0]}, {s4[0]}, 12\ns_add_u32 {s4[0]}, {s4[0]}, {W4F:#x}")
    k(f"s_add_u32 {s4[1]}, {s4[0]}, 16384\ns_add_u32 {s4[2]}, {s4[0]}, 32768")
    sOs = [S_("Os0"), S_("Os1")]
    k(f"s_lshl_b32 {sOs[0]}, {X}, 18\ns_lshl_b32 {T}, {W}, 16\ns_add_u32 {sOs[0]}, {sOs[0]}, {T}\ns_lshl_b32 {T}, {HD}, 9\ns_add_u32 {sOs[0]}, {sOs[0]}, {T}\ns_add_u32 {sOs[0]}, {sOs[0]}, {OF:#x}\ns_add_u32 {sOs[1]}, {sOs[0]}, 0x8000")
    sOl, sHl, sHs, sGl, sGs, sXl, sXs, sDP, sDN, sMB, sSV = [S_(n) for n in "Ol Hl Hs Gl Gs Xl Xs DP DN MB SV".split()]
    k(f"s_add_u32 {sOl}, {T14}, {OF:#x}\ns_and_b32 {T14}, {T14}, 0x3ffff\ns_add_u32 {T14}, {T14}, {sSet}")
    GA_L = OPT.get('gal', 1)
    k(f"s_add_u32 {sHl}, {T14}, {HO:#x}\ns_add_u32 {sXl}, {T14}, {XO:#x}\ns_sub_u32 {sGl}, {T14}, {(0 if GA_L else 32)+16384-GO:#x}")
    k(f"s_lshl_b32 {T}, {J}, 11\ns_add_u32 {sHs}, {sHl}, {T}\ns_add_u32 {sXs}, {sXl}, {T}\ns_sub_u32 {sGs}, {sHs}, {HO-GO+(16384 if GA_L else 0):#x}")
    sOt = MTB2 = S_("Ot")
    k(f"s_add_u32 {sOt}, {sOl}, {T}\nv_lshlrev_b32 v{XV+2}, 5, v1")
    q = 0 if GA_L else 256
    k(f"s_lshl_b32 {T2}, {X}, 15\ns_add_u32 {sMB}, {T2}, {T}\ns_add_u32 {sMB}, {sMB}, {GM:#x}")
    k(f"s_sub_u32 {T2}, {T2}, {T14}\ns_add_u32 {T2}, {T2}, {GM-GO+16384:#x}")
    k(f"s_add_u32 {sDP}, {T2}, {(q-16384) & 0xffffffff:#x}\ns_add_u32 {sDN}, {T2}, {32768-q}")
    k(f"s_cmp_eq_u32 {X}, 0\ns_cselect_b32 {sDP}, {OOB:#x}, {sDP}\ns_cmp_eq_u32 {X}, 7\ns_cselect_b32 {sDN}, {OOB:#x}, {sDN}")
    k(f"s_and_b32 {T}, {MT}, 15\ns_cmp_eq_u32 {T}, 0\ns_cselect_b32 {sDP}, {sDP}, {16384 if GA_L else 256}\ns_cmp_eq_u32 {T}, 15\ns_cselect_b32 {sDN}, {sDN}, {16384 if GA_L else 32768-256}")
    k(f"s_cselect_b32 {T2}, 16384, 0\ns_add_u32 {sMB}, {sMB}, {T2}")
    if GA_L:
        sNS, sOT = S_("NS"), S_("OT")
        k(f"s_lshr_b32 {sNS}, {J}, 2\ns_add_u32 {sNS}, {sNS}, 1\ns_sub_u32 {T2}, 0, {sNS}\ns_mov_b32 {sOT}, 256")
        k(f"s_bitcmp1_b32 {J}, 1\ns_cselect_b32 {sNS}, {T2}, {sNS}\ns_cselect_b32 {sOT}, {sOT}, {32768-256}\ns_cselect_b32 {T2}, {sOT}, {-256 & 0xffffffff:#x}")
        k(f"s_add_u32 {sMB}, {sMB}, {T2}\ns_lshl_b32 {T2}, {sNS}, 4\ns_add_u32 {sMB}, {sMB}, {T2}\ns_add_u32 {sGs}, {sGs}, {T2}")
    k(f"s_bitcmp1_b32 {J}, 1\ns_cselect_b32 {T2}, 0, 15\ns_cmp_eq_u32 {T}, {T2}\ns_cselect_b32 {sMB}, {sMB}, 0")
    if GA_L: k(f"s_cselect_b32 {sOT}, {OOB:#x}, {sOT}")
    k(f"s_lshr_b32 {sSV}, {J}, 1\ns_lshl_b32 {sSV}, {sSV}, 8\ns_and_b32 {T}, {J}, 1\ns_lshl_b32 {T}, {T}, 3\ns_add_u32 {sSV}, {sSV}, {T}")
    sTid = [W] + [S_(f"Tid{q}") for q in range(1,4)]
    sUs = [S_(f"Us{q}") for q in range(4)]; sUl = [sSet, T14] + [S_(f"Ul{q}") for q in range(2,4)]; sHF, sOut = MG, [JW, MT]
    for q in range(1,4): k(f"s_cmp_le_u32 {W}, {q-1}\ns_cselect_b32 {sTid[q]}, {q}, {q-1}")
    k(f"s_mul_i32 {T2}, {MG}, {4*UT}\ns_add_u32 {sSet}, {sSet}, {T2}\ns_add_u32 {sSet}, {sSet}, {UO:#x}")
    k(f"s_lshl_b32 {T}, {JW}, 10\ns_add_u32 {T}, {T}, {sSet}")
    for q in range(4): k(f"s_mul_i32 {sUs[q]}, {sTid[q]}, {UT}\ns_add_u32 {sUs[q]}, {sUs[q]}, {T}")
    k(f"s_lshr_b32 {T}, {JW}, 1\ns_add_u32 {T}, {T}, 32\ns_sub_u32 {T}, {T}, {JW}\ns_lshl_b32 {T}, {T}, 10\ns_and_b32 {T2}, {JW}, 1\ns_lshl_b32 {T2}, {T2}, 3\ns_add_u32 {T}, {T}, {T2}")
    k(f"s_cmp_lt_u32 {JW}, 22\ns_cselect_b32 {sHF}, {T}, {OOB:#x}")
    k(f"s_mul_i32 {T}, {W}, {11*1024}\ns_add_u32 {sUl[0]}, {sSet}, {T}")
    for t in range(1,4): k(f"s_add_u32 {sUl[t]}, {sUl[0]}, {t*UT}")
    k(f"s_lshr_b32 {T}, {W}, 1\ns_add_u32 {T}, {T}, {MTB}\ns_lshl_b32 {sOut[0]}, {T}, 14\ns_lshl_b32 {T}, {J}, 7\ns_add_u32 {sOut[0]}, {sOut[0]}, {T}")
    k(f"s_and_b32 {T}, {W}, 1\ns_lshl_b32 {T}, {T}, 6\ns_add_u32 {sOut[0]}, {sOut[0]}, {T}\ns_add_u32 {sOut[1]}, {sOut[0]}, 0x8000")
    k(f"v_add_u32 v{KA}, {RING:#x}, v3")
    k(f"v_lshlrev_b32 v14, 4, v12\nv_lshl_add_u32 v14, v11, 8, v14")
    k(f"v_add_u32 v{VA0}, {RING+1024:#x}, v14\nv_add_u32 v{VA1}, {RING+1536:#x}, v14\nv_mov_b32 v15, {RING+2048:#x}")
    k(f"v_cmp_gt_u32 vcc, 16, v10\nv_cndmask_b32 v{VA0}, v15, v{VA0}, vcc\nv_cndmask_b32 v{VA1}, v15, v{VA1}, vcc")
    k("v_lshrrev_b32 v2, 4, v10\nv_lshl_add_u32 v2, v2, 14, v14")
    k(f"v_lshlrev_b32 v{XTV}, 7, v10")
    k(f"v_min_u32 v15, {NR-1}, v1\nv_mul_u32_u24 v15, {RP}, v15\nv_add_u32 v15, {RING+2048:#x}, v15")
    for r in range(4): k(f"v_mov_b32 v{V0+r}, {sONE}")
    k(f"ds_write_b128 v15, {vr(V0)}")
    for r in range(4): k(f"v_accvgpr_write_b32 a{172+r}, v{V0}")
    for r in range(32): k(f"v_mov_b32 v{O[0]+r}, 0")
    for r in range(4,8): k(f"v_mov_b32 v{P[1]+r}, 0")
    for r in range(4): k(f"v_mov_b32 v{V1+r}, 0")
    k(f"s_lshl_b32 {T}, {W}, 10\ns_add_u32 {T}, {T}, {WB:#x}\nv_add_u32 v10, {T}, v3")
    k(f"s_lshl_b32 {T}, {W}, 6\ns_add_u32 {T}, {T}, {CSL:#x}\nv_lshlrev_b32 v11, 4, v13\nv_add_u32 v11, {T}, v11")
    k(f"v_add_u32 v15, {sSA}, v{KA}")
    if OPT.get('cpf'):
        pc = k.newlabel()
        k(f"s_getpc_b64 {RETP}"); k.label(pc)
        k(f"s_add_u32 {RET}, {RET}, L_attn_fin-{pc}\ns_addc_u32 s{int(RET[1:])+1}, s{int(RET[1:])+1}, 0\ns_lshl_b32 {T}, {W}, 13")
        if OPT.get('cpf2', 1): k(f"s_lshl_b32 {T}, {HD}, 2\ns_add_u32 {T}, {T}, {W}\ns_lshl_b32 {T}, {T}, 8")
        k(f"v_lshlrev_b32 v136, {'6, v13' if OPT.get('cpf2', 1) else '7, v1'}\nv_add_u32 v136, {T}, v136\nv_min_u32 v136, L_code_end-L_attn_fin-4, v136\nv_mov_b32 v137, s{int(RET[1:])+1}")
        k(f"v_add_co_u32 v136, vcc, {RET}, v136\nv_addc_co_u32 v137, vcc, 0, v137, vcc")
    DM = []
    for so, lb in ((sWO, WA), (sW1, WB)):
        for q in range(4): DM.append((f"s_add_u32 m0, {W14}, {lb+4096*q:#x}", [(f"buffer_load_dwordx4 v{3+q}, s[4:7], {so} offen offset:{1024*i} lds", "w") for i in range(4)]))
    RL = [ldr(w3reg(t, s), s3[t], s) for t in range(3) for s in range(16)] + [ldr(w4reg(i//4, i%4), s4[i//16], i%16) for i in range(24)]
    if OPT.get('nofill'): DM = []
    if OPT.get('fakeld'):
        import re as _re
        fk = lambda x: (_re.sub(r"s\[4:7\], s\d+ ", "s[4:7], 0 ", x[0]), x[1])
        DM = [(m, [fk(x) for x in L]) for m, L in DM]; RL = [fk(x) for x in RL]; EL = [fk(x) for x in EL]
    spot = {}
    def put(t, sp, x): spot.setdefault((t, sp), []).append(x)
    for n in range(1, 14):
        put(4*n-2, 'Bpv_s', kvm0(n+2))
        if not (n+2) & 1: put(4*n-2, 'Bmid_s', kvso)
        for x in kvld(n+2): put(4*n-1, 'Apv', x)
    if OPT.get('ock'):
        o0 = OPT.get('oc0', 1); ob = OPT.get('ocb', 11)
        assert ob % 4 == 3 and ob > o0+1 and ob < OPT.get('clr0', 36)-13-4
        for i in range(2): put(o0+i, 'Bmid', (f"buffer_store_dwordx4 a[168:171], v143, s[4:7], 0 offen offset:{1024*i} sc1", "oc"))
        put(ob, 'Abar', lambda: k.waitvm("oc"))
        put(ob, 'Bmid', (f"buffer_store_dword v142, v141, s[4:7], 0 offen sc1", "clr"))
    free = []
    F0 = OPT.get('fill0', 0)
    if SJK:
        s0 = OPT.get('sj0', 4); sb = OPT.get('sjb2', 11); F0 = OPT.get('sjf', 16)
        assert sb % 4 == 3 and F0 % 4 == 0 and F0 > sb+1
        put(s0, 'Bpre', lambda: k.waitvm("sj"))
        for r in range(3):
            for b in range(2):
                for a in range(2): put(s0+r, 'Bpre' if b == 0 else 'Bmid', f"ds_read_b64_tr_b16 {vr(SJT+8*r+4*b+2*a,2)}, v{SJR} offset:{2048*r+256*a+8*b}")
                put(s0+r+1, 'Apv', (f"buffer_store_dwordx4 {vr(SJT+8*r+4*b)}, v{SJD+2*r+b}, s[4:7], 0 offen sc1", "sjs"))
        put(sb, 'Abar', lambda: k.waitvm("sjs"))
        put(sb, 'Bpre', (f"buffer_store_dword v{SJF+1}, v{SJF}, s[4:7], 0 offen sc1", "clr"))
        pl = f"buffer_load_dword v{SJF+1}, v{SJF+2}, s[4:7], 0 offen sc1"
        put(F0-1-OPT.get('sjp', 1), 'Bmid', (pl, "pol"))
        def polchk():
            a = k.newlabel("Y"); c = k.newlabel("C")
            k.waitvm("pol")
            k(f"v_cmp_eq_u32 vcc, -1, v{SJF+1}\ns_cbranch_vccnz {a}"); k.label(c)
            atr.append([f"{a}:", pl, f"s_add_u32 {sCNT}, {sCNT}, 1", f"s_cmp_gt_u32 {sCNT}, {BOUND}", "s_waitcnt vmcnt(0)", f"v_cmp_eq_u32 vcc, -1, v{SJF+1}",
                        f"s_cbranch_scc1 {c}", f"s_cbranch_vccnz {a}", f"s_branch {c}"])
        put(F0-1, 'Abar', polchk)
        for x in EL[:2]: put(sb-2, 'Apv', x)
        EL = EL[2:]
    for t in range(F0, 64):
        g = (t+1-F0)//4
        if t % 4 in (0, 1) and g < len(DM):
            for x in DM[g][1][2*(t%4):2*(t%4)+2]: put(t, 'Apv', x)
            if t % 4 == 0:
                if t: put(t-1, 'Bmid_s', DM[g][0])
                else: k(DM[g][0])
        elif t % 4 == 3 and t < 55: free.append((t, 'Bpre'))
        else: free.append((t, 'Apv'))
    LT = OPT.get('lastfill', 56)
    free = [f for f in free if f[0] < LT]
    RL = EL + RL
    if OPT.get('nofill'): RL = []; CL = []
    FL = [RL[i:i+2] for i in range(0, len(RL), 2)]
    C0 = OPT.get('clr0', 36); ctl = [t for t in range(C0, 64) if t % 4 in (0, 1)][:len(CL)//2]
    assert not ctl or ctl[-1] < 51
    if OPT.get('cw'):
        ctl = [t for t in range(OPT['cw'], 64) if t % 4 in (0, 1)][:len(CL)//2]
        assert ctl[-1] < 51
    for i, t in enumerate(ctl):
        if OPT.get('cw'):
            for x in CL[2*i:2*i+2]: put(t, 'Bmid', (x + " sc1", "clr"))
            continue
        put(t-1, 'Bpv_s', "s_cmp_lg_u64 s[0:1], 0"); put(t, 'Bmid', clpair(2*i))
    put(C0-OPT.get('xtl', 13), 'Bmid', (f"buffer_load_dword v{XTV}, v{XTV}, s[4:7], {sXT} offen sc1", "xt"))
    put(C0-2, 'Bpre', lambda: (k.waitvm("xt"), k(f"v_cmp_ne_u32 s[0:1], {sXC}, v{XTV}" if not OPT.get('slowtail') else "s_mov_b64 s[0:1], -1")))
    if OPT.get('cpf'): put(OPT['cpf'], 'Bmid', ("global_load_dword v0, v[136:137], off", "cpf"))
    if OPT.get('spf', 8):
        n = OPT.get('spf', 8); L = -(-50//n); h = n//2
        k(f"s_mul_i32 {T}, {X}, {SETS:#x}\ns_lshl_b32 {T2}, {HD}, 2\ns_add_u32 {T2}, {T2}, {W}\ns_mul_i32 {T2}, {T2}, 6400\ns_add_u32 {T}, {T}, {T2}\ns_add_u32 {T}, {T}, {SETB:#x}")
        k(f"v_sub_u32 v139, {L-1}, v1\nv_and_b32 v139, {OOB:#x}, v139\nv_lshl_add_u32 v138, v1, 7, v139\nv_add_u32 v138, {T}, v138\nv_add_u32 v139, {128*L*h}, v138")
        t0 = OPT.get('spft', 30); ts = OPT.get('spfs', 4)
        for i in range(n): put(t0+ts*i, 'Bmid', (f"buffer_load_dword v0, v{138+i//h}, s[4:7], 0 offen offset:{128*L*(i%h)} sc1", "spf"))
        if OPT.get('spu'):
            k(f"s_mul_i32 {T2}, {T2}, 43\ns_mul_i32 {T}, {X}, {SETS:#x}\ns_add_u32 {T}, {T}, {SETB+UO:#x}")
            k(f"s_lshl_b32 {T2}, {HD}, 2\ns_add_u32 {T2}, {T2}, {W}\ns_mul_i32 {T2}, {T2}, {43*128}\ns_add_u32 {T}, {T}, {T2}")
            k(f"v_sub_u32 v140, 42, v1\nv_and_b32 v140, {OOB:#x}, v140\nv_lshl_add_u32 v140, v1, 7, v140\nv_add_u32 v140, {T}, v140")
            put(OPT['spu'], 'Bmid', (f"buffer_load_dword v0, v140, s[4:7], 0 offen sc1", "spf"))
            if OPT.get('wrs'):
                for i in range(3): put(OPT.get('wrm', 1)+OPT['wrs']*i, 'Bmid', (f"buffer_load_dword v0, v{140-i}, s[4:7], 0 offen{('', ' nt', ' sc1')[OPT.get('wrk', 0)]}", "spf"))
    put(OPT.get('ott', 51), 'Bmid', (f"buffer_load_dword v0, v{XV+2}, s[4:7], {sOt} offen sc1", "ot"))
    need = len(FL) - len(free)
    cand = [t for t in range(F0, LT) if t % 4 != 3 and t not in ctl]
    for i in range(max(0, need)): free.append((cand[i*len(cand)//need], 'Bmid'))
    free.sort()
    for f, xs in zip(free, FL):
        for x in xs: put(*f, x)
    assert RET == "s20"
    if OPT.get('hop', 1) & 1: hopentry(k, W, k.name, 4, 1)
    stamp(k,"k_pre")
    k.waitvm("g0", "lgkmcnt(0)")
    k("s_barrier")
    stamp(k,"m_g0")
    k(f"ds_read_b128 {vr(KR)}, v{KA}\nds_read_b128 {vr(V0)}, v{VA0}")
    k("s_waitcnt lgkmcnt(1)")
    k(M32(vr(S[0],16), vr(KR), vr(QA), 0)); k(M32(vr(S[1],16), vr(KR), vr(QB), 0))
    k(f"v_max_f32 v{C}, v{S[0]}, v{S[0]+1}")
    for r in range(2,32,2): k(f"v_max3_f32 v{C}, v{C}, v{S[0]+r}, v{S[0]+r+1}")
    k(f"v_mov_b32 v{C+1}, v{C}\nv_permlane32_swap_b32 v{C}, v{C+1}\nv_max_f32 v{C}, v{C}, v{C+1}")
    k(f"v_sub_f32 v{C}, 0, v{C}")
    for r in range(1,16): k(f"v_mov_b32 v{C+r}, v{C}")
    for r in range(0,16,2): k(f"v_pk_add_f32 {pr(S[0]+r)}, {pr(S[0]+r)}, {pr(C)}")
    k(f"v_mov_b32 v{S[1]+14}, 0\nv_mov_b32 v{S[1]+15}, 0")
    stamp(k,"k_att0")
    MIDJ = OPT.get('midj', 1); PVJ = OPT.get('pvj', 5)
    def half(X_, t):
        s = S[X_]; p = P[X_]; Y = 1-X_; last = t == 63
        pos = lambda tt: (tt % NR)*RP
        g = lambda sp: spot.get((t, sp), [])
        if X_ == 0:
            a = []
            if (t+1) % 4 == 0 and not last: a = [lambda: k.waitvm(f"g{(t+1)//4}")] + g('Abar') + ["s_barrier"]
            if not last: a.append(f"ds_read_b128 {vr(KR)}, v{KA} offset:{pos(t+1)}")
            pre = [M32(vr(S[1],16), vr(KR), vr(QB), vr(C,16))] + a
            mid = [f"s_waitcnt lgkmcnt({0 if last else 1})", f"ds_read_b128 {vr(V1)}, v{VA1} offset:{pos(t)}"]
            pv = ([] if last else ["s_waitcnt lgkmcnt(1)"]) + g('Apv')
        else:
            pre = ([] if last else [M32(vr(S[0],16), vr(KR), vr(QA), vr(C,16))]) + ["s_waitcnt lgkmcnt(0)"] + g('Bpre')
            mid = g('Bmid_s') + g('Bmid')
            pv = g('Bpv_s') + ([] if last else [f"ds_read_b128 {vr(V0)}, v{VA0} offset:{pos(t+1)}"])
        for j in range(8):
            k(f"v_exp_f32 v{s+2*j}, v{s+2*j}")
            if j == 0:
                k(f"v_cvt_pk_bf16_f32 v{P[Y]+7}, v{S[Y]+14}, v{S[Y]+15}")
                for x in pre: em(x)
            k(f"v_exp_f32 v{s+2*j+1}, v{s+2*j+1}")
            if j >= 1: k(f"v_cvt_pk_bf16_f32 v{p+j-1}, v{s+2*j-2}, v{s+2*j-1}")
            if j == MIDJ:
                k(M32(vr(O[Y],16), vr(V1), vr(P[Y]+4), vr(O[Y],16)))
                for x in mid: em(x)
            if j == PVJ:
                k(M32(vr(O[X_],16), vr(V0), vr(p), vr(O[X_],16)))
                for x in pv: em(x)
    for t in range(64):
        half(0, t); half(1, t)
        if t == 31: stamp(k,"m_att32")
        stamp(k, f"t{t%4}_{t:02d}")
    k(f"v_cvt_pk_bf16_f32 v{P[1]+7}, v{S[1]+14}, v{S[1]+15}")
    T0 = S[0]
    k(f"v_rcp_f32 v{T0+4}, v{O[0]+8}")
    k(M32(vr(O[1],16), vr(V1), vr(P[1]+4), vr(O[1],16)))
    stamp(k,"m_att64")
    def norm(X_):
        for r in range(0,8,2): k(f"v_pk_mul_f32 {pr(O[X_]+r)}, {pr(O[X_]+r)}, {pr(T0+4+2*X_)} op_sel_hi:[1,0]")
        for r in range(4): k(f"v_cvt_pk_bf16_f32 v{P[X_]+r}, v{O[X_]+2*r}, v{O[X_]+2*r+1}")
        k(f"v_min_u32 v{P[X_]}, {sM2}, v{P[X_]}")
    k(f"v_pk_mul_f32 {pr(T0)}, {pr(O[0]+8)}, 0 op_sel_hi:[1,0]")
    for r in range(0,8,2): k(f"v_pk_fma_f32 {pr(T0)}, {pr(O[0]+r)}, 0, {pr(T0)} op_sel_hi:[1,0,1]")
    norm(0)
    k(f"s_mov_b32 {T}, {fhex(2.0**-30)}\ns_mov_b32 {T2}, {fhex(2.0**30)}")
    k(f"v_rcp_f32 v{T0+6}, v{O[1]+8}")
    for r in range(0,10,2): k(f"v_pk_fma_f32 {pr(T0)}, {pr(O[1]+r)}, 0, {pr(T0)} op_sel_hi:[1,0,1]")
    k(f"v_min_f32 v{T0+2}, v{O[0]+8}, v{O[1]+8}\nv_max_f32 v{T0+3}, v{O[0]+8}, v{O[1]+8}")
    k(f"v_cmp_u_f32 vcc, v{T0}, v{T0+1}")
    k(f"v_cmp_gt_f32 {RETP}, {T}, v{T0+2}")
    k(f"s_or_b64 vcc, vcc, {RETP}")
    k(f"v_cmp_lt_f32 {RETP}, {T2}, v{T0+3}")
    k(f"s_or_b64 vcc, vcc, {RETP}")
    if OPT['slow']: k("s_branch L_attn_slow")
    if not OPT.get('noslow'): k("s_cbranch_vccnz L_attn_slow")
    k.label("L_attn_fin")
    k("s_cmp_lg_u64 s[0:1], 0")
    k("s_cbranch_scc1 L_tail_sc")

    def tail(fast):
        sc = "" if fast else " sc1"
        stubs = []; tramp = []
        st = (lambda n: stamp(k, n)) if fast != bool(OPT.get('slowtail')) else (lambda n: None)
        ACT=16; H=80; STR=96; A2=100; TMP=132; PK=ACT+32
        WV = [120,124,128,132,136,140,96,100,116,104,108,112]
        R10 = [ar(4*i) for i in range(6)] + [vr(116+4*i) for i in range(4)]
        def buf(e): return vr(WV[e % 12]) if e < 80 else R10[(e-80) % 10]
        def rd(e):
            if e < 16: a = f"v10 offset:{4096*e}"
            elif e < 80: a = f"v3 offset:{1024*(e-16)}"
            elif e < 144: a = f"v8 offset:{1024*(e-80)}"
            elif e < 168: a = f"v{KA} offset:{1024*(e-144)}"
            else: a = f"v3 offset:{1024*(e-144)}"
            if OPT.get('abl') == 2 and e >= 92: return (f"ds_read_b32 v0, {a}", f"r{e}")
            return (f"ds_read_b128 {buf(e)}, {a}", f"r{e}")
        def refill(e):
            n = e+12 if e < 78 else (e+10 if e >= 80 else None)
            return [rd(n)] if n is not None and n < 208 else []
        def stub(name, L):
            lab = k.newlabel("S"+name)
            o = [f"{lab}:"]
            for x, regs in L:
                sk = k.newlabel("K")
                o += maxl(regs) + [f"s_cbranch_vccz {sk}", x, f"{sk}:"]
            o += ["s_waitcnt vmcnt(0)", f"s_setpc_b64 {RETP}"]
            stubs.append(o); return dict(lab=lab, L=L, iss=set())
        def maxl(regs):
            r = list(regs); o = []
            if len(r) == 1: return [f"v_cmp_eq_u32 vcc, -1, v{r[0]}"]
            if len(r) % 2 == 0: o.append(f"v_max_u32 v0, v{r[0]}, v{r[1]}"); r = r[2:]
            else: o.append(f"v_max3_u32 v0, v{r[0]}, v{r[1]}, v{r[2]}"); r = r[3:]
            while r: o.append(f"v_max3_u32 v0, v0, v{r[0]}, v{r[1]}"); r = r[2:]
            return o + ["v_cmp_eq_u32 vcc, -1, v0"]
        def br(D, own):
            def f():
                a = k.newlabel("R"); c = k.newlabel("C")
                if D.get('inl'):
                    assert all(i in D['iss'] for i in own), (own, D['iss'])
                    D['iss'] -= set(own)
                    od = D['ord']; p0 = min(j for j, (i, q) in enumerate(od) if i in own and (i < 16 or D.get('nst')))
                    p1 = max(j for j, (i, q) in enumerate(od) if i in own)
                    for j in range(p1+1, len(od)):
                        if len(k.vmq) - od[j][1] != len(od) - j: p1 = j
                    re_ = [i for j, (i, q) in enumerate(od) if j >= p0 or i in own]
                    o = []; cur = None
                    for i in re_:
                        if D.get('m0', {}).get(i, cur) != cur: cur = D['m0'][i]; o.append(cur)
                        o.append(D['L'][i][0])
                    assert cur in (None, D.get('m0cur'))
                    o = o + [f"s_add_u32 {sCNT}, {sCNT}, {len(re_) if OPT.get('cntw') else 1}", f"s_cmp_gt_u32 {sCNT}, {BOUND}", f"s_waitcnt vmcnt({len(od)-1-p1})"]
                    rr = [D['rd'][i] for i in own if i in D.get('rd', {})]
                    if rr:
                        assert 0 not in own
                        o += rr + ["s_waitcnt lgkmcnt(0)"]
                    o += maxl([r for i in own for r in D['L'][i][1]]) + [f"s_cbranch_scc1 {c}", f"s_cbranch_vccnz {a}"]
                    if D['inl'] == 1 or (D['inl'] == 3 and 0 in own):
                        k(f"s_cbranch_vccz {c}"); k.label(a)
                        n0 = len(k.vmq)
                        for x in o: k(x)
                        del k.vmq[n0:]
                        k.label(c)
                    elif OPT.get('abl') == 4: pass
                    elif OPT.get('abl') == 5: k("s_nop 0")
                    elif OPT.get('abl') == 6:
                        k(f"s_cbranch_execz {a}"); k.label(c)
                        tramp.append([f"{a}:"] + o + [f"s_branch {c}"])
                    else:
                        k(f"s_cbranch_vccnz {a}"); k.label(c)
                        tramp.append([f"{a}:"] + o + [f"s_branch {c}"])
                    return
                k(f"s_cbranch_vccnz {a}"); k.label(c)
                assert all(i in D['iss'] for i in own), (own, D['iss'])
                D['iss'] -= set(own)
                o = [f"{a}:"] + [D['L'][i][0] for i in own]
                o += [f"s_add_u32 {sCNT}, {sCNT}, 1", f"s_cmp_gt_u32 {sCNT}, {BOUND}", "s_waitcnt vmcnt(0)", f"s_cbranch_scc1 {c}"]
                o += maxl([r for i in own for r in D['L'][i][1]]) + [f"s_cbranch_vccnz {a}"]
                if D['iss']:
                    o += maxl([r for i in sorted(D['iss']) for r in D['L'][i][1]]) + [f"s_cbranch_vccz {c}", f"s_call_b64 {RETP}, {D['lab']}"]
                tramp.append(o + [f"s_branch {c}"])
            return f
        def iss(D, i, tag):
            def f():
                D.setdefault('ord', []).append((i, len(k.vmq)))
                if D.get('m0', {}).get(i, D.get('m0cur')) != D.get('m0cur'):
                    D['m0cur'] = D['m0'][i]; k(D['m0cur'])
                k(D['L'][i][0].replace(' sc1', (' sc1', '', ' sc0', ' nt', ' sc1 nt')[OPT.get('ldm', 0) if fast else 0]), tag=tag); D['iss'].add(i)
            return f
        def stream(M, G):
            for i, m in enumerate(M):
                k(m)
                for x in G.get(i, []): em(x)
        def spread(G, items, gaps):
            n = len(items); g = len(gaps)
            for i, x in enumerate(items): G.setdefault(gaps[i*g//n], []).append(x)
        def fcost(x):
            if callable(x): return OPT.get('cw', 4)
            t = x[0] if isinstance(x, tuple) else x
            if t.startswith("buffer_"): return OPT.get('cl', 6)
            if t.startswith("ds_write"): return OPT.get('cd', 8)
            return 8 if t.startswith(TRANS) else 4*(1+t.count("\n"))
        def spreadb(G, items, gaps, F):
            fx = {g: sum(fcost(x) for x in F.get(g, []) + G.get(g, [])) for g in gaps}
            tot = sum(fx.values()) + sum(fcost(x) for x in items); acc = 0; j = 0; n = len(gaps)
            for i, g in enumerate(gaps):
                acc += fx[g]
                while j < len(items) and ((2*acc + fcost(items[j])) * n <= 2 * tot * (i+1) or i == n-1):
                    G.setdefault(g, []).append(items[j]); acc += fcost(items[j]); j += 1
        LA = OPT.get('la', 8)
        def actl(name, vo, so, sst, sreg=STR, dma=16):
            L = [(f"buffer_load_dwordx4 {vr(ACT+4*s)}, v{vo[s//4]}, s[4:7], {so} offen offset:{1024*(s%4)} sc1", [ACT+4*s]) for s in range(16)]
            for s in range(dma, 16): L[s] = (f"buffer_load_dwordx4 v{vo[s//4]}, s[4:7], {so} offen offset:{1024*(s%4)} sc1 lds", [ACT+4*s])
            if sst: L.append((f"buffer_load_dwordx4 {vr(sreg)}, v3, s[4:7], {sst} offen sc1", [sreg+i for i in range(4)]))
            D = stub(name, L)
            D['m0'] = {s: f"s_add_u32 m0, {W14}, {WB+4096*(s//4):#x}" for s in range(dma, 16)}
            D['rd'] = {s: f"ds_read_b128 {vr(ACT+4*s)}, v{KA} offset:{1024*s}" for s in range(dma, 16)}
            D['m0cur'] = None
            D['inl'] = OPT.get('inl', 1)
            if D['inl']: stubs.pop()
            I = [iss(D, s, f"{name}{s//2}") for s in range(16)]
            if sst: I.insert(6, iss(D, 16, "sts"))
            n = OPT.get(name+'la', LA) + (1 if sst else 0)
            D['rest'] = I[n:]
            return I[:n], D
        def first_check(name, D):
            k.waitvm(f"{name}0")
            for x in maxl([ACT, ACT+4]): k(x)
            br(D, [0, 1])()
        def mstage(name, D, e0, AC, zero, has_st, early, late, fin=(), fix=()):
            M = [M16(vr(AC+4*(i%4)), buf(e0+i), vr(ACT+4*(i//4)), 0 if (zero and i < 4) else vr(AC+4*(i%4))) for i in range(64)]
            G = {i: [] for i in range(64)}
            used = set(); HSP = OPT.get('hsp', 3) if has_st else OPT.get(name+'lt', 3)
            for i in range(64):
                WL = OPT.get('wl', 2)
                if i % WL == (OPT.get('wlo', 1) % WL) and i < 63: G[i].append(lambda i=i: k.waitlg(f"r{e0+min(63, i+WL)}"))
                p = i//8
                if p < 7 and i % 8 == 4-OPT.get('bdm', 0): G[i].append(lambda p=p: k.waitvm(f"{name}{p+1}"))
                if p < 7 and i % 8 == 6+OPT.get('bd', 1): G[i].append(br(D, ([16] if has_st and p == HSP else []) + [2*p+2, 2*p+3]))
                if i % 8 == 6 and f"{name}_s" in OPT.get('sts', ''): G[i].append(lambda p=p: st(f"{name}_s{p}"))
                G[i] += refill(e0+i)
            for j, x in enumerate(D['rest']):
                rs = OPT.get(name+'rs', OPT.get('rs', 0))
                gi = rs*j if rs else 8*(j//2) + (OPT.get('r0', 0), OPT.get('r1', 7-OPT.get('bd', 1)))[j % 2]; G[gi].append(x); used.add(gi)
            for p in range(7):
                regs = [ACT+8*p+8, ACT+8*p+12]
                if has_st and p == HSP: regs = [STR, STR+1, STR+2, STR+3] + regs
                L = maxl(regs)
                for j, x in enumerate(L):
                    gi = 8*p+5-OPT.get('bdm', 0)-(len(L)-1-j); G[gi].append(x); used.add(gi)
            for j, x in enumerate(fin): G[56+j].append(x); used.add(56+j)
            for gi, x in fix: G[gi].append(x); used.add(gi)
            if OPT.get('mbal'):
                if has_st: spreadb(G, list(early), list(range(0, 8*HSP+8)), {}); spreadb(G, list(late), list(range(8*HSP+8, 64)), {})
                else: spreadb(G, list(late), list(range(0, 64)), {})
            else:
                spread(G, list(early), [i for i in range(0, 8*HSP+8) if i not in used])
                spread(G, list(late), [i for i in range(8*HSP+7, 64) if i not in used])
            st(f"{name}_w")
            first_check(name, D)
            k.waitlg(f"r{e0+OPT.get('wlo', 1) % OPT.get('wl', 2)}")
            st(f"{name}_m")
            stream(M, G)
            st(f"{name}_e")
        def packstore(AC, so):
            for p in range(2):
                for r in range(4): k(f"v_cvt_pk_bf16_f32 v{PK+4*p+r}, v{AC+8*p+2*r}, v{AC+8*p+2*r+1}")
                k(f"v_min_u32 v{PK+4*p}, {sM2}, v{PK+4*p}")
                k(f"buffer_store_dwordx4 {vr(PK+4*p)}, v3, s[4:7], {so} offen offset:{1024*p}{sc}", tag="st")
        SV=9
        def pstats(so, a):
            k(f"v_dot2_f32_bf16 v{a}, v{PK}, {sONE}, 0\nv_dot2_f32_bf16 v{a+1}, v{PK}, v{PK}, 0")
            for r in range(1,8): k(f"v_dot2_f32_bf16 v{a}, v{PK+r}, {sONE}, v{a}\nv_dot2_f32_bf16 v{a+1}, v{PK+r}, v{PK+r}, v{a+1}")
            k(f"v_permlane16_swap_b32 v{a}, v{a+1}\nv_add_f32 v{a}, v{a}, v{a+1}")
            xhalf_add(k, a, a+1)
            k(f"v_min_u32 v{a}, {sM2}, v{a}")
            k(f"buffer_store_dword v{a}, v{SV}, s[4:7], {so} offen{sc}", tag="st")
        def cs3(t): return [M16(ar(160+4*t), w3reg(t, s), "a[172:175]", 0 if s == 0 else ar(160+4*t)) for s in range(16)]
        def statlist(a, NMU, RS, t):
            L = [f"v_add_f32 v{a}, v{a}, v{a+2}", f"v_add_f32 v{a+1}, v{a+1}, v{a+3}"]
            for op in ("v_permlane16_swap_b32", "v_permlane32_swap_b32"):
                L += [f"v_mov_b32 v{a+2}, v{a}", f"v_mov_b32 v{a+3}, v{a+1}", f"{op} v{a}, v{a+2}", f"{op} v{a+1}, v{a+3}",
                      f"v_add_f32 v{a}, v{a}, v{a+2}", f"v_add_f32 v{a+1}, v{a+1}, v{a+3}"]
            L += [f"v_mul_f32 v{NMU}, {fhex(-1/512)}, v{a}", f"v_mul_f32 v{a+1}, {fhex(1/512)}, v{a+1}", f"v_fma_f32 v{a+1}, -v{NMU}, v{NMU}, v{a+1}",
                  f"v_max_f32 v{a+1}, 0, v{a+1}", f"v_add_f32 v{t}, {fhex(EPS)}, v{a+1}", f"v_rsq_f32 v{RS}, v{t}"]
            return L
        def gconsts(R, IRS, A, B):
            return [f"v_rcp_f32 v{IRS}, v{R}", f"v_mul_f32 v{A}, v{R}, v{R}", f"v_mul_f32 v{B}, {fhex(GB)}, v{R}", f"v_mul_f32 v{A}, v{A}, v{R}", f"v_mul_f32 v{A}, {fhex(GA)}, v{A}"]
        def window(M, loads, pre, extra):
            G = {}
            n = len(M)
            spread(G, loads, list(range(pre, n)))
            for gi, x in extra: G.setdefault(gi, []).append(x)
            stream(M, G)
        PRB = OPT.get('prb', 1)
        def probe(name, so, I, work):
            nsp = OPT.get(name+'sp', OPT.get('spec', 0))
            k(f"v_lshlrev_b32 v{ACT+63}, 8, v1")
            if OPT.get('dbgst'):
                st(f"{name}_a"); k("s_waitcnt vmcnt(1)"); st(f"{name}_b"); k("s_waitcnt vmcnt(0)"); st(f"{name}_c")
            pl = [f"buffer_load_dword v0, v{ACT+63}, s[4:7], {so} offen sc1"]
            for x in pl: k(x, tag="prb")
            n0 = len(k.L)
            for x in I[:nsp]: em(x)
            rep = [x.strip() for x in k.L[n0:]]
            work()
            k.waitvm("prb")
            st(f"{name}_p")
            P_ = k.newlabel("P"); OK = k.newlabel("Q")
            k(f"v_cmp_eq_u32 vcc, -1, v0\ns_cbranch_vccz {OK}")
            k.label(P_)
            n0 = len(k.vmq)
            for x in pl + rep: k(x)
            del k.vmq[n0:]
            k(f"s_add_u32 {sCNT}, {sCNT}, 1\ns_cmp_gt_u32 {sCNT}, {BOUND}\ns_waitcnt vmcnt({nsp})\nv_cmp_eq_u32 vcc, -1, v0\ns_cbranch_scc1 {OK}\ns_cbranch_vccnz {P_}")
            k.label(OK)
            st(f"{name}_q")
            return I[nsp:]
        def pwindow(name, so, M, I, extra):
            a = OPT.get(name+'wa', OPT.get('wa', 0))
            G = {}
            for gi, x in extra: G.setdefault(gi, []).append(x)
            R = probe(name, so, I, lambda: stream(M[:a], G))
            n1 = OPT.get('l0', 2)
            for x in R[:n1]: em(x)
            G = {g-a: v for g, v in G.items() if g >= a}
            if a < len(M):
                G2 = {}
                spread(G2, R[n1:], list(range(0, min(len(M)-a, OPT.get('lsp', 4)))))
                for g in G2: G[g] = G2[g] + G.get(g, [])
                stream(M[a:], G)
            else:
                for x in R[n1:]: em(x)
        k(f"buffer_store_dwordx4 {vr(P[0])}, v2, s[4:7], {sOs[0]} offen{sc}", tag="st")
        for e in range(6): em(rd(e))
        norm(1)
        k(f"buffer_store_dwordx4 {vr(P[1])}, v2, s[4:7], {sOs[1]} offen{sc}", tag="st")
        st("m_ost")
        I, labO = actl("o", [3,4,5,6], sOl, None)
        M = [M16("a[168:171]", buf(e), "a[172:175]", 0 if e == 0 else "a[168:171]") for e in range(16)]
        W2S = OPT.get('w2s', 0)
        rw = [f"ds_write_b128 v15, {ar(4*i)} offset:{1024*i}" for i in range(6)]
        xc = [f"v_accvgpr_read_b32 v{H+2*r+1}, a{160+r}" for r in range(8)]
        for r in range(8): xc += [f"v_lshlrev_b32 v{H+2*r}, 16, v{H+2*r+1}", f"v_and_b32 v{H+2*r+1}, 0xffff0000, v{H+2*r+1}"]
        def b0work():
            k("s_barrier")
            if not W2S & 1:
                for x in rw: k(x)
            if not OPT.get('xcg'):
                for x in xc: k(x)
        if PRB:
            a = OPT.get('owa', 0)
            G = {e: ([lambda e=e: k.waitlg(f"r{e+2}")] if e % 2 == 1 and e < 15 else []) + refill(e) for e in range(16)}
            def w0():
                for e in range(6, 12): em(rd(e))
                k(f"v_add_u32 v8, {WB:#x}, v3")
                b0work()
                k.waitlg("r1")
                stream(M[:a], G)
            R = probe("o", sOl, I, w0)
            n1 = OPT.get('l0', 2) if a < 16 else 99
            for x in R[:n1]: em(x)
            G = {g-a: v for g, v in G.items() if g >= a}
            G2 = {}
            if a < 16: spread(G2, R[n1:], list(range(0, min(16-a, OPT.get('lsp', 4)))))
            for g in G2: G[g] = G2[g] + G[g]
            stream(M[a:], G)
        else:
            for x in I[:2]: em(x)
            for e in range(6, 12): em(rd(e))
            k(f"v_add_u32 v8, {WB:#x}, v3")
            k.waitlg("r1")
            G = {}
            for e in range(16):
                G[e] = ([lambda e=e: k.waitlg(f"r{e+2}")] if e % 2 == 1 and e < 15 else []) + refill(e) + (I[2+e//2:3+e//2] if e % 2 == 0 else [])
            if OPT.get('xcg'): spreadb(G, xc, list(range(16)), {})
            stream(M, G)
            b0work()
        k("ds_write_b128 v11, a[168:171]")
        GV = [2, 10, 11, 15]
        E = [f"v_lshrrev_b32 v{SV}, 5, v1", f"v_lshlrev_b32 v{SV}, 31, v{SV}", f"v_lshl_add_u32 v{SV}, v12, 4, v{SV}", f"v_lshl_add_u32 v{SV}, v13, 2, v{SV}", f"v_add_u32 v{SV}, {sSV}, v{SV}",
             "v_mov_b32 v14, 0x4000"]
        for gi, sh in enumerate((-1, 1, -2, 2)):
            v = GV[gi]
            E += [f"v_add_u32 v{v}, {sh}, v12", f"v_bfe_i32 v{v}, v{v}, 4, 1", f"v_bfi_b32 v{v}, v{v}, {sDP if sh < 0 else sDN}, v14", f"v_add_u32 v{v}, v{3+gi}, v{v}" if GA_L else f"v_add3_u32 v{v}, v{3+gi}, v{v}, {16*(sh+2)}"]
        VG = TMP+11 if GA_L else 3
        EH = []
        if GA_L:
            EH = [f"v_add_u32 v{VG}, {sNS}, v12", f"v_bfe_i32 v{VG}, v{VG}, 4, 1", f"v_bfi_b32 v14, v{VG}, {sOT}, v14", f"v_xor_b32 v{VG}, -1, v{VG}", f"v_and_b32 v{VG}, 0x80000000, v{VG}",
                  f"v_add_u32 v{VG}, v{VG}, v3", "v_add_u32 v14, v14, v3"]
        else: E += ["v_add_u32 v14, 2, v12", "v_and_b32 v14, 12, v14", "v_sub_u32 v14, 0, v14", "v_and_b32 v14, 0x80000000, v14", "v_add_u32 v14, v14, v3"]
        VM, VG = (VG, 14) if GA_L else (14, 3)
        mstage("o", labO, 16, H, False, False, [], E, fix=[(OPT.get('ow0', 3)+OPT.get('ows', 8)*i, x) for i, x in enumerate(rw)] if W2S & 1 else [])
        I, labH = actl("h", [3,4,5,6], sHl, sSh)
        def lfirst(I, key):
            n = OPT.get(key, 0)
            for x in I[:n]: em(x)
            return I[n:]
        I = lfirst(I, 'hlf0')
        packstore(H, sHs)
        st("m_hst")
        I = lfirst(I, 'hlf1')
        pstats(sSh, TMP)
        if OPT.get('dbg2'):
            st("d_a"); k("s_waitcnt vmcnt(2)"); st("d_b"); k("s_waitcnt vmcnt(1)"); st("d_c"); k("s_waitcnt vmcnt(0)"); st("d_d")
            k(f"buffer_load_dwordx4 {vr(ACT)}, v3, s[4:7], {sHs} offen sc1\ns_waitcnt vmcnt(0)"); st("d_e")
            k(f"buffer_load_dwordx4 {vr(ACT)}, v3, s[4:7], {sHl} offen sc1\ns_waitcnt vmcnt(0)"); st("d_f")
            k(f"buffer_load_dwordx4 {vr(ACT)}, v6, s[4:7], {sHl} offen sc1\ns_waitcnt vmcnt(0)"); st("d_g")
        k(f"v_add_u32 v{TMP}, {sSB}, v3\nv_lshlrev_b32 v{TMP+1}, 4, v13\nv_add_u32 v{TMP+1}, {CSL:#x}, v{TMP+1}")
        NG = OPT.get('w2g', 0)
        w2w = [f"ds_write_b128 v{TMP}, {ar(24+4*i)} offset:{1024*i}" for i in range(10)]
        hfix = []
        if W2S & 2:
            nh = OPT.get('w2h', 10)
            hg = [int(x) for x in str(OPT.get('hwg', '3.6.11.14.19.22.30.35.43.51')).split('.')]
            hfix = list(zip(hg, w2w[:nh])); w2w = w2w[nh:]; NG = len(w2w); w2w = [None]*(10-NG) + w2w
        ex = [(OPT.get('b1g', 3), "s_waitcnt lgkmcnt(0)\ns_barrier" if W2S & 1 else "s_barrier")] + [(min(15, OPT.get('b1g', 3)+1+i), x) for i, x in enumerate(w2w[:10-NG]) if x]
        exg = [(OPT.get('gws', 1)*i, x) for i, x in enumerate(w2w[10-NG:])] + [(OPT.get('b2g', 15), "s_waitcnt lgkmcnt(0)\ns_barrier" if NG else "s_barrier")]
        if PRB: pwindow("h", sHl, cs3(0), I, ex)
        else: window(cs3(0), I, OPT.get('hpre', 0), ex)
        NMU=TMP+2; IRS=TMP+3; GA_=TMP+4; GB_=TMP+5; R1=TMP+6; KK=TMP+7; TT=TMP+8; RR=TMP+9; EP=TMP+10
        late = statlist(STR, NMU, R1, TT) + [f"v_mul_f32 v{TT}, v{R1}, v{R1}", f"v_fma_f32 v{TT}, v{TT}, v{STR+1}, v{EP}", f"v_rsq_f32 v{TT}, v{TT}",
              f"v_mul_f32 v{KK}, v{NMU}, v{R1}", f"v_mul_f32 v{RR}, v{R1}, v{TT}"] + gconsts(RR, IRS, GA_, GB_)
        CS=ACT; G0=ACT+16
        mstage("h", labH, 80, A2, True, True, [f"v_mov_b32 v{EP}, {fhex(EPS)}"] + EH, late, [(f"ds_read_b128 {vr(CS+4*nb)}, v{TMP+1} offset:{64*nb}", "cs") for nb in range(4)], fix=hfix)
        k.waitlg("cs")
        k(f"s_cmp_lg_u32 {sMB}, 0")
        for p in range(2):
            R = range(8*p, 8*p+8, 2)
            for r in R: k(f"v_pk_fma_f32 {pr(A2+r)}, {pr(CS+r)}, {pr(NMU)}, {pr(A2+r)} op_sel_hi:[1,0,1]")
            for r in R: k(f"v_pk_mul_f32 {pr(G0+r)}, {pr(A2+r)}, {pr(A2+r)}")
            for r in R: k(f"v_pk_fma_f32 {pr(G0+r)}, {pr(G0+r)}, {pr(GA_)}, {pr(GA_)} op_sel:[0,0,1] op_sel_hi:[1,0,1]")
            for r in R: k(f"v_pk_mul_f32 {pr(G0+r)}, {pr(G0+r)}, {pr(A2+r)}")
            for r in range(8*p, 8*p+8): k(f"v_exp_f32 v{G0+r}, v{G0+r}")
            for r in R: k(f"v_pk_fma_f32 {pr(G0+r)}, {pr(G0+r)}, {pr(NMU)}, {pr(NMU)} op_sel:[0,1,1] op_sel_hi:[1,1,1]")
            for r in range(8*p, 8*p+8): k(f"v_rcp_f32 v{G0+r}, v{G0+r}")
            for r in R: k(f"v_pk_mul_f32 {pr(A2+r)}, {pr(A2+r)}, {pr(G0+r)}")
            for r in range(4): k(f"v_cvt_pk_bf16_f32 v{PK+4*p+r}, v{A2+8*p+2*r}, v{A2+8*p+2*r+1}")
            k(f"v_min_u32 v{PK+4*p}, {sM2}, v{PK+4*p}")
            a = k.newlabel("M"); c = k.newlabel("C")
            k(f"s_cbranch_scc1 {a}"); k.label(c)
            tramp.append([f"{a}:", f"buffer_store_dwordx4 {vr(PK+4*p)}, v{VM}, s[4:7], {sMB} offen offset:{1024*p} sc1", f"s_branch {c}"])
            k(f"buffer_store_dwordx4 {vr(PK+4*p)}, v{VG}, s[4:7], {sGs} offen offset:{1024*p}{sc}", tag="st")
        st("m_gst")
        for r in range(0,16,2): k(f"v_pk_fma_f32 {pr(A2+r)}, {pr(H+r)}, {pr(R1)}, {pr(R1)} op_sel:[0,0,1] op_sel_hi:[1,0,1]")
        I, labG = actl("g", GV, sGl, None)
        if PRB:
            k(f"s_sub_u32 {T}, {sHl}, {HO-GO:#x}")
            pwindow("g", T, cs3(1), I, exg)
        else: window(cs3(1), I, OPT.get('gpre', 4), exg)
        E = ["v_lshl_add_u32 v14, v13, 2, v12", "v_and_b32 v14, 15, v14", "v_lshlrev_b32 v14, 4, v14", "v_lshl_add_u32 v14, v13, 8, v14",
             f"s_lshl_b32 {T}, {W}, 12", f"v_add_u32 v14, {T}, v14", f"v_add_u32 v{KA}, {W14}, v8"]
        mstage("g", labG, 144, A2, False, False, [], E)
        ST3=136
        XD = OPT.get('xd', 8)
        I, labX = actl("x", [3,4,5,6], sXl, sSx, ST3, 2*XD)
        I = lfirst(I, 'xlf0')
        packstore(A2, sXs)
        st("m_x1st")
        I = lfirst(I, 'xlf1')
        pstats(sSx, TMP)
        I = lfirst(I, 'xlf2')
        for r in range(0,16,2): k(f"v_pk_add_f32 {pr(H+r)}, {pr(H+r)}, {pr(A2+r)}")
        for nb in range(4): k(f"ds_write_b128 v14, {vr(H+4*nb)} offset:{1024*nb}")
        if PRB: pwindow("x", sXl, cs3(2), I, [])
        AC=[84,96]; C3=108; GT=120; SP=[132,32,36,32]; UP=136; TT=140; RS=141
        TB=[None,80,81,82]; SB=[None,83,142,143]
        early = [f"v_accvgpr_read_b32 v{C3+r}, a{160+r}" for r in range(12)]
        early += [f"s_lshl_b32 {T}, {W}, 8", "v_lshlrev_b32 v15, 4, v12", f"v_add_u32 v15, {STL:#x}, v15", f"v_add_u32 v2, {T}, v15",
                  f"v_add_u32 v10, {sHF}, v3", f"s_cmp_eq_u32 {W}, 3\ns_cselect_b32 {T}, {OOB:#x}, 0", f"v_add_u32 v11, {T}, v5",
                  f"s_lshr_b32 {T}, {T}, 21", f"v_subrev_u32 v12, {T}, v5" if OPT.get('abl') != 3 else "v_mov_b32 v12, 0x80000000"]
        late2 = []
        for q in range(1,4): late2 += [f"s_lshl_b32 {T}, {sTid[q]}, 14", f"v_add_u32 v{TB[q]}, {T}, v8", f"s_lshl_b32 {T}, {sTid[q]}, 8", f"v_add_u32 v{SB[q]}, {T}, v15"]
        exw = []
        if OPT.get('xw', 1):
            wl = early[:8] + early[12:] + late2; early = early[8:12]; late2 = []
            exw = [(i*16//len(wl), x) for i, x in enumerate(wl)]
        if not PRB: window(cs3(2), I, OPT.get('xpre', 0), exw)
        XSP = OPT.get('xsp', 3)
        M = [M16(vr(AC[0]+4*t), w3reg(t,s), vr(ACT+4*s), 0 if s == 0 else vr(AC[0]+4*t)) for s in range(16) for t in range(3)]
        G = {i: [] for i in range(48)}; used = set()
        for p in range(8):
            for h in range(2 if OPT.get('abl') != 1 and p < XD else 0): G[6*p+h*OPT.get('wx', 1)].append(f"ds_write_b128 v{KA}, {vr(ACT+8*p+4*h)} offset:{2048*p+1024*h}")
            if p < 7:
                regs = [ACT+8*p+8, ACT+8*p+12]
                if p == XSP: regs = [ST3+i for i in range(4)] + regs
                L = maxl(regs)
                if p+1 < XD:
                    G[6*p+3-OPT.get('bdx', 1)].append(lambda p=p: k.waitvm(f"x{p+1}"))
                    for j, x in enumerate(L):
                        gi = 6*p+4-OPT.get('bdx', 1)-(len(L)-1-j); G[gi].append(x)
                else:
                    assert p >= 1
                    G[6*p-1] += [lambda p=p: k.waitvm(f"x{p+1}"), (labX['rd'][2*p+2], f"xr{p+1}")]
                    G[6*p-1+OPT.get('xr2', 1)].append((labX['rd'][2*p+3], f"xr{p+1}"))
                    c_ = OPT.get('xc', 3)
                    for j, x in enumerate(L[:-2]): G[6*p+1+j].append(x)
                    G[6*p+c_] += [lambda p=p: k.waitlg(f"xr{p+1}")] + L[-2:]
                G[6*p+5].append(br(labX, ([16] if p == XSP else []) + [2*p+2, 2*p+3]))
                G[6*p+5].append(lambda p=p: st(f"x_s{p}"))
        for j, x in enumerate(labX['rest']): G[OPT['xrs']*j if OPT.get('xrs') else 3*j+2+(OPT.get('xr0', 1), OPT.get('xr1', -1))[j % 2]*OPT.get('bdx', 1)].append(x)
        spread(G, early, list(range(2, 6*XSP+6)))
        late = statlist(ST3, SP[0], RS, TT) + gconsts(RS, SP[0]+1, SP[0]+2, SP[0]+3) + [f"ds_write_b128 v2, {vr(SP[0])}"] + late2
        if OPT.get('xbal', 1):
            gaps = list(range(6*XSP+6, 48)); wt = lambda x: 3 if isinstance(x, str) and x.startswith("ds_write") else 1
            load = {g: sum(wt(x) for x in G[g]) for g in gaps}
            tot = sum(load.values()) + len(late); acc = 0; j = 0
            for n_, g in enumerate(gaps):
                acc += load[g]
                while j < len(late) and (acc + 1) * len(gaps) <= tot * (n_+1) + len(gaps)//2: G[g].append(late[j]); j += 1; acc += 1
            G[47] += late[j:]
        else: spread(G, late, list(range(6*XSP+6, 48)))
        st("x_w")
        first_check("x", labX)
        st("x_m")
        stream(M, G)
        st("x_e")
        k("s_waitcnt lgkmcnt(0)\ns_barrier")
        st("m_B3")
        def gelu_list(a, sp, q):
            L = []
            for c in range(2):
                R = range(0,8) if c == 0 else range(8,12)
                L += [f"v_fma_f32 v{a+r}, v{sp}, v{C3+r}, v{a+r}" for r in R]
                L += [f"v_mul_f32 v{GT+r}, v{a+r}, v{a+r}" for r in R]
                L += [f"v_fma_f32 v{GT+r}, v{GT+r}, v{sp+2}, v{sp+3}" for r in R]
                L += [f"v_mul_f32 v{GT+r}, v{GT+r}, v{a+r}" for r in R]
                L += [f"v_exp_f32 v{GT+r}, v{GT+r}" for r in R]
                L += [f"v_fma_f32 v{GT+r}, v{GT+r}, v{sp+1}, v{sp+1}" for r in R]
                L += [f"v_rcp_f32 v{GT+r}, v{GT+r}" for r in R]
                L += [f"v_mul_f32 v{a+r}, v{a+r}, v{GT+r}" for r in R]
                L += [f"v_cvt_pk_bf16_f32 v{UP+r//2}, v{a+r}, v{a+r+1}" for r in R if r % 2 == 0]
                if c == 0:
                    L += [f"v_min_u32 v{UP}, {sM2}, v{UP}", f"v_min_u32 v{UP+2}, {sM2}, v{UP+2}",
                          (f"buffer_store_dwordx4 {vr(UP)}, v3, s[4:7], {sUs[q]} offen{sc}", "st")]
                else:
                    L += [f"v_min_u32 v{UP+4}, {sM2}, v{UP+4}", (f"buffer_store_dwordx2 {vr(UP+4,2)}, v10, s[4:7], {sUs[q]} offen{sc}", "st")]
            return L
        cost = lambda x: 8 if isinstance(x, tuple) or x.startswith(TRANS) else 4
        def spreadw(G, items, gaps, F=None):
            if OPT.get('sbal', 1): return spreadb(G, items, gaps, F)
            tot = sum(cost(x) for x in items); acc = 0; g = len(gaps)
            for x in items:
                gi = min(g-1, acc*g//tot); acc += cost(x)
                if isinstance(x, tuple) and gi+1 < g: G.setdefault(('m', gaps[gi+1]), []).append(x)
                else: G.setdefault(gaps[gi], []).append(x)
        def stream2(M, F, G):
            for i, m in enumerate(M):
                k(m)
                for x in F.get(i, []) + G.get(('m', i), []) + G.get(i, []): em(x)
        lateW = [(ldr(w4reg(i//4, i%4), s4[i//16], i%16, "v11" if i >= 40 else None)[0], "w4") for i in range(24, 44)]
        BB=ACT
        def rdB(n):
            q = n//16+1; s = n % 16
            return (f"ds_read_b128 {vr(BB+4*(n%4))}, v{TB[q]} offset:{1024*s}", f"b{n}")
        UB=[40,144,188,40]
        UV=[80,80,80,80]
        def uld(t): return [f"buffer_load_dwordx4 {vr(UB[t]+4*ks)}, v{12 if ks == 10 else 3+ks//4}, s[4:7], {sUl[t]} offen offset:{1024*(ks%4)} sc1" for ks in range(11)]
        DU = dict(L=[(x, [UB[t]+4*ks, UB[t]+4*ks+2]) for t in range(4) for ks, x in enumerate(uld(t))], iss=set(), inl=OPT.get('uinl', 2), nst=1)
        def uiss(t): return [iss(DU, 11*t+ks, f"u{t}_{ks//2}") for ks in range(11)]
        LK = OPT.get('lk', 44)
        UPOS = {}
        for t in range(1, 4):
            for ks, x in enumerate(uiss(t)): UPOS.setdefault(max(OPT.get(f'u{t}at', 0) + 44*(t-1) + OPT.get('usp', 0)*ks, 44*t + 4*ks - OPT.get(f'lk{t}', LK)), []).append(x)
        for n in range(4): em(rdB(n))
        for q in range(1,4):
            M = []; F = {}; G = {}
            for s in range(16):
                n = 16*(q-1)+s
                for t in range(3): M.append(M16(vr(AC[q%2]+4*t), w3reg(t,s), vr(BB+4*(n%4)), 0 if s == 0 else vr(AC[q%2]+4*t)))
                if OPT.get('bw2'): F[3*s+2] = ([lambda n=n: k.waitlg(f"b{min(47, n+2)}")] if n % 2 == 0 else []) + ([rdB(n+4)] if n+4 < 48 else [])
                else: F[3*s+2] = ([lambda n=n: k.waitlg(f"b{n+1}")] if n < 47 else []) + ([rdB(n+4)] if n+4 < 48 else [])
            F.setdefault(30, []).append((f"ds_read_b128 {vr(SP[q])}, v{SB[q]}", f"sp{q}"))
            if OPT.get('lw2', 1) and q < 3:
                n1 = OPT.get('lw1', 8)
                mem = lateW[:n1] if q == 1 else lateW[n1:]
                for i, x in enumerate(mem): F.setdefault(3*((i*16+OPT.get('lwo', 8))//len(mem)), []).append(x)
            else:
                mem = lateW if q == 1 else ([] if q == 2 else uiss(0)[:10])
                g0 = 0 if q == 1 else OPT.get('u0at', 6)
                us = OPT.get('u0s', 2)
                for i, x in enumerate(mem): F.setdefault(3*(g0+i//(2 if q == 1 else us)), []).append(x)
            gl = gelu_list(AC[(q-1)%2], SP[q-1], q-1)
            if q == 1:
                for x in gl[:OPT.get('lead1', 20)]: em(x)
                gl = gl[OPT.get('lead1', 20):]
                k.waitlg("b0")
                spreadw(G, gl, list(range(0, 48)), F)
            else: spreadw(G, gl, list(range(OPT.get('sl0', 2), 48)), F)
            stream2(M, F, G)
            st(f"u_slot{q}")
        st("m_w3e")
        em(uiss(0)[10])
        A4=[232,16]
        RD=84
        RA=[8,124]
        red_addr = ["v_lshrrev_b32 v7, 2, v1", "v_and_b32 v8, 3, v1", "v_lshl_add_u32 v9, v8, 2, v7", "v_and_b32 v9, 15, v9", "v_lshlrev_b32 v9, 4, v9", "v_lshl_add_u32 v9, v8, 8, v9",
                    "v_lshlrev_b32 v7, 10, v7", "v_lshl_add_u32 v7, v8, 4, v7",
                    f"s_and_b32 {T}, {W}, 1", f"s_lshl_b32 {T}, {T}, 11", f"v_add_u32 v9, {T}, v9",
                    f"s_mov_b32 {T2}, 16384", f"s_cmp_lt_u32 {W}, 2\ns_cselect_b32 {T}, {RING:#x}, {T2}", f"v_add_u32 v{RA[0]}, {T}, v9",
                    f"s_lshr_b32 {T2}, {W}, 1", f"s_lshl_b32 {T}, {T2}, 14", f"s_add_u32 {T}, {T}, 0x8000", f"v_add_u32 v{RA[1]}, {T}, v9",
                    f"s_lshl_b32 {T}, {T2}, 12", f"v_add_u32 v9, {T}, v9"]
        def red_list(u):
            L = []
            for src in range(4):
                for b in range(2): L.append((f"ds_read_b128 {vr(RD+8*src+4*b)}, v{RA[u]} offset:{4096*src+1024*b}", f"rd{src}"))
            for b in range(2): L.append((f"ds_read_b128 {vr(RD+32+4*b)}, v9 offset:{8192*u+1024*b}", "rd4"))
            add = (lambda d, s: [f"v_add_f32 v{d+r}, v{d+r}, v{s+r}" for r in range(8)]) if u == 0 else (lambda d, s: [f"v_pk_add_f32 {pr(d+r)}, {pr(d+r)}, {pr(s+r)}" for r in range(0,8,2)])
            L.append(lambda: k.waitlg("rd1")); L += add(RD, RD+8)
            L.append(lambda: k.waitlg("rd3")); L += add(RD+16, RD+24)
            L.append(lambda: k.waitlg("rd4")); L += add(RD, RD+32) + add(RD, RD+16)
            L += [f"v_cvt_pk_bf16_f32 v{RD+8+r}, v{RD+2*r}, v{RD+2*r+1}" for r in range(4)]
            L.append((f"buffer_store_dwordx4 {vr(RD+8)}, v7, s[12:15], {sOut[u]} offen{' sc1' if OPT.get('outsc') else ''}", "out"))
            return L
        def ureg(t, c): return [UB[t]+4*ks+d for ks in range(2*c, min(2*c+2, 11)) for d in (0, 2)]
        k(f"v_add_u32 v2, {RING:#x}, v14")
        k.waitvm("u0_0")
        for x in maxl(ureg(0, 0)): k(x)
        br(DU, [0, 1])()
        k.waitlg("sp3")
        for t in range(4):
            a = A4[t%2]
            M = [M16(vr(a+4*nb), w4reg(ks,nb), vr(UB[t]+4*ks), 0 if ks == 0 else vr(a+4*nb)) for ks in range(11) for nb in range(4)]
            F = {}; G = {}; used = set()
            for c in range(1, 7):
                tt, cc, e = (t, c, 8*c) if c < 6 else (t+1, 0, 44)
                if tt > 3: continue
                L = maxl(ureg(tt, cc))
                e1 = e-1-len(L)-OPT.get('bdu', 1)
                F.setdefault(e1, []).append(lambda tt=tt, cc=cc: k.waitvm(f"u{tt}_{cc}"))
                for j, x in enumerate(L): G.setdefault(e1+j, []).append(x); used.add(e1+j)
                F.setdefault(e-1, []).append(br(DU, [11*tt+i for i in range(2*cc, min(2*cc+2, 11))]))
            if t >= 1:
                pa = A4[(t-1)%2]
                for nb in range(4): F.setdefault(OPT.get('w0', 8)+nb*OPT.get('ws', 1), []).append(f"ds_write_b128 v2, {vr(pa+4*nb)} offset:{1024*nb}" if t == 1 else f"ds_write_b128 v14, {vr(pa+4*nb)} offset:{16384*(t-1)+1024*nb}")
            for g in range(44):
                for x in UPOS.get(44*t+g, []): F.setdefault(g, []).append(x)
            if t == 0:
                F.setdefault(22, []).insert(0, lambda: k.waitvm("w4"))
                g3 = gelu_list(AC[1], SP[3], 3); n3 = OPT.get('g3t1', 0)
                assert n3 <= 36
                spreadw(G, g3[:len(g3)-n3], list(range(OPT.get('sl0', 2), OPT.get('g3end', 36))), F)
            if t == 1:
                if n3: spreadb(G, g3[len(g3)-n3:], list(range(0, OPT.get('g3e1', 14))), F)
                spread(G, red_addr, [i for i in range(max(14, OPT.get('g3e1', 14)), 44) if i not in used])
            if t == 2:
                F.setdefault(32, []).append("s_waitcnt lgkmcnt(0)"); F.setdefault(32, []).append("s_barrier")
            if t == 3:
                if OPT.get('rbal', 0): spreadb(G, red_list(0), list(range(0, 44)), F)
                else: spread(G, red_list(0), [i for i in range(0, 44) if i not in used])
            stream2(M, F, G)
            st(f"u_t{t}")
        for nb in range(4): k(f"ds_write_b128 v14, {vr(A4[1]+4*nb)} offset:{16384*3+1024*nb}")
        k("s_waitcnt lgkmcnt(0)\ns_barrier")
        st("m_w4e")
        for x in red_list(1): em(x)
        if fast != bool(OPT.get('slowtail')):
            if OPT.get('cnt'): k(f"s_mov_b32 s{k.sb}, {sCNT}")
            stamp_out(k, 1, 16, 18)
        if fast: k.label(done)
        k("s_endpgm")
        for L in tramp + stubs:
            for x in L:
                if x.endswith(":"): k.label(x[:-1])
                else: k(x)
    vq, lq = list(k.vmq), list(k.lgq)
    tail(True)
    hopend(k, 4, "L_code_end")
    k.label("L_code_end")
    k.label("L_tail_sc")
    k.vmq, k.lgq = list(vq), list(lq)
    k("s_nop 7")
    if OPT.get('ock'):
        k("s_waitcnt vmcnt(0)")
        k.label("L_xt_poll")
        k(f"v_mbcnt_lo_u32_b32 v{XTV}, -1, 0\nv_and_b32 v{XTV}, 31, v{XTV}\nv_lshlrev_b32 v{XTV}, 7, v{XTV}")
        k(f"buffer_load_dword v{XTV}, v{XTV}, s[4:7], {sXT} offen sc1")
        k(f"s_add_u32 {sCNT}, {sCNT}, 1\ns_cmp_gt_u32 {sCNT}, {BOUND}\ns_waitcnt vmcnt(0)\nv_cmp_eq_u32 vcc, -1, v{XTV}")
        k("s_cbranch_scc1 L_xt_done\ns_cbranch_vccnz L_xt_poll")
        k.label("L_xt_done")
        k.vmq = list(vq)
    tail(False)
    for L in atr:
        for x in L:
            if x.endswith(":"): k.label(x[:-1])
            else: k(x)
    k.label("L_attn_slow")
    k("s_waitcnt vmcnt(0)")
    M=[C, C+1]; TM=C+2; TX=C+3; AL=C+4
    for X_ in range(2): k(f"v_mov_b32 v{M[X_]}, {fhex(-3.0e38)}")
    for r in range(32): k(f"v_mov_b32 v{O[0]+r}, 0")
    for r in range(8): k(f"v_mov_b32 v{V0+r}, {sONE}")
    k(f"s_lshl_b32 {sKV}, {HD}, 17\ns_add_u32 {sKV}, {sKV}, {KV:#x}\ns_mov_b32 {sRW}, 64\ns_mov_b32 {RET}, 0x0000ffff\ns_mov_b32 s{int(RET[1:])+1}, 0x0000ffff")
    k.label("L_attn_sloop")
    k(f"buffer_load_dwordx4 {vr(KR)}, v3, s[4:7], {sKV} offen")
    k(f"s_mov_b64 exec, {RETP}")
    k(f"buffer_load_dwordx4 {vr(V0)}, v14, s[4:7], {sKV} offen offset:1024")
    k(f"buffer_load_dwordx4 {vr(V1)}, v14, s[4:7], {sKV} offen offset:1536")
    k("s_mov_b64 exec, -1")
    k("s_waitcnt vmcnt(0)")
    for X_ in range(2):
        s = S[X_]; p = P[X_]
        k(M32(vr(s,16), vr(KR), vr([QA,QB][X_]), 0))
        k(f"v_max_f32 v{TM}, v{s}, v{s+1}")
        for r in range(2,16,2): k(f"v_max3_f32 v{TM}, v{TM}, v{s+r}, v{s+r+1}")
        k(f"v_mov_b32 v{TX}, v{TM}\nv_permlane32_swap_b32 v{TM}, v{TX}\nv_max3_f32 v{TM}, v{TM}, v{TX}, v{M[X_]}")
        k(f"v_sub_f32 v{AL}, v{M[X_]}, v{TM}\nv_exp_f32 v{AL}, v{AL}\nv_mov_b32 v{M[X_]}, v{TM}")
        for r in range(16): k(f"v_mul_f32 v{O[X_]+r}, v{O[X_]+r}, v{AL}")
        for r in range(16): k(f"v_sub_f32 v{s+r}, v{s+r}, v{TM}")
        for r in range(16): k(f"v_exp_f32 v{s+r}, v{s+r}")
        for r in range(8): k(f"v_cvt_pk_bf16_f32 v{p+r}, v{s+2*r}, v{s+2*r+1}")
        k(M32(vr(O[X_],16), vr(V0), vr(p), vr(O[X_],16)))
        k(M32(vr(O[X_],16), vr(V1), vr(p+4), vr(O[X_],16)))
    k("s_nop 15")
    k(f"s_add_u32 {sKV}, {sKV}, 2048\ns_sub_u32 {sRW}, {sRW}, 1\ns_cmp_lg_u32 {sRW}, 0\ns_cbranch_scc1 L_attn_sloop")
    k(f"v_rcp_f32 v{T0+4}, v{O[0]+8}\nv_rcp_f32 v{T0+6}, v{O[1]+8}")
    norm(0)
    k("s_nop 3")
    k("s_branch L_attn_fin")
    print("sgprs used up to", S_.n)
    return k

if __name__ == "__main__":
    out = sys.argv[1]
    for a in sys.argv[2:]:
        kk, v = a.split("="); OPT[kk] = int(v) if v.lstrip("-").isdigit() else v
    k2 = gen_k2(); n2 = k2.fix(verbose=bool(OPT.get('v')))
    k1 = gen_k1(); n1 = k1.fix(verbose=bool(OPT.get('v')))
    print("nops inserted", n1, n2, "verify errors", verify(k1), verify(k2))
    emit(out, [("qkv_kernel",256,512,163840),("main_kernel",256,256,163840)], [k1, k2], step=OPT.get('hopstep', 4096))
```
